```python
import torch

def _softmax(x, axis=-1):
    return torch.softmax(x, dim=axis)
def _gelu(x):
    return torch.nn.functional.gelu(x, approximate="tanh")
def _silu(x):
    return torch.nn.functional.silu(x)
def _sigmoid(x):
    return torch.sigmoid(x)
def _layernorm(x, axis=-1, eps=1e-5):
    m = x.mean(dim=axis, keepdim=True)
    v = x.var(dim=axis, keepdim=True, unbiased=False)
    return (x - m) / torch.sqrt(v + eps)
def _scatter_add(tgt, idx, src, axis=0):
    return tgt.clone().index_add_(axis, idx, src)
def _segment_sum(src, seg, n):
    out = torch.zeros((n,) + src.shape[1:], dtype=src.dtype)
    return out.index_add_(0, seg, src)
def _pad(x, pw):
    flat = tuple(v for pair in reversed(pw) for v in pair)
    return torch.nn.functional.pad(x, flat)

kernel_name = 'recurrent_scan__compressed_kv_cla__geglu_ffn__decode'

def setup_inputs():

    _w = (lambda a: (lambda t: t.to(torch.bfloat16) if t.is_floating_point() else t)(torch.as_tensor(a)))
    def _A_setup():
        B, H, Sq, Sk, D, M = 2, 32, 1, 8192, 128, 640
        Dc = 4 * D
        return {
            "x": _w((lambda *s: torch.randn(*s, dtype=torch.bfloat16) * 0.05)(B, Sq, M)),
            "c_kv": _w((lambda *s: torch.randn(*s, dtype=torch.bfloat16) * 0.8)(B, Sk, Dc)),
            "w_q": _w((lambda *s: torch.randn(*s, dtype=torch.bfloat16) * 1.6)(M, H, D) * (M ** -0.5)),
            "w_uk": _w((lambda *s: torch.randn(*s, dtype=torch.bfloat16) * 1.6)(Dc, H, D) * (Dc ** -0.5)),
            "w_uv": _w((lambda *s: torch.randn(*s, dtype=torch.bfloat16) * 0.8)(Dc, H, D) * (Dc ** -0.5)),
            "w_o": _w((lambda *s: torch.randn(*s, dtype=torch.bfloat16) * 0.8)(H, D, M) * ((H * D) ** -0.5)),
        }
    _A_in = _A_setup()

    def _B_setup():
        B, S, D, F = 2, 1, 640, 1728
        return {
            "x": _w((lambda *s: torch.randn(*s, dtype=torch.bfloat16) * 0.05)(B, S, D)),
            "w_gate": _w((lambda *s: torch.randn(*s, dtype=torch.bfloat16) * 0.2)(D, F)),
            "w_up": _w((lambda *s: torch.randn(*s, dtype=torch.bfloat16) * 0.2)(D, F)),
            "w_down": _w((lambda *s: torch.randn(*s, dtype=torch.bfloat16) * 0.2)(F, D)),
        }
    _B_in = _B_setup()

    return {
        "A_x": _A_in["x"],
        "A_c_kv": _A_in["c_kv"],
        "A_w_q": _A_in["w_q"],
        "A_w_uk": _A_in["w_uk"],
        "A_w_uv": _A_in["w_uv"],
        "A_w_o": _A_in["w_o"],
        "B_x": _B_in["x"],
        "B_w_gate": _B_in["w_gate"],
        "B_w_up": _B_in["w_up"],
        "B_w_down": _B_in["w_down"],
    }

def reference(A_x, A_c_kv, A_w_q, A_w_uk, A_w_uv, A_w_o, B_x, B_w_gate, B_w_up, B_w_down):
    def _A_ref(x, c_kv, w_q, w_uk, w_uv, w_o):
        B, Sq, M = x.shape[0], x.shape[1], x.shape[2]
        Sk = c_kv.shape[1]
        H, D = w_q.shape[1], w_q.shape[2]
        q = torch.einsum("bqm,mhd->bhqd", x, w_q)
        k = torch.einsum("bkc,chd->bhkd", c_kv, w_uk)
        v = torch.einsum("bkc,chd->bhkd", c_kv, w_uv)
        scores = torch.einsum("bhqd,bhkd->bhqk", q, k) * (D ** -0.5)
        off = Sk - Sq
        qi = torch.arange(Sq)[:, None]
        kj = torch.arange(Sk)[None, :]
        cmask = kj <= (qi + off)
        scores = torch.where(cmask[None, None], scores, -1e9)
        p = _softmax(scores, axis=-1)
        ctx = torch.einsum("bhqk,bhkd->bhqd", p, v)
        return torch.einsum("bhqd,hdm->bqm", ctx, w_o)

    def _B_ref(x, w_gate, w_up, w_down):
        return (_gelu(x @ w_gate) * (x @ w_up)) @ w_down

    x = A_x
    xn = _layernorm(x, axis=-1)
    s = _A_ref(xn, A_c_kv, A_w_q, A_w_uk, A_w_uv, A_w_o)
    g = _silu(_B_ref(xn, B_w_gate, B_w_up, B_w_down))
    return x + s * g
```

```python
NAME = "recurrent_scan__compressed_kv_cla__geglu_ffn__decode"
REF = f"cdna_kernels/{NAME}.s.ref"
KA = dict(x=0, ckv=8, wq=16, wuk=24, wuv=32, wo=40, bx=48, wg=56, wu=64, wd=72, out=80, dbg=88, ws=96)
SZ = dict(x=2560, ckv=16777216, wq=5242880, wuk=4194304, wuv=4194304, wo=5242880, bx=2560,
          wg=2211840, wu=2211840, wd=2211840, out=2560, dbg=256, ws=268435456)

def header(launch_lines):
    out = []
    for l in open(REF).read().split("\n"):
        if l.startswith("; Override launch") or l.startswith("; grid=ceil"):
            continue
        if l.startswith("; @launch"):
            out += launch_lines
            continue
        if not l.startswith(";"):
            break
        out.append(l)
    out.append('.amdgcn_target "amdgcn-amd-amdhsa--gfx950"')
    out.append(".text")
    return "\n".join(out) + "\n"

def kernel_text(label, body):
    return f".globl {label}\n.p2align 8\n.type {label},@function\n{label}:\n{body}\n"

def descriptor(label, vgpr=256, sgpr=102, accum=None, wgy=False, denorm32=None):
    if accum is None:
        accum = min(256, (vgpr + 3) // 4 * 4)
    s = f".p2align 6\n.amdhsa_kernel {label}\n"
    s += f"  .amdhsa_next_free_vgpr {vgpr}\n  .amdhsa_next_free_sgpr {sgpr}\n  .amdhsa_accum_offset {accum}\n"
    s += "  .amdhsa_group_segment_fixed_size 0\n  .amdhsa_kernarg_size 104\n  .amdhsa_user_sgpr_count 2\n"
    s += "  .amdhsa_user_sgpr_kernarg_segment_ptr 1\n  .amdhsa_system_sgpr_workgroup_id_x 1\n"
    if wgy:
        s += "  .amdhsa_system_sgpr_workgroup_id_y 1\n"
    if denorm32 is not None:
        s += f"  .amdhsa_float_denorm_mode_32 {denorm32}\n"
    s += ".end_amdhsa_kernel\n"
    return s

class Asm:
    def __init__(self):
        self.l = []
    def __call__(self, s):
        for x in s.strip("\n").split("\n"):
            x = x.strip()
            if x:
                self.l.append(("" if x.endswith(":") else "    ") + x)
    def text(self):
        return "\n".join(self.l)
```

```python
import sys
from common import *
W = dict(xn=0, q=0x10000, ga=0x20000, up=0x30000, h=0x40000, qa=0x50000, ctxl=0x80000, ctx=0xb0000,
         s=0xc0000, y=0xd0000, sc=0x100000)

def srd(a, d, name, koff):
    a(f"s_load_dwordx2 s[{d}:{d+1}], s[0:1], {KA[name]}")

def gemv(label, N, ny, K, Aoff, a_y, Bname, b_hi, b_lo, b_i, b_k, Ooff, o_y, scale=None):
    a = Asm()
    gx = (N + 255) // 256
    a(f"""
    s_cmp_ge_u32 s2, {gx}
    s_cbranch_scc1 {label}_end
    s_load_dwordx2 s[8:9], s[0:1], {KA[Bname]}
    s_load_dwordx2 s[12:13], s[0:1], {KA['ws']}
    s_lshl_b32 s4, s2, 8
    v_add_u32 v1, s4, v0
    s_mov_b32 s5, {b_i}
    v_mul_lo_u32 v2, v1, s5
    s_lshr_b32 s4, s3, 5
    s_mul_i32 s4, s4, {b_hi}
    s_and_b32 s5, s3, 31
    s_mul_i32 s5, s5, {b_lo}
    s_add_u32 s4, s4, s5
    v_add_u32 v2, s4, v2
    s_waitcnt lgkmcnt(0)
    s_mov_b32 s10, {SZ[Bname]}
    s_mov_b32 s11, 0x20000
    s_mov_b32 s14, {SZ['ws']}
    s_mov_b32 s15, 0x20000
    s_mul_i32 s4, s3, {a_y}
    s_add_u32 s4, s4, {Aoff}
    s_add_u32 s16, s12, s4
    s_addc_u32 s17, s13, 0
    v_mov_b32 v3, 0
    s_mov_b32 s6, 0
    s_mov_b32 s7, 0
    {label}_loop:
    s_load_dwordx16 s[32:47], s[16:17], 0
    """)
    for j in range(16):
        a(f"buffer_load_ushort v{8+j}, v2, s[8:11], s7 offen")
        a(f"s_add_u32 s7, s7, {b_k}")
    a("s_waitcnt lgkmcnt(0)")
    for j in range(16):
        a(f"s_waitcnt vmcnt({15-j})")
        a(f"v_lshlrev_b32 v{8+j}, 16, v{8+j}")
        a(f"v_fmac_f32 v3, s{32+j}, v{8+j}")
    a(f"""
    s_add_u32 s16, s16, 64
    s_addc_u32 s17, s17, 0
    s_add_u32 s6, s6, 16
    s_cmp_lt_u32 s6, {K}
    s_cbranch_scc1 {label}_loop
    """)
    if scale is not None:
        a(f"v_mul_f32 v3, {scale}, v3")
    a(f"""
    s_mul_i32 s4, s3, {o_y}
    s_add_u32 s4, s4, {Ooff}
    v_lshlrev_b32 v4, 2, v1
    v_cmp_gt_u32 vcc, {N}, v1
    s_and_saveexec_b64 s[20:21], vcc
    s_cbranch_execz {label}_end
    buffer_store_dword v3, v4, s[12:15], s4 offen
    s_waitcnt vmcnt(0)
    {label}_end:
    s_endpgm
    """)
    return (label, f"grid=({gx},{ny},1) block=(256,1,1) lds=0", a.text(), dict(vgpr=32, sgpr=64, wgy=True))

def wave_reduce(a, v, t, op):
    for m in (1, 2, 4, 8, 16):
        a(f"ds_swizzle_b32 {t}, {v} offset:{(m<<10)|0x1f:#x}\ns_waitcnt lgkmcnt(0)\n{op} {v}, {v}, {t}")
    a(f"s_nop 1\nv_readlane_b32 s30, {v}, 0\nv_readlane_b32 s31, {v}, 32\ns_nop 3\nv_mov_b32 {v}, s30\n{op} {v}, s31, {v}")

def k_ln():
    a = Asm(); L = "ln_kernel"
    a(f"""
    s_cmp_ge_u32 s2, 2
    s_cbranch_scc1 {L}_end
    s_load_dwordx2 s[8:9], s[0:1], {KA['x']}
    s_load_dwordx2 s[12:13], s[0:1], {KA['ws']}
    s_waitcnt lgkmcnt(0)
    s_mov_b32 s10, {SZ['x']}
    s_mov_b32 s11, 0x20000
    s_mov_b32 s14, {SZ['ws']}
    s_mov_b32 s15, 0x20000
    s_mul_i32 s4, s2, 1280
    v_lshlrev_b32 v1, 1, v0
    """)
    for j in range(10):
        a(f"buffer_load_ushort v{8+j}, v1, s[8:11], s4 offen offset:{j*128}")
    a("s_waitcnt vmcnt(0)\nv_mov_b32 v2, 0")
    for j in range(10):
        a(f"v_lshlrev_b32 v{8+j}, 16, v{8+j}\nv_add_f32 v2, v2, v{8+j}")
    wave_reduce(a, "v2", "v3", "v_add_f32")
    a(f"v_mul_f32 v2, {1/640!r}, v2\nv_mov_b32 v4, 0")
    for j in range(10):
        a(f"v_sub_f32 v{8+j}, v{8+j}, v2\nv_fmac_f32 v4, v{8+j}, v{8+j}")
    wave_reduce(a, "v4", "v3", "v_add_f32")
    a(f"v_mul_f32 v4, {1/640!r}, v4\nv_add_f32 v4, 1e-5, v4\nv_rsq_f32 v4, v4\ns_nop 1")
    a(f"s_mul_i32 s4, s2, 2560\ns_add_u32 s4, s4, {W['xn']}\nv_lshlrev_b32 v1, 2, v0")
    for j in range(10):
        a(f"v_mul_f32 v{8+j}, v{8+j}, v4\nbuffer_store_dword v{8+j}, v1, s[12:15], s4 offen offset:{j*256}")
    a(f"s_waitcnt vmcnt(0)\n{L}_end:\ns_endpgm")
    return (L, "grid=(2,1,1) block=(64,1,1) lds=0", a.text(), dict(vgpr=32, sgpr=64))

def k_softmax():
    a = Asm(); L = "sm_kernel"
    a(f"""
    s_cmp_ge_u32 s2, 64
    s_cbranch_scc1 {L}_end
    s_load_dwordx2 s[12:13], s[0:1], {KA['ws']}
    s_waitcnt lgkmcnt(0)
    s_mov_b32 s14, {SZ['ws']}
    s_mov_b32 s15, 0x20000
    s_lshl_b32 s4, s2, 15
    s_add_u32 s4, s4, {W['sc']}
    v_lshlrev_b32 v1, 4, v0
    """)
    for j in range(32):
        a(f"s_add_u32 s5, s4, {j*1024}\nbuffer_load_dwordx4 v[{8+4*j}:{11+4*j}], v1, s[12:15], s5 offen")
    a("s_waitcnt vmcnt(0)\nv_mov_b32 v2, v8")
    for j in range(128):
        a(f"v_max_f32 v2, v2, v{8+j}")
    wave_reduce(a, "v2", "v3", "v_max_f32")
    a("v_mov_b32 v4, 0")
    for j in range(128):
        a(f"v_sub_f32 v{8+j}, v{8+j}, v2\nv_mul_f32 v{8+j}, 1.4426950408889634, v{8+j}\nv_exp_f32 v{8+j}, v{8+j}\ns_nop 0\nv_add_f32 v4, v4, v{8+j}")
    wave_reduce(a, "v4", "v3", "v_add_f32")
    a("v_rcp_f32 v4, v4\ns_nop 1")
    for j in range(128):
        a(f"v_mul_f32 v{8+j}, v{8+j}, v4")
    for j in range(32):
        a(f"s_add_u32 s5, s4, {j*1024}\nbuffer_store_dwordx4 v[{8+4*j}:{11+4*j}], v1, s[12:15], s5 offen")
    a(f"s_waitcnt vmcnt(0)\n{L}_end:\ns_endpgm")
    return (L, "grid=(64,1,1) block=(64,1,1) lds=0", a.text(), dict(vgpr=140, sgpr=64))

def k_h():
    a = Asm(); L = "h_kernel"
    c = 2*0.7978845608028654*1.4426950408889634
    a(f"""
    s_cmp_ge_u32 s2, 14
    s_cbranch_scc1 {L}_end
    s_load_dwordx2 s[12:13], s[0:1], {KA['ws']}
    s_waitcnt lgkmcnt(0)
    s_mov_b32 s14, {SZ['ws']}
    s_mov_b32 s15, 0x20000
    s_lshl_b32 s4, s2, 8
    v_add_u32 v1, s4, v0
    v_lshlrev_b32 v1, 2, v1
    s_mov_b32 s5, {W['ga']}
    s_mov_b32 s6, {W['up']}
    s_mov_b32 s7, {W['h']}
    buffer_load_dword v2, v1, s[12:15], s5 offen
    buffer_load_dword v3, v1, s[12:15], s6 offen
    s_waitcnt vmcnt(0)
    v_mul_f32 v4, v2, v2
    v_mul_f32 v4, 0.044715, v4
    v_add_f32 v4, 1.0, v4
    v_mul_f32 v4, v4, v2
    v_mul_f32 v4, {-c!r}, v4
    v_exp_f32 v4, v4
    s_nop 0
    v_add_f32 v4, 1.0, v4
    v_rcp_f32 v4, v4
    s_nop 0
    v_mul_f32 v4, v4, v2
    v_mul_f32 v4, v4, v3
    buffer_store_dword v4, v1, s[12:15], s7 offen
    s_waitcnt vmcnt(0)
    {L}_end:
    s_endpgm
    """)
    return (L, "grid=(14,1,1) block=(256,1,1) lds=0", a.text(), dict(vgpr=32, sgpr=64))

def k_fin():
    a = Asm(); L = "fin_kernel"
    a(f"""
    s_cmp_ge_u32 s2, 5
    s_cbranch_scc1 {L}_end
    s_load_dwordx2 s[8:9], s[0:1], {KA['x']}
    s_load_dwordx2 s[12:13], s[0:1], {KA['ws']}
    s_load_dwordx2 s[16:17], s[0:1], {KA['out']}
    s_waitcnt lgkmcnt(0)
    s_mov_b32 s10, {SZ['x']}
    s_mov_b32 s11, 0x20000
    s_mov_b32 s14, {SZ['ws']}
    s_mov_b32 s15, 0x20000
    s_mov_b32 s18, {SZ['out']}
    s_mov_b32 s19, 0x20000
    s_lshl_b32 s4, s2, 8
    v_add_u32 v1, s4, v0
    v_lshlrev_b32 v5, 1, v1
    v_lshlrev_b32 v1, 2, v1
    s_mov_b32 s5, {W['s']}
    s_mov_b32 s6, {W['y']}
    buffer_load_dword v2, v1, s[12:15], s5 offen
    buffer_load_dword v3, v1, s[12:15], s6 offen
    buffer_load_ushort v6, v5, s[8:11], 0 offen
    s_waitcnt vmcnt(0)
    v_lshlrev_b32 v6, 16, v6
    v_mul_f32 v4, -1.4426950408889634, v3
    v_exp_f32 v4, v4
    s_nop 0
    v_add_f32 v4, 1.0, v4
    v_rcp_f32 v4, v4
    s_nop 0
    v_mul_f32 v4, v4, v3
    v_fmac_f32 v6, v4, v2
    v_cvt_pk_bf16_f32 v6, v6, v6
    buffer_store_short v6, v5, s[16:19], 0 offen
    s_waitcnt vmcnt(0)
    {L}_end:
    s_endpgm
    """)
    return (L, "grid=(5,1,1) block=(256,1,1) lds=0", a.text(), dict(vgpr=32, sgpr=64))

def baseline():
    ks = [k_ln(),
      gemv("q_kernel", 4096, 2, 640, W['xn'], 2560, 'wq', 0, 0, 2, 8192, W['q'], 16384),
      gemv("ga_kernel", 1728, 2, 640, W['xn'], 2560, 'wg', 0, 0, 2, 3456, W['ga'], 6912),
      gemv("up_kernel", 1728, 2, 640, W['xn'], 2560, 'wu', 0, 0, 2, 3456, W['up'], 6912),
      k_h(),
      gemv("y_kernel", 640, 2, 1728, W['h'], 6912, 'wd', 0, 0, 2, 1280, W['y'], 2560),
      gemv("qa_kernel", 512, 64, 128, W['q'], 512, 'wuk', 0, 256, 8192, 2, W['qa'], 2048, scale=128**-0.5),
      gemv("sc_kernel", 8192, 64, 512, W['qa'], 2048, 'ckv', 8388608, 0, 1024, 2, W['sc'], 32768),
      k_softmax(),
      gemv("cl_kernel", 512, 64, 8192, W['sc'], 32768, 'ckv', 8388608, 0, 2, 1024, W['ctxl'], 2048),
      gemv("cx_kernel", 128, 64, 512, W['ctxl'], 2048, 'wuv', 0, 256, 2, 8192, W['ctx'], 512),
      gemv("so_kernel", 640, 2, 4096, W['ctx'], 16384, 'wo', 0, 0, 2, 1280, W['s'], 2560),
      k_fin()]
    return ks

def emit(ks, path):
    seen = {}
    launch = []
    for (L, g, body, d) in ks:
        launch.append(f"; @launch kernel={L} {g}")
        seen.setdefault(L, (body, d))
    s = header(launch)
    for L, (body, d) in seen.items():
        s += kernel_text(L, body)
    s += '.section .rodata,"a"\n'
    for L, (body, d) in seen.items():
        s += descriptor(L, **d)
    open(path, "w").write(s)

if __name__ == "__main__":
    emit(baseline(), sys.argv[1] if len(sys.argv) > 1 else f"cdna_kernels/{NAME}.s")
```

```python
from common import *
from simple import baseline, emit

def probe(name, buf, flags, nl=16, amp=100, base_off=0, store=False):
    a = Asm(); L = name
    a(f"""
    s_cmp_ge_u32 s2, 256
    s_cbranch_scc1 {L}_end
    s_load_dwordx2 s[8:9], s[0:1], {KA[buf]}
    s_waitcnt lgkmcnt(0)
    s_mov_b32 s10, {SZ[buf]}
    s_mov_b32 s11, 0x20000
    s_mul_i32 s4, s2, {nl*4096}
    s_add_u32 s4, s4, {base_off}
    v_lshlrev_b32 v1, 4, v0
    s_memrealtime s[20:21]
    s_waitcnt lgkmcnt(0)
    """)
    for j in range(nl):
        if store:
            a(f"buffer_store_dwordx4 v[8:11], v1, s[8:11], s4 offen {flags}\ns_add_u32 s4, s4, 4096")
        else:
            a(f"buffer_load_dwordx4 v[{8+4*j}:{11+4*j}], v1, s[8:11], s4 offen {flags}\ns_add_u32 s4, s4, 4096")
    a(f"""
    s_waitcnt vmcnt(0)
    s_barrier
    s_memrealtime s[22:23]
    s_waitcnt lgkmcnt(0)
    s_sub_u32 s24, s22, s20
    s_min_u32 s24, s24, 3000
    s_mul_i32 s24, s24, {amp}
    {L}_spin:
    s_memrealtime s[22:23]
    s_waitcnt lgkmcnt(0)
    s_sub_u32 s25, s22, s20
    s_cmp_lt_u32 s25, s24
    s_cbranch_scc1 {L}_spin
    {L}_end:
    s_endpgm
    """)
    return (L, "grid=(256,1,1) block=(256,1,1) lds=98304", a.text(), dict(vgpr=128, sgpr=64))

def empty(n=256):
    return ("empty_kernel", f"grid=({n},1,1) block=(256,1,1) lds=0", "s_endpgm", dict(vgpr=8, sgpr=16))

b = baseline()
emit(b, "../p_base.s")
emit([probe("p_kernel", "ckv", "")] + b, "../p_ckv.s")
emit([probe("p_kernel", "ckv", "nt")] + b, "../p_ckv_nt.s")
emit(b + [empty()]*40, "../p_empty40.s")
emit([probe("p_kernel", "ws", "", base_off=0x1000000)] + b, "../p_ws.s")
emit([probe("p_kernel", "ws", "nt", base_off=0x1000000)] + b, "../p_ws_nt.s")
emit([probe("p_kernel", "wq", "", nl=5)] + b, "../p_wq.s")
emit([probe("p_kernel", "wq", "nt", nl=5)] + b, "../p_wq_nt.s")
emit([probe("p_kernel", "wd", "", nl=2)] + b, "../p_wd.s")
emit([probe("p_kernel", "ws", "sc1", nl=8, base_off=0x1000000, store=True)] + b, "../p_wsst_lo.s")
emit([probe("p_kernel", "ws", "sc1", nl=8, base_off=0xF000000, store=True)] + b, "../p_wsst_hi.s")
emit([probe("p_kernel", "ws", "", base_off=0xF000000)] + b, "../p_ws_hi.s")
```

```python
from common import *
from simple import baseline, emit

def probe(name, buf, flags, nl=16, amp=100, base_off=0, store=False, nwg=256):
    a = Asm(); L = name
    a(f"""
    s_cmp_ge_u32 s2, {nwg}
    s_cbranch_scc1 {L}_end
    s_load_dwordx2 s[8:9], s[0:1], {KA[buf]}
    s_waitcnt lgkmcnt(0)
    s_mov_b32 s10, {SZ[buf]}
    s_mov_b32 s11, 0x20000
    s_mul_i32 s4, s2, {nl*4096}
    s_add_u32 s4, s4, {base_off}
    v_lshlrev_b32 v1, 4, v0
    s_memrealtime s[20:21]
    s_waitcnt lgkmcnt(0)
    """)
    for j in range(nl):
        if store:
            a(f"buffer_store_dwordx4 v[8:11], v1, s[8:11], s4 offen {flags}\ns_add_u32 s4, s4, 4096")
        else:
            a(f"buffer_load_dwordx4 v[{8+4*j}:{11+4*j}], v1, s[8:11], s4 offen {flags}\ns_add_u32 s4, s4, 4096")
    a(f"""
    s_waitcnt vmcnt(0)
    s_barrier
    s_memrealtime s[22:23]
    s_waitcnt lgkmcnt(0)
    s_sub_u32 s24, s22, s20
    s_min_u32 s24, s24, 3000
    s_mul_i32 s24, s24, {amp}
    {L}_spin:
    s_memrealtime s[22:23]
    s_waitcnt lgkmcnt(0)
    s_sub_u32 s25, s22, s20
    s_cmp_lt_u32 s25, s24
    s_cbranch_scc1 {L}_spin
    {L}_end:
    s_endpgm
    """)
    return (L, f"grid=({nwg},1,1) block=(256,1,1) lds=98304", a.text(), dict(vgpr=128, sgpr=64))

def empty(n=256):
    return ("empty_kernel", f"grid=({n},1,1) block=(256,1,1) lds=0", "s_endpgm", dict(vgpr=8, sgpr=16))

b = baseline()
emit([probe("p_kernel", "ckv", "", nwg=32, nl=24)] + b, "../p1.s")
emit([probe("p_kernel", "ckv", "nt", nwg=32, nl=24)] + b, "../p2.s")
emit([probe("p_kernel", "wd", "", nwg=16, nl=24)] + b, "../p3.s")
emit([probe("p_kernel", "ws", "", nwg=32, nl=24, base_off=0xF000000)] + b, "../p4.s")
emit([probe("p_kernel", "ws", "sc1", nl=8, base_off=0x1000000, store=True)] + b, "../p5.s")
emit([probe("p_kernel", "ckv", "", nwg=32, nl=1)] + b, "../p6.s")
```

```python
from common import *
from simple import baseline, emit

def spin(a, L, amp, cap=3000):
    a(f"""
    s_min_u32 s24, s24, {cap}
    s_mul_i32 s24, s24, {amp}
    s_memrealtime s[20:21]
    s_waitcnt lgkmcnt(0)
    {L}_spin:
    s_memrealtime s[22:23]
    s_waitcnt lgkmcnt(0)
    s_sub_u32 s25, s22, s20
    s_cmp_lt_u32 s25, s24
    s_cbranch_scc1 {L}_spin
    {L}_end:
    s_endpgm
    """)

def ifetch(kb, which, amp=50, nthr=64, pf=False):
    a = Asm(); L = "p_kernel"
    a(f"""
    s_cmp_ge_u32 s2, 256
    s_cbranch_scc1 {L}_end
    s_mov_b32 s30, 0
    """)
    if pf:
        a(f"""
        s_getpc_b64 s[40:41]
        v_lshlrev_b32 v10, 7, v0
        global_load_dword v11, v10, s[40:41]
        s_add_u32 s40, s40, 8192
        s_addc_u32 s41, s41, 0
        global_load_dword v12, v10, s[40:41]
        """)
    a(f"""
    {L}_again:
    s_memrealtime s[20:21]
    s_waitcnt lgkmcnt(0)
    .rept {kb*32}
    v_add3_u32 v1, v0, v0, v0
    v_add3_u32 v2, v0, v0, v0
    v_add3_u32 v3, v0, v0, v0
    v_add3_u32 v4, v0, v0, v0
    .endr
    s_memrealtime s[22:23]
    s_waitcnt lgkmcnt(0)
    s_sub_u32 s24, s22, s20
    s_add_u32 s30, s30, 1
    s_cmp_lt_u32 s30, {which}
    s_cbranch_scc1 {L}_again
    s_waitcnt vmcnt(0)
    """)
    spin(a, L, amp)
    return (L, f"grid=(256,1,1) block=({nthr},1,1) lds=98304", a.text(), dict(vgpr=128, sgpr=64))

def skew(amp=100):
    a = Asm(); L = "p_kernel"
    a(f"""
    s_memrealtime s[26:27]
    s_cmp_ge_u32 s2, 256
    s_cbranch_scc1 {L}_end
    s_load_dwordx2 s[8:9], s[0:1], {KA['dbg']}
    s_waitcnt lgkmcnt(0)
    s_mov_b32 s10, 256
    s_mov_b32 s11, 0x20000
    s_not_b32 s28, s26
    v_mov_b32 v1, s28
    v_mov_b32 v2, 0
    v_cmp_eq_u32 vcc, 0, v0
    s_and_saveexec_b64 s[12:13], vcc
    buffer_atomic_umax v1, v2, s[8:11], 0 offen
    s_waitcnt vmcnt(0)
    {L}_w:
    s_memrealtime s[22:23]
    s_waitcnt lgkmcnt(0)
    s_sub_u32 s25, s22, s26
    s_cmp_lt_u32 s25, 1000
    s_cbranch_scc1 {L}_w
    buffer_load_dword v3, v2, s[8:11], 0 offen sc1
    s_waitcnt vmcnt(0)
    v_readfirstlane_b32 s29, v3
    s_nop 3
    s_not_b32 s29, s29
    s_sub_u32 s24, s26, s29
    """)
    spin(a, L, amp)
    return (L, f"grid=(256,1,1) block=(64,1,1) lds=98304", a.text(), dict(vgpr=128, sgpr=64))

b = baseline()
emit([ifetch(16, 1)] + b, "../p1.s")
emit([ifetch(16, 2)] + b, "../p2.s")
emit([ifetch(4, 1, amp=100)] + b, "../p3.s")
emit([ifetch(4, 2, amp=100)] + b, "../p4.s")
emit([skew()] + b, "../p5.s")
emit([ifetch(16, 1, pf=True)] + b, "../p6.s")
```

```python
import sys, math
from common import *

WS = dict(E=0, QP=0x10000, QA=0x20000, QC=0x30000, FX=0x38000, ST=0x40000, CL=0x80000, CS=0x100000,
          SP=0x110000, YP=0x160000, TS=0x1C0000, PO=0x200000)
WS_USED = 0x600000
XN, XNP = 0, 1344
QS, QO, CLB, CX, ZERO, IMG = 3072, 7168, 3072, 7680, 8064, 8192
UKIMG = IMG + 40960
QAI = 131072
MX, LS, PX = QAI, QAI + 512, QAI + 1024
MAXPOLL = 1 << 15
LOG2E = 1.4426950408889634

sW = "s3"
SRD_WS, SRD_A, SRD_B, SRD_C = 4, 8, 12, 16
sE, sTag, sMsk, sCnt, sT0, sT1, sT2, sT3 = "s20", "s21", "s22", "s23", "s24", "s25", "s26", "s27"
sH, sJ, sOff, sK, sDone, sXcc, sGrp, sP = "s28", "s29", "s30", "s31", "s32", "s33", "s34", "s35"
sEx = "s[36:37]"
sRec = "s38"; sOff2 = "s39"
TSB = 40
sTm = "s[56:57]"
sJ2m = "s[58:59]"
PTR = dict(x=64, ckv=66, wq=68, wuk=70, wuv=72, wo=74, bx=76, wg=78, wu=80, wd=82, out=84, dbg=86, ws=88)

def srd(n): return f"s[{n}:{n+3}]"
def vr(a, n=1): return f"v{a}" if n == 1 else f"v[{a}:{a+n-1}]"

class G(Asm):
    def __init__(self, opt):
        super().__init__(); self.o = opt; self.nl = 0
    def label(self, base):
        self.nl += 1; return f"L{self.nl}_{base}"
    def mksrd(self, d, name, size=None):
        p = PTR[name]
        self(f"s_mov_b64 s[{d}:{d+1}], s[{p}:{p+1}]\ns_mov_b32 s{d+2}, {size or SZ[name]}\ns_mov_b32 s{d+3}, 0x20000")
    def ts(self, i):
        if self.o.get("ts"):
            self(f"s_memrealtime {sTm}\ns_waitcnt lgkmcnt(0)\ns_mov_b32 s{TSB+i}, s56")
    def nop(self, n):
        while n > 0:
            k = min(n, 16); self(f"s_nop {k-1}"); n -= k
    def tag(self, regs):
        for r in regs: self(f"v_bfi_b32 v{r}, {sMsk}, v{self.vTag}, v{r}")
    def chk(self, acc, regs):
        self(f"v_xor_b32 v{acc}, {sTag}, v{regs[0]}")
        for r in regs[1:]: self(f"v_bitop3_b32 v{acc}, v{acc}, v{r}, {sTag} bitop3:0xf6")
        self(f"v_and_b32 v{acc}, {sMsk}, v{acc}\nv_cmp_ne_u32 vcc, 0, v{acc}")
    def poll_begin(self, name):
        L = self.label(name); self(f"s_mov_b32 {sCnt}, 0\n{L}:"); return L
    def poll_end(self, L):
        D = self.label("ok")
        self(f"s_cbranch_vccz {D}\ns_add_u32 {sCnt}, {sCnt}, 1\ns_cmp_lt_u32 {sCnt}, {MAXPOLL}\ns_cbranch_scc1 {L}\n{D}:")
    def allred16(self, op, v, steps=(8, 4, 2, 1)):
        for s in steps:
            self(f"s_nop 1\n{op}_dpp v{v}, v{v}, v{v} row_ror:{s} row_mask:0xf bank_mask:0xf")
    def swapred(self, op, v, t, which):
        self(f"v_mov_b32 v{t}, v{v}\ns_nop 1\nv_permlane{which}_swap_b32 v{v}, v{t}\ns_nop 1\n{op} v{v}, v{v}, v{t}")
    def finish(self):
        if self.o.get("ts"):
            self.ts(15)
            self(f"s_mov_b64 exec, -1\nv_mov_b32 v1, 0")
            for i in range(16): self(f"v_writelane_b32 v1, s{TSB+i}, {i}")
            self(f"""
            s_lshl_b32 {sT0}, s2, 2
            s_add_u32 {sT0}, {sT0}, {sW}
            s_lshl_b32 {sT0}, {sT0}, 6
            s_add_u32 {sT0}, {sT0}, {WS['TS']}
            v_lshlrev_b32 v2, 2, v0
            s_mov_b64 exec, 0xffff
            buffer_store_dword v1, v2, {srd(SRD_WS)}, {sT0} offen
            """)
        self("s_endpgm")

def dma(g, voff, s, soff, flags=""):
    g(f"buffer_load_dwordx4 v{voff}, {srd(s)}, {soff} offen {flags} lds")

def dma_loop(g, n, voff, s, step_src, step_lds=4096, flags=""):
    L = g.label("dma")
    g(f"s_mov_b32 {sK}, {n}\n{L}:")
    dma(g, voff, s, sOff, flags)
    g(f"""
    s_add_u32 {sOff}, {sOff}, {step_src}
    s_add_u32 m0, m0, {step_lds}
    s_sub_u32 {sK}, {sK}, 1
    s_cmp_lg_u32 {sK}, 0
    s_cbranch_scc1 {L}
    """)

def epoch_regs(g):
    g(f"s_add_u32 {sE}, {sE}, 1\ns_movk_i32 {sMsk}, 0xfff\ns_and_b32 {sTag}, {sE}, {sMsk}\nv_mov_b32 v{g.vTag}, {sTag}")

def role_w(g):
    o = g.o
    vLR, vCB, vTB, vXB, vTag = 1, 2, 3, 4, 5
    g.vTag = vTag
    T = 6
    g(f"""
    s_lshr_b32 {sT0}, s2, 5
    s_lshl_b32 {sT0}, {sT0}, 3
    s_and_b32 {sH}, s2, 7
    s_add_u32 {sH}, {sH}, {sT0}
    s_bfe_u32 {sJ}, s2, 0x20003
    s_lshr_b32 {sT0}, {sW}, 1
    s_lshl_b32 {sT0}, {sT0}, 4
    s_and_b32 {sT1}, {sW}, 1
    s_lshl_b32 {sT1}, {sT1}, 2
    s_add_u32 {sT0}, {sT0}, {sT1}
    v_lshrrev_b32 v{T}, 3, v0
    v_and_b32 v{T+1}, 3, v{T}
    v_lshrrev_b32 v{T+2}, 5, v0
    v_lshl_add_u32 v{vLR}, v{T+2}, 3, v{T+1}
    v_add_u32 v{vLR}, {sT0}, v{vLR}
    v_and_b32 v{T}, 6, v{T}
    v_and_b32 v{T+1}, 7, v0
    v_xor_b32 v{T}, v{T}, v{T+1}
    v_lshlrev_b32 v{vCB}, 4, v{T}
    v_lshl_add_u32 v{T+3}, v{vLR}, 13, v{vCB}
    v_lshlrev_b32 v{T+4}, 2, v0
    s_lshr_b32 {sT0}, {sJ}, 1
    s_mul_i32 {sT0}, {sT0}, {320*8192}
    s_and_b32 {sT1}, {sJ}, 1
    s_lshl_b32 {sT1}, {sT1}, 7
    s_lshl_b32 {sT2}, {sH}, 8
    s_add_u32 {sOff}, {sT0}, {sT1}
    s_add_u32 {sOff}, {sOff}, {sT2}
    s_lshl_b32 {sT3}, {sW}, 10
    s_add_u32 m0, {sT3}, {IMG}
    s_mul_i32 {sT0}, {sW}, 1280
    s_waitcnt lgkmcnt(0)
    """)
    g.mksrd(SRD_C, "x"); g.mksrd(SRD_A, "wq")
    X = 112
    for i in range(5):
        g(f"buffer_load_dword v{X+i}, v{T+4}, {srd(SRD_C)}, {sT0} offen offset:{i*256}")
    dma_loop(g, 10, T+3, SRD_A, 32*8192, flags=o.get("wq_flags", ""))
    g.mksrd(SRD_WS, "ws", WS_USED); g.mksrd(SRD_B, "wuk")
    g(f"s_load_dword {sE}, s[88:89], 0 glc")
    g.ts(1)
    Lskip = g.label("noln")
    g(f"s_cmp_ge_u32 {sW}, 2\ns_cbranch_scc1 {Lskip}")
    V = 118
    g("s_waitcnt vmcnt(10)")
    for i in range(5):
        g(f"v_lshlrev_b32 v{V+2*i}, 16, v{X+i}\nv_and_b32 v{V+2*i+1}, 0xffff0000, v{X+i}")
    g(f"v_add_f32 v{T}, v{V}, v{V+1}")
    for i in range(2, 10): g(f"v_add_f32 v{T}, v{T}, v{V+i}")
    g.allred16("v_add_f32", T); g.swapred("v_add_f32", T, T+1, 16); g.swapred("v_add_f32", T, T+1, 32)
    g(f"v_mul_f32 v{T}, {1/640!r}, v{T}")
    for i in range(10): g(f"v_sub_f32 v{V+i}, v{V+i}, v{T}")
    g(f"v_mul_f32 v{T+2}, v{V}, v{V}")
    for i in range(1, 10): g(f"v_fmac_f32 v{T+2}, v{V+i}, v{V+i}")
    g.allred16("v_add_f32", T+2); g.swapred("v_add_f32", T+2, T+1, 16); g.swapred("v_add_f32", T+2, T+1, 32)
    g(f"""
    v_mul_f32 v{T+2}, {1/640!r}, v{T+2}
    v_cvt_pk_bf16_f32 v{T+1}, v{T}, v{T+2}
    v_and_b32 v{T+2}, 0xffff0000, v{T+1}
    v_lshlrev_b32 v{T+1}, 16, v{T+1}
    v_add_f32 v{T+2}, 1e-5, v{T+2}
    v_cvt_pk_bf16_f32 v{T+2}, v{T+2}, v{T+2}
    v_and_b32 v{T+2}, 0xffff0000, v{T+2}
    v_sqrt_f32 v{T+2}, v{T+2}
    v_sub_f32 v{T}, v{T}, v{T+1}
    v_cvt_pk_bf16_f32 v{T+2}, v{T+2}, v{T+2}
    v_and_b32 v{T+2}, 0xffff0000, v{T+2}
    v_rcp_f32 v{T+2}, v{T+2}
    s_mul_i32 {sT0}, {sW}, {XNP}
    v_add_u32 v{T+5}, {sT0}, v{T+4}
    v_mul_f32 v{T}, v{T}, v{T+2}
    """)
    for i in range(10): g(f"v_fma_f32 v{V+i}, v{V+i}, v{T+2}, v{T}")
    for i in range(5):
        g(f"v_cvt_pk_bf16_f32 v{X+i}, v{V+2*i}, v{V+2*i+1}\nds_write_b32 v{T+5}, v{X+i} offset:{XN+i*256}")
    g(f"{Lskip}:")
    U = 16
    g(f"""
    s_waitcnt lgkmcnt(0)
    v_lshrrev_b32 v{T}, 4, v0
    v_and_b32 v{T+1}, 15, v0
    v_xor_b32 v{T+2}, v{T}, v{T+1}
    v_lshlrev_b32 v{T+2}, 4, v{T+2}
    v_lshl_add_u32 v{U}, v{T}, 13, v{T+2}
    v_xor_b32 v{U+1}, 64, v{U}
    v_xor_b32 v{U+2}, 0x80, v{U}
    v_xor_b32 v{U+3}, 0xc0, v{U}
    s_lshl_b32 {sT0}, {sJ}, 2
    s_add_u32 {sT0}, {sT0}, {sW}
    s_lshl_b32 {sT0}, {sT0}, 18
    s_lshl_b32 {sT2}, {sH}, 8
    s_add_u32 {sOff}, {sT0}, {sT2}
    s_lshl_b32 {sT0}, {sW}, 13
    s_add_u32 m0, {sT0}, {UKIMG}
    """)
    for u in range(8):
        g(f"s_add_u32 {sOff2}, {sOff}, {(8*(u&3)+4*(u>>2))*8192}")
        dma(g, U+(u & 3), SRD_B, sOff2, o.get("wuk_flags", ""))
        if u < 7: g("s_add_u32 m0, m0, 1024")
    epoch_regs(g)
    vUA = 20
    g(f"""
    v_lshl_add_u32 v{vUA}, v{T+1}, 8, v{T+2}
    v_add_u32 v{vUA}, {sT0}, v{vUA}
    v_and_b32 v{T+3}, 1, v0
    v_mul_u32_u24 v{vXB}, {XNP}, v{T+3}
    v_lshl_add_u32 v{vXB}, v{T}, 4, v{vXB}
    v_bfe_u32 v{T+4}, v0, 2, 3
    v_lshrrev_b32 v{T+5}, 5, v0
    v_lshl_add_u32 v{T+5}, v{T+5}, 4, v{T+4}
    v_lshrrev_b32 v{T+4}, 1, v{T+4}
    v_xor_b32 v{T+4}, {sW}, v{T+4}
    v_lshlrev_b32 v{T+4}, 5, v{T+4}
    v_lshl_add_u32 v{vTB}, v{T+5}, 7, v{T+4}
    v_and_b32 v{T+4}, 3, v0
    v_lshl_add_u32 v{vTB}, v{T+4}, 3, v{vTB}
    v_cmp_gt_u32 {sJ2m}, 2, v{T+1}
    v_mov_b32 v{T+6}, 0
    v_lshlrev_b32 v{T+7}, 2, v0
    v_and_b32 v{T+7}, 0x7c, v{T+7}
    ds_write_b32 v{T+7}, v{T+6} offset:{ZERO}
    s_lshr_b32 {sT0}, {sJ}, 1
    s_mul_i32 {sT0}, {sT0}, 640
    v_add_u32 v{T+8}, {sT0}, v{vXB}
    """)
    g.ts(2)
    AF, BF, D = 32, 72, 24
    g("s_waitcnt vmcnt(8) lgkmcnt(0)\ns_barrier")
    g.ts(3)
    def rd(s):
        g(f"ds_read_b64_tr_b16 {vr(AF+4*s,2)}, v{vTB} offset:{IMG+s*4096}")
        g(f"ds_read_b64_tr_b16 {vr(AF+4*s+2,2)}, v{vTB} offset:{IMG+s*4096+1024}")
        g(f"ds_read_b128 {vr(BF+4*s,4)}, v{T+8} offset:{XN+s*64}")
    for s in range(5): rd(s)
    for s in range(10):
        rem = min(9, s+4) - s
        g(f"s_waitcnt lgkmcnt({3*rem})")
        g(f"v_mfma_f32_16x16x32_bf16 {vr(D,4)}, {vr(AF+4*s,4)}, {vr(BF+4*s,4)}, {vr(D,4) if s else 0}")
        if s+5 < 10: rd(s+5)
    g(f"""
    s_lshl_b32 {sOff}, {sH}, 11
    s_add_u32 {sOff}, {sOff}, {WS['QP']}
    s_lshl_b32 {sT0}, {sJ}, 9
    s_lshl_b32 {sT1}, {sW}, 7
    s_add_u32 {sT0}, {sT0}, {sT1}
    s_add_u32 {sOff2}, {sOff}, {sT0}
    v_lshlrev_b32 v{T+9}, 6, v{T+3}
    v_lshl_add_u32 v{T+9}, v{T}, 4, v{T+9}
    v_lshlrev_b32 v{T+4}, 4, v0
    """)
    g.tag(range(D, D+4))
    g(f"""
    s_mov_b64 exec, {sJ2m}
    buffer_store_dwordx4 {vr(D,4)}, v{T+9}, {srd(SRD_WS)}, {sOff2} offen sc1
    s_mov_b64 exec, -1
    v_bfe_u32 v{T+5}, v0, 2, 1
    v_mul_u32_u24 v{T+5}, 320, v{T+5}
    v_lshrrev_b32 v{T+6}, 3, v0
    v_lshl_add_u32 v{T+5}, v{T+6}, 5, v{T+5}
    v_and_b32 v{T+6}, 3, v0
    v_lshl_add_u32 v{T+5}, v{T+6}, 3, v{T+5}
    v_add_u32 v{T+5}, {sT3}, v{T+5}
    v_mul_u32_u24 v{T+6}, 320, v{T+3}
    v_lshl_add_u32 v{T+6}, v{T}, 4, v{T+6}
    v_add_u32 v{T+6}, {sT3}, v{T+6}
    v_xor_b32 v{vUA+1}, 64, v{vUA}
    v_xor_b32 v{vUA+2}, 0x80, v{vUA}
    v_xor_b32 v{vUA+3}, 0xc0, v{vUA}
    s_waitcnt vmcnt(1)
    """)
    g.ts(4)
    for tl in range(2):
        for s in range(4):
            g(f"ds_read_b128 {vr(AF+16*tl+4*s,4)}, v{vUA+s} offset:{UKIMG+tl*4096}")
    P0 = 72
    L = g.poll_begin("qp")
    g(f"""
    buffer_load_dwordx4 {vr(P0,4)}, v{T+4}, {srd(SRD_WS)}, {sOff} offen sc1
    buffer_load_dwordx4 {vr(P0+4,4)}, v{T+4}, {srd(SRD_WS)}, {sOff} offen offset:1024 sc1
    s_waitcnt vmcnt(0)
    """)
    g.chk(T+7, list(range(P0, P0+8))); g.poll_end(L)
    g.ts(5)
    for r in range(4): g(f"v_add_f32 v{P0+r}, v{P0+r}, v{P0+4+r}")
    g(f"""
    v_cvt_pk_bf16_f32 v{P0}, v{P0}, v{P0+1}
    v_cvt_pk_bf16_f32 v{P0+1}, v{P0+2}, v{P0+3}
    ds_write_b64 v{T+5}, {vr(P0,2)} offset:{QS}
    s_waitcnt lgkmcnt(0)
    """)
    QB = 80
    for s in range(4): g(f"ds_read_b128 {vr(QB+4*s,4)}, v{T+6} offset:{QS+s*64}")
    for s in range(4):
        g(f"s_waitcnt lgkmcnt({3-s})")
        for tl in range(2):
            g(f"v_mfma_f32_16x16x32_bf16 {vr(D+4*tl,4)}, {vr(AF+16*tl+4*s,4)}, {vr(QB+4*s,4)}, {vr(D+4*tl,4) if s else 0}")
    g(f"""
    v_lshlrev_b32 v{T+5}, 8, v{T+3}
    v_lshl_add_u32 v{T+5}, v{T}, 4, v{T+5}
    s_lshl_b32 {sT0}, {sW}, 6
    v_add_u32 v{T+5}, {sT0}, v{T+5}
    s_mov_b32 {sT1}, {128**-0.5*LOG2E!r}
    v_lshlrev_b32 v{T+6}, 4, v{T+1}
    v_lshl_add_u32 v{T+6}, v{T}, 15, v{T+6}
    s_lshl_b32 {sT0}, {sJ}, 5
    s_add_u32 {sT0}, {sT0}, {sH}
    s_lshl_b32 {sOff}, {sT0}, 8
    s_add_u32 {sOff}, {sOff}, {WS['QA']}
    s_lshl_b32 {sOff2}, {sT0}, 7
    s_add_u32 {sOff2}, {sOff2}, {WS['QC']}
    """)
    for r in range(8): g(f"v_mul_f32 v{D+r}, {sT1}, v{D+r}")
    for r in range(4): g(f"v_cvt_pk_bf16_f32 v{P0+r}, v{D+2*r}, v{D+2*r+1}")
    Lp = g.label("nopub")
    g(f"""
    s_mov_b64 exec, {sJ2m}
    ds_write_b128 v{T+5}, {vr(P0,4)} offset:{QO}
    s_mov_b64 exec, -1
    s_waitcnt lgkmcnt(0)
    s_barrier
    s_cmp_lg_u32 {sW}, 0
    s_cbranch_scc1 {Lp}
    s_mov_b32 exec_hi, 0
    ds_read_b128 {vr(P0,4)}, v{T+4} offset:{QO}
    v_lshlrev_b32 v{T+8}, 2, v{T}
    s_waitcnt lgkmcnt(0)
    buffer_store_dwordx4 {vr(P0,4)}, v{T+6}, {srd(SRD_WS)}, {sOff} offen sc1
    v_add3_u32 v{T+7}, v{P0}, v{P0+1}, v{P0+2}
    v_add_u32 v{T+7}, v{T+7}, v{P0+3}
    """)
    g.allred16("v_add_u32", T+7)
    g(f"""
    v_add_u32 v{T+7}, {sE}, v{T+7}
    s_mov_b64 exec, 0x10001
    buffer_store_dword v{T+7}, v{T+8}, {srd(SRD_WS)}, {sOff2} offen sc1
    s_mov_b64 exec, -1
    """)
    g.ts(6)
    g(f"s_waitcnt vmcnt(0)\n{Lp}:\ns_barrier")
    g.ts(7)
    Lf, Lend = g.label("F"), g.label("Wend")
    AM = 16
    g(f"""
    s_cmp_ge_u32 s2, 118
    s_cbranch_scc1 {Lend}
    s_cmp_ge_u32 s2, 64
    s_cbranch_scc1 {Lf}
    """)
    def gemm2_addrs():
        g(f"""
        v_mul_u32_u24 v{T+5}, 192, v{T+3}
        v_lshl_add_u32 v{T+5}, v{T}, 4, v{T+5}
        v_add_u32 v{T+5}, {CX}, v{T+5}
        v_mov_b32 v{T+6}, {ZERO}
        v_lshrrev_b32 v{T+7}, 1, v{T+1}
        """)
        for i in range(8):
            g(f"v_cmp_eq_u32 vcc, {i}, v{T+7}\ns_nop 1\nv_cndmask_b32 v{AM+i}, v{T+6}, v{T+5}, vcc")
        g(f"""
        v_lshrrev_b32 v{T+5}, 3, v0
        v_and_b32 v{T+6}, 7, v0
        v_lshlrev_b32 v{T+6}, 4, v{T+6}
        v_lshl_add_u32 v{T+9}, v{T+5}, 13, v{T+6}
        """)
    def gemm2(WF, nk, AR, region, slot_sub):
        for kk in range(nk):
            for i in range(8):
                g(f"ds_read_b128 {vr(AR+4*(8*kk+i),4)}, v{AM+i} offset:{kk*64}")
        g(f"""
        s_mul_i32 {sT0}, {sW}, {10*8192}
        s_sub_u32 {sT1}, s2, {slot_sub}
        s_lshl_b32 {sT1}, {sT1}, 7
        s_add_u32 {sOff}, {sT0}, {sT1}
        s_add_u32 {sOff}, {sOff}, {WS[region]}
        s_add_u32 {sOff2}, {sOff}, {8*8192}
        """)
        n = 8*nk; first0 = first1 = True
        for idx in range(n):
            kk, i = idx >> 3, idx & 7
            g(f"s_waitcnt lgkmcnt({min(15, n-1-idx)})")
            g(f"v_mfma_f32_16x16x32_bf16 {vr(D,4)}, {vr(AR+4*idx,4)}, {vr(WF+4*(nk*i+kk),4)}, {0 if first0 else vr(D,4)}"); first0 = False
            if i < 2:
                g(f"v_mfma_f32_16x16x32_bf16 {vr(D+4,4)}, {vr(AR+4*idx,4)}, {vr(WF+4*(nk*(8+i)+kk),4)}, {0 if first1 else vr(D+4,4)}"); first1 = False
        g.tag(range(D+4, D+8))
        g(f"""
        s_mov_b64 exec, 0xffff
        buffer_store_dwordx4 {vr(D+4,4)}, v{T+9}, {srd(SRD_WS)}, {sOff2} offen sc1
        s_mov_b64 exec, -1
        s_nop 0
        """)
        g.tag(range(D, D+4))
        g(f"buffer_store_dwordx4 {vr(D,4)}, v{T+9}, {srd(SRD_WS)}, {sOff} offen sc1")

    g(f"""
    s_and_b32 {sH}, s2, 31
    s_lshr_b32 {sJ}, s2, 5
    s_and_b32 {sT0}, {sW}, 1
    s_lshr_b32 {sT1}, {sW}, 1
    s_lshl_b32 {sT1}, {sT1}, 2
    s_add_u32 {sT0}, {sT0}, {sT1}
    v_lshrrev_b32 v{T+5}, 5, v0
    v_lshl_add_u32 v{T+5}, v{T+5}, 1, {sT0}
    v_bfe_u32 v{T+6}, v0, 3, 1
    v_lshl_add_u32 v{T+5}, v{T+6}, 5, v{T+5}
    v_bfe_u32 v{T+6}, v0, 4, 1
    v_lshl_add_u32 v{T+5}, v{T+6}, 4, v{T+5}
    v_lshl_add_u32 v{T+5}, v{T+5}, 13, v{vCB}
    s_lshl_b32 {sOff}, {sH}, 8
    s_lshl_b32 {sT0}, {sJ}, 7
    s_add_u32 {sOff}, {sOff}, {sT0}
    s_add_u32 m0, {sT3}, {IMG}
    """)
    g.mksrd(SRD_A, "wuv"); g.mksrd(SRD_B, "wo")
    L = g.label("uv")
    g(f"s_mov_b32 {sK}, 8\n{L}:")
    dma(g, T+5, SRD_A, sOff, o.get("late_flags", ""))
    g(f"s_add_u32 {sOff}, {sOff}, {8*8192}\ns_add_u32 m0, m0, 4096\ns_sub_u32 {sK}, {sK}, 1")
    dma(g, T+5, SRD_A, sOff, o.get("late_flags", ""))
    g(f"s_add_u32 {sOff}, {sOff}, {56*8192}\ns_add_u32 m0, m0, 4096\ns_cmp_lg_u32 {sK}, 0\ns_cbranch_scc1 {L}")
    g(f"""
    v_mul_u32_u24 v{T+6}, 1280, v{vLR}
    v_add_u32 v{T+6}, v{T+6}, v{vCB}
    s_lshl_b32 {sT0}, {sH}, 1
    s_add_u32 {sT0}, {sT0}, {sJ}
    s_mul_i32 {sOff}, {sT0}, {64*1280}
    """)
    L = g.label("wo")
    g(f"s_mov_b32 {sK}, 10\n{L}:")
    dma(g, T+6, SRD_B, sOff, o.get("late_flags", ""))
    g(f"s_add_u32 {sOff2}, {sOff}, {32*1280}\ns_add_u32 m0, m0, 4096\ns_sub_u32 {sK}, {sK}, 1")
    dma(g, T+6, SRD_B, sOff2, o.get("late_flags", ""))
    g(f"s_add_u32 {sOff}, {sOff}, 128\ns_add_u32 m0, m0, 4096\ns_cmp_lg_u32 {sK}, 0\ns_cbranch_scc1 {L}")
    g.ts(8)
    gemm2_addrs()
    UV, WO, BR = 32, 96, 176
    vTB1, vTB2, vTB3 = 240, 241, 242
    vCLo, vCSo, vCLw, vCLr, vCXw = 243, 244, 245, 246, 247
    g(f"""
    v_add_u32 v{vTB1}, {IMG}, v{vTB}
    v_add_u32 v{vTB2}, {IMG+65536}, v{vTB}
    v_add_u32 v{vTB3}, {IMG+131072}, v{vTB}
    s_lshl_b32 {sOff}, {sH}, 14
    s_lshr_b32 {sT0}, {sW}, 1
    s_lshl_b32 {sT1}, {sT0}, 13
    s_add_u32 {sOff}, {sOff}, {sT1}
    s_and_b32 {sT1}, {sW}, 1
    s_lshl_b32 {sT2}, {sT1}, 10
    s_add_u32 {sOff}, {sOff}, {sT2}
    s_add_u32 {sOff}, {sOff}, {WS['CL']}
    s_add_u32 {sRec}, {sOff}, 4096
    v_lshlrev_b32 v{vCLo}, 4, v0
    s_lshl_b32 {sOff2}, {sT0}, 12
    s_lshr_b32 {sT2}, {sH}, 2
    s_lshl_b32 {sT2}, {sT2}, 7
    s_add_u32 {sOff2}, {sOff2}, {sT2}
    s_and_b32 {sT2}, {sH}, 3
    s_lshl_b32 {sT2}, {sT2}, 4
    s_add_u32 {sOff2}, {sOff2}, {sT2}
    s_add_u32 {sOff2}, {sOff2}, {WS['CS']}
    v_and_b32 v{vCSo}, 3, v0
    v_lshlrev_b32 v{vCSo}, 10, v{vCSo}
    s_mul_i32 {sT0}, {sT0}, 1088
    s_lshl_b32 {sT1}, {sT1}, 9
    s_add_u32 {sT0}, {sT0}, {sT1}
    v_lshl_add_u32 v{vCLw}, v0, 3, {sT0}
    v_mul_u32_u24 v{vCLr}, 1088, v{T+3}
    v_lshl_add_u32 v{vCLr}, v{T}, 4, v{vCLr}
    v_mul_u32_u24 v{vCXw}, 192, v{T+3}
    v_lshl_add_u32 v{vCXw}, v{T}, 3, v{vCXw}
    s_lshl_b32 {sT0}, {sW}, 5
    v_add_u32 v{vCXw}, {sT0}, v{vCXw}
    s_waitcnt vmcnt(20)
    s_barrier
    """)
    for s in range(16):
        for t in range(2):
            g(f"ds_read_b64_tr_b16 {vr(UV+4*s+2*t,2)}, v{vTB1} offset:{s*4096+t*1024}")
    g("s_waitcnt vmcnt(0)\ns_barrier")
    g.ts(9)
    for idx in range(20):
        for t in range(2):
            off = idx*4096 + t*1024
            b = vTB2 if off < 65536 else vTB3
            g(f"ds_read_b64_tr_b16 {vr(WO+4*idx+2*t,2)}, v{b} offset:{off & 0xffff}")
    C0, S0 = BR, BR+16
    L = g.poll_begin("cl")
    g(f"""
    buffer_load_dwordx4 {vr(S0,4)}, v{vCSo}, {srd(SRD_WS)}, {sOff2} offen sc1
    buffer_load_dwordx4 {vr(C0,4)}, v{vCLo}, {srd(SRD_WS)}, {sOff} offen sc1
    buffer_load_dwordx4 {vr(C0+4,4)}, v{vCLo}, {srd(SRD_WS)}, {sOff} offen offset:2048 sc1
    buffer_load_dwordx4 {vr(C0+8,4)}, v{vCLo}, {srd(SRD_WS)}, {sRec} offen sc1
    buffer_load_dwordx4 {vr(C0+12,4)}, v{vCLo}, {srd(SRD_WS)}, {sRec} offen offset:2048 sc1
    s_waitcnt vmcnt(4)
    v_max_f32_dpp v{T+5}, v{S0}, v{S0} quad_perm:[1,0,3,2] row_mask:0xf bank_mask:0xf
    s_nop 1
    v_max_f32_dpp v{T+5}, v{T+5}, v{T+5} quad_perm:[2,3,0,1] row_mask:0xf bank_mask:0xf
    v_sub_f32 v{T+5}, v{S0}, v{T+5}
    v_exp_f32 v{T+5}, v{T+5}
    s_nop 1
    v_add_f32_dpp v{T+6}, v{T+5}, v{T+5} quad_perm:[1,0,3,2] row_mask:0xf bank_mask:0xf
    s_nop 1
    v_add_f32_dpp v{T+6}, v{T+6}, v{T+6} quad_perm:[2,3,0,1] row_mask:0xf bank_mask:0xf
    v_rcp_f32 v{T+6}, v{T+6}
    s_nop 0
    v_mul_f32 v{T+5}, v{T+5}, v{T+6}
    s_waitcnt vmcnt(0)
    """)
    g.chk(T+7, [S0+1, S0+2, S0+3] + list(range(C0, C0+16))); g.poll_end(L)
    g.ts(10)
    for r in range(4):
        g(f"v_mul_f32_dpp v{S0+r}, v{T+5}, v{C0+r} quad_perm:[0,0,0,0] row_mask:0xf bank_mask:0xf")
    for i in range(1, 4):
        for r in range(4):
            g(f"v_fmac_f32_dpp v{S0+r}, v{T+5}, v{C0+4*i+r} quad_perm:[{i},{i},{i},{i}] row_mask:0xf bank_mask:0xf")
    g(f"""
    v_cvt_pk_bf16_f32 v{S0}, v{S0}, v{S0+1}
    v_cvt_pk_bf16_f32 v{S0+1}, v{S0+2}, v{S0+3}
    ds_write_b64 v{vCLw}, {vr(S0,2)} offset:{CLB}
    s_waitcnt lgkmcnt(0)
    s_barrier
    """)
    for s in range(16): g(f"ds_read_b128 {vr(BR+4*s,4)}, v{vCLr} offset:{CLB+s*64}")
    for s in range(16):
        g(f"s_waitcnt lgkmcnt({15-s})")
        g(f"v_mfma_f32_16x16x32_bf16 {vr(D,4)}, {vr(UV+4*s,4)}, {vr(BR+4*s,4)}, {vr(D,4) if s else 0}")
    g.nop(8)
    g(f"""
    v_cvt_pk_bf16_f32 v{D}, v{D}, v{D+1}
    v_cvt_pk_bf16_f32 v{D+1}, v{D+2}, v{D+3}
    s_mov_b64 exec, {sJ2m}
    ds_write_b64 v{vCXw}, {vr(D,2)} offset:{CX}
    s_mov_b64 exec, -1
    s_waitcnt lgkmcnt(0)
    s_barrier
    """)
    g.ts(11)
    gemm2(WO, 2, BR, "SP", 0)
    g.ts(12)
    g(f"s_branch {Lend}")

    g(f"""
    {Lf}:
    s_sub_u32 {sH}, s2, 64
    s_and_b32 {sJ}, {sH}, 1
    v_mul_u32_u24 v{T+6}, 1280, v{vLR}
    v_add_u32 v{T+6}, v{T+6}, v{vCB}
    s_mul_i32 {sOff}, {sH}, {32*1280}
    s_add_u32 m0, {sT3}, {IMG}
    """)
    g.mksrd(SRD_B, "wd")
    dma_loop(g, 10, T+6, SRD_B, 128, flags=o.get("late_flags", ""))
    g(f"""
    s_cmp_eq_u32 {sJ}, 0
    s_cselect_b64 s[{SRD_A}:{SRD_A+1}], s[{PTR['wg']}:{PTR['wg']+1}], s[{PTR['wu']}:{PTR['wu']+1}]
    s_mov_b32 s{SRD_A+2}, {SZ['wg']}
    s_mov_b32 s{SRD_A+3}, 0x20000
    v_mul_u32_u24 v{T+5}, 3456, v{vLR}
    v_add_u32 v{T+5}, v{T+5}, v{vCB}
    s_lshr_b32 {sOff}, {sH}, 1
    s_lshl_b32 {sOff}, {sOff}, 7
    """)
    dma_loop(g, 20, T+5, SRD_A, 32*3456, flags=o.get("late_flags", ""))
    g.ts(8)
    gemm2_addrs()
    WD, XF, GF = 32, 72, 152
    g(f"""
    v_add_u32 v{vTB1}, {IMG}, v{vTB}
    v_add_u32 v{vTB2}, {IMG+40960}, v{vTB}
    v_add_u32 v{vTB3}, {IMG+40960+65536}, v{vTB}
    v_lshlrev_b32 v{vCLo}, 6, v{T+3}
    v_lshl_add_u32 v{vCLo}, v{T}, 4, v{vCLo}
    s_lshl_b32 {sOff}, {sH}, 8
    s_and_b32 {sT1}, {sW}, 1
    s_lshl_b32 {sT0}, {sT1}, 7
    s_add_u32 {sOff}, {sOff}, {sT0}
    s_add_u32 {sOff}, {sOff}, {WS['FX']}
    s_xor_b32 {sOff2}, {sOff}, 256
    v_mul_u32_u24 v{vCXw}, 192, v{T+3}
    v_lshl_add_u32 v{vCXw}, v{T}, 3, v{vCXw}
    s_lshl_b32 {sT0}, {sT1}, 5
    v_add_u32 v{vCXw}, {sT0}, v{vCXw}
    """)
    for s in range(20): g(f"ds_read_b128 {vr(XF+4*s,4)}, v{vXB} offset:{XN+s*64}")
    g("s_waitcnt vmcnt(20)\ns_barrier")
    for blk in range(10):
        for t in range(2):
            g(f"ds_read_b64_tr_b16 {vr(WD+4*blk+2*t,2)}, v{vTB1} offset:{blk*4096+t*1024}")
    g("s_waitcnt vmcnt(0)\ns_barrier")
    g.ts(9)
    def rdg(s):
        for t in range(2):
            off = s*4096 + t*1024
            b = vTB2 if off < 65536 else vTB3
            g(f"ds_read_b64_tr_b16 {vr(GF+4*s+2*t,2)}, v{b} offset:{off & 0xffff}")
    for s in range(7): rdg(s)
    for s in range(20):
        rem = min(19, s+6) - s
        g(f"s_waitcnt lgkmcnt({2*rem})")
        g(f"v_mfma_f32_16x16x32_bf16 {vr(D,4)}, {vr(GF+4*s,4)}, {vr(XF+4*s,4)}, {vr(D,4) if s else 0}")
        if s+7 < 20: rdg(s+7)
    Lk, Lj = g.label("keep"), g.label("fjoin")
    g(f"""
    s_lshr_b32 {sT0}, {sW}, 1
    s_cmp_eq_u32 {sT0}, {sJ}
    s_cbranch_scc1 {Lk}
    s_nop 4
    """)
    g.tag(range(D, D+4))
    g(f"""
    s_mov_b64 exec, {sJ2m}
    buffer_store_dwordx4 {vr(D,4)}, v{vCLo}, {srd(SRD_WS)}, {sOff} offen sc1
    s_mov_b64 exec, -1
    s_branch {Lj}
    {Lk}:
    """)
    L = g.poll_begin("fx")
    g(f"buffer_load_dwordx4 {vr(D+4,4)}, v{vCLo}, {srd(SRD_WS)}, {sOff2} offen sc1\ns_waitcnt vmcnt(0)")
    g.chk(T+7, list(range(D+4, D+8))); g.poll_end(L)
    g.ts(10)
    g(f"s_cmp_eq_u32 {sJ}, 0\ns_cselect_b64 vcc, -1, 0\ns_nop 1")
    c1 = -2*0.7978845608028654*LOG2E
    for r in range(4):
        g(f"v_cndmask_b32 v{XF+r}, v{D+4+r}, v{D+r}, vcc\nv_cndmask_b32 v{XF+4+r}, v{D+r}, v{D+4+r}, vcc")
    g(f"s_mov_b32 {sT0}, {c1*0.044715!r}\nv_mov_b32 v{T+5}, {c1!r}")
    for r in range(4): g(f"v_mul_f32 v{XF+8+r}, v{XF+r}, v{XF+r}")
    for r in range(4): g(f"v_fma_f32 v{XF+8+r}, v{XF+8+r}, {sT0}, v{T+5}")
    for r in range(4): g(f"v_mul_f32 v{XF+8+r}, v{XF+8+r}, v{XF+r}")
    for r in range(4): g(f"v_exp_f32 v{XF+8+r}, v{XF+8+r}")
    for r in range(4): g(f"v_add_f32 v{XF+8+r}, 1.0, v{XF+8+r}")
    for r in range(4): g(f"v_rcp_f32 v{XF+8+r}, v{XF+8+r}")
    for r in range(4): g(f"v_mul_f32 v{XF+r}, v{XF+r}, v{XF+8+r}")
    for r in range(4): g(f"v_mul_f32 v{XF+r}, v{XF+r}, v{XF+4+r}")
    g(f"""
    v_cvt_pk_bf16_f32 v{XF}, v{XF}, v{XF+1}
    v_cvt_pk_bf16_f32 v{XF+1}, v{XF+2}, v{XF+3}
    s_mov_b64 exec, {sJ2m}
    ds_write_b64 v{vCXw}, {vr(XF,2)} offset:{CX}
    s_mov_b64 exec, -1
    {Lj}:
    s_waitcnt lgkmcnt(0)
    s_barrier
    """)
    g.ts(11)
    gemm2(WD, 1, GF, "YP", 64)
    g.ts(12)
    g(f"{Lend}:")
    g.finish()

def role_a(g):
    o = g.o
    T = 6
    vTag = 5; g.vTag = vTag
    vDo, vQo, vL16 = 1, 2, 3
    g(f"""
    s_and_b32 {sGrp}, s2, 7
    s_bfe_u32 {sP}, s2, 0x40003
    v_lshrrev_b32 v{T}, 4, v0
    v_and_b32 v{T+1}, 15, v0
    v_lshl_or_b32 v{T+2}, v{T}, 2, {sW}
    v_xor_b32 v{T+2}, v{T+2}, v{T+1}
    v_lshlrev_b32 v{T+2}, 4, v{T+2}
    s_lshl_b32 {sT0}, {sW}, 2
    v_add_u32 v{T+3}, {sT0}, v{T}
    v_lshl_add_u32 v{vDo}, v{T+3}, 10, v{T+2}
    v_lshl_add_u32 v{vQo}, v{T+3}, 8, v{T+2}
    s_lshl_b32 {sT0}, {sGrp}, 4
    s_add_u32 {sT0}, {sT0}, {sP}
    s_lshl_b32 {sOff}, {sT0}, 17
    s_lshl_b32 {sT3}, {sW}, 10
    s_mov_b32 m0, {sT3}
    s_waitcnt lgkmcnt(0)
    """)
    g.mksrd(SRD_A, "ckv"); g.mksrd(SRD_WS, "ws", WS_USED)
    if o.get("codepf", 1):
        g(f"""
        s_getpc_b64 s[60:61]
        L_pc:
        s_sub_u32 s60, s60, L_pc-{NAME}_kernel
        s_subb_u32 s61, s61, 0
        s_lshl_b32 {sT0}, {sP}, 2
        s_add_u32 {sT0}, {sT0}, {sW}
        s_lshl_b32 {sT0}, {sT0}, 8
        v_lshl_add_u32 v{T+4}, v0, 7, {sT0}
        v_min_u32 v{T+4}, L_codeend-{NAME}_kernel-4, v{T+4}
        s_mov_b64 exec, 3
        global_load_dword v230, v{T+4}, s[60:61]
        s_mov_b64 exec, -1
        """)
    thr, nr = o.get("thr", 2), o.get("nr", 2)
    fl = o.get("ckv_flags", "nt")
    for i in range(32):
        dma(g, vDo, SRD_A, sOff, fl)
        if i == 0: g(f"s_load_dword {sE}, s[88:89], 0 glc\ns_getreg_b32 {sXcc}, hwreg(HW_REG_XCC_ID, 0, 4)\ns_movk_i32 {sK}, 0x4000\ns_movk_i32 {sT2}, 0x1000")
        if i < 31:
            if (i & 7) == 7: g(f"s_sub_u32 {sOff}, {sOff}, {7*16384-256}")
            else: g(f"s_add_u32 {sOff}, {sOff}, {sK}")
            g(f"s_add_u32 m0, m0, {sT2}")
            if thr and (i+1) % thr == 0 and (i+1)//thr <= nr: g("s_waitcnt vmcnt(0)")
            else: g("s_nop 0")
    g("s_waitcnt lgkmcnt(0)")
    g.ts(1)
    epoch_regs(g)
    vCk = 4
    CK = 16
    g(f"""
    v_lshrrev_b32 v{T+4}, 2, v0
    v_lshlrev_b32 v{T+4}, 4, v{T+4}
    v_and_b32 v{T+5}, 3, v0
    s_lshl_b32 {sT0}, {sW}, 2
    v_add3_u32 v{T+4}, v{T+4}, v{T+5}, {sT0}
    v_lshlrev_b32 v{vCk}, 7, v{T+4}
    s_lshr_b32 {sT0}, {sGrp}, 2
    s_lshl_b32 {sOff2}, {sT0}, 2
    s_add_u32 {sOff2}, {sOff2}, {WS['QC']}
    s_lshl_b32 {sRec}, {sT0}, 15
    s_add_u32 {sRec}, {sRec}, {WS['QA']}
    v_lshlrev_b32 v{vL16}, 4, v0
    v_add_u32 v{T+8}, {sT3}, v{vL16}
    v_add_u32 v{T+8}, {QAI}, v{T+8}
    v_mov_b32 v{CK}, 0
    s_mov_b32 {sDone}, 0
    """)
    Lq = g.poll_begin("qa")
    g(f"s_mov_b32 {sOff}, {sRec}\ns_add_u32 m0, {sT3}, {QAI}")
    dma_loop(g, 8, vQo, SRD_WS, 4096, flags="sc1")
    Lnp, Lw = g.label("nopf"), g.label("qw")
    g(f"""
    s_mov_b32 exec_hi, 0
    buffer_load_dword v{CK}, v{vCk}, {srd(SRD_WS)}, {sOff2} offen sc1
    s_mov_b64 exec, -1
    s_cmp_lg_u32 {sCnt}, 0
    s_cbranch_scc1 {Lnp}
    s_lshl_b32 {sT0}, {sGrp}, 4
    s_add_u32 {sT0}, {sT0}, {sP}
    s_lshl_b32 {sT0}, {sT0}, 2
    s_add_u32 {sT0}, {sT0}, {sW}
    s_lshl_b32 {sH}, {sT0}, 13
    s_add_u32 {sH}, {sH}, {WS['PO']}
    s_lshl_b32 {sJ}, {sT0}, 9
    s_add_u32 {sJ}, {sJ}, {WS['ST']}
    v_lshlrev_b32 v{T+4}, 7, v0
    buffer_load_dword v228, v{T+4}, {srd(SRD_WS)}, {sH} offen sc1
    s_mov_b64 exec, 15
    buffer_load_dword v229, v{T+4}, {srd(SRD_WS)}, {sJ} offen sc1
    s_mov_b64 exec, -1
    """)
    KA_, KB_, VB = 18, 26, 34
    g(f"""
    v_and_b32 v{T+7}, 3, v0
    v_bfe_u32 v{T+9}, v0, 2, 2
    v_lshl_or_b32 v{KB_}, v{T+7}, 2, v{T+9}
    v_lshrrev_b32 v{KB_+1}, 5, v0
    v_xor_b32 v{KB_}, v{KB_}, v{KB_+1}
    v_lshlrev_b32 v{KB_}, 4, v{KB_}
    v_and_b32 v{KB_+2}, 31, v0
    v_lshl_add_u32 v{KB_}, v{KB_+2}, 8, v{KB_}
    s_lshl_b32 {sT0}, {sW}, 13
    v_add_u32 v{KA_}, {sT0}, v{KB_}
    v_add_u32 v{KB_}, {QAI}, v{KB_}
    v_bfe_u32 v{VB}, v0, 4, 1
    v_lshrrev_b32 v{VB+1}, 1, v{T+7}
    v_lshl_or_b32 v{VB}, v{VB}, 1, v{VB+1}
    v_xor_b32 v{VB}, v{VB}, v{KB_+1}
    v_lshl_or_b32 v{VB}, v{T+9}, 2, v{VB}
    v_lshlrev_b32 v{VB}, 4, v{VB}
    v_and_b32 v{VB+1}, 1, v0
    v_lshl_add_u32 v{VB}, v{VB+1}, 3, v{VB}
    v_lshl_add_u32 v{VB+1}, v{KB_+1}, 2, v{T+9}
    v_lshl_add_u32 v{VB}, v{VB+1}, 8, v{VB}
    s_lshl_b32 {sT0}, {sW}, 15
    v_add_u32 v{VB}, {sT0}, v{VB}
    """)
    for s in range(1, 8):
        g(f"v_xor_b32 v{KA_+s}, {s<<5}, v{KA_}\nv_xor_b32 v{KB_+s}, {s<<5}, v{KB_}\nv_xor_b32 v{VB+s}, {s<<5}, v{VB}")
    g(f"""
    s_waitcnt vmcnt(2)
    s_branch {Lw}
    {Lnp}:
    s_waitcnt vmcnt(0)
    {Lw}:
    """)
    FB = 44
    for i in range(8): g(f"ds_read_b128 {vr(FB+4*i,4)}, v{T+8} offset:{i*4096}")
    g(f"v_sub_u32 v{T+4}, 0, v{CK}")
    for i in range(8):
        g(f"s_waitcnt lgkmcnt({7-i})")
        g(f"v_add3_u32 v{T+4}, v{T+4}, v{FB+4*i}, v{FB+4*i+1}\nv_add3_u32 v{T+4}, v{T+4}, v{FB+4*i+2}, v{FB+4*i+3}")
    g.allred16("v_add_u32", T+4); g.swapred("v_add_u32", T+4, T+7, 16); g.swapred("v_add_u32", T+4, T+7, 32)
    g(f"s_lshl_b32 {sT0}, {sE}, 5\nv_add_u32 v{T+4}, {sT0}, v{T+4}\nv_cmp_ne_u32 vcc, 0, v{T+4}")
    g.poll_end(Lq)
    g.ts(2)
    if o.get("ts"): g(f"s_mov_b32 s{TSB+13}, {sCnt}")
    g("s_barrier")
    g.ts(3)
    S = 76
    PD = 4
    def rdqk(s):
        b = FB + 8*(s % PD); ch = s >> 3
        g(f"ds_read_b128 {vr(b,4)}, v{KA_+(s&7)} offset:{(ch&1)*32768}")
        g(f"ds_read_b128 {vr(b+4,4)}, v{KB_+(s&7)} offset:{ch*8192}")
        if ch == 1: g(f"v_add_u32 v{KA_+(s&7)}, 0x10000, v{KA_+(s&7)}")
    for s in range(PD-1): rdqk(s)
    for s in range(32):
        if s+PD-1 < 32: rdqk(s+PD-1)
        rem = min(31, s+PD-1) - s
        g(f"s_waitcnt lgkmcnt({2*rem})")
        b = FB + 8*(s % PD)
        g(f"v_mfma_f32_32x32x16_bf16 {vr(S,16)}, {vr(b,4)}, {vr(b+4,4)}, {vr(S,16) if s else 0}")
        if s == 16: g("s_barrier")
    vX = T+8
    g(f"""
    v_and_b32 v{vX}, 31, v0
    v_lshlrev_b32 v{vX}, 2, v{vX}
    v_add_u32 v{vX}, {QAI}, v{vX}
    s_lshl_b32 {sT0}, {sW}, 7
    v_add_u32 v{T+9}, {sT0}, v{vX}
    v_add_u32 v{KA_}, {QAI}, v{vL16}
    s_lshl_b32 {sT0}, {sW}, 11
    v_add_u32 v{KA_+1}, {sT0}, v{KA_}
    """)
    VF = FB
    def rdpv(n):
        e2, ks, e = n >> 4, (n >> 1) & 7, n & 1
        tt = 2*e2 + e; b = VF + 4*(n % 8)
        for t in range(2):
            g(f"ds_read_b64_tr_b16 {vr(b+2*t,2)}, v{VB+2*tt+t} offset:{ks*4096+t*2048}")
    g.nop(4)
    g.ts(4)
    vM, vLs = T+4, T+5
    g(f"v_max3_f32 v{vM}, v{S}, v{S+1}, v{S+2}")
    for r in range(3, 15, 2): g(f"v_max3_f32 v{vM}, v{vM}, v{S+r}, v{S+r+1}")
    g(f"v_max_f32 v{vM}, v{vM}, v{S+15}")
    g.swapred("v_max_f32", vM, T+7, 32)
    g(f"""
    ds_write_b32 v{T+9}, v{vM}
    s_waitcnt lgkmcnt(0)
    s_barrier
    ds_read2_b32 {vr(KB_,2)}, v{vX} offset0:0 offset1:32
    ds_read2_b32 {vr(KB_+2,2)}, v{vX} offset0:64 offset1:96
    """)
    for n in range(6): rdpv(n)
    g(f"""
    s_waitcnt lgkmcnt(12)
    v_max3_f32 v{vM}, v{KB_}, v{KB_+1}, v{KB_+2}
    v_max_f32 v{vM}, v{vM}, v{KB_+3}
    """)
    PF = 92
    for r in range(16): g(f"v_sub_f32 v{S+r}, v{S+r}, v{vM}")
    for r in range(16): g(f"v_exp_f32 v{S+r}, v{S+r}")
    OWN = 124
    for r in range(8): g(f"v_cvt_pk_bf16_f32 v{OWN+r}, v{S+2*r}, v{S+2*r+1}")
    g(f"ds_write_b128 v{KA_+1}, {vr(OWN,4)} offset:{PX-QAI}\nds_write_b128 v{KA_+1}, {vr(OWN+4,4)} offset:{PX-QAI+1024}")
    g(f"v_add_f32 v{vLs}, v{S}, v{S+1}")
    for r in range(2, 16): g(f"v_add_f32 v{vLs}, v{vLs}, v{S+r}")
    g.swapred("v_add_f32", vLs, T+7, 32)
    g(f"""
    ds_write_b32 v{T+9}, v{vLs} offset:{LS-QAI}
    s_waitcnt lgkmcnt(0)
    s_barrier
    """)
    g.ts(5)
    for ks in range(8): g(f"ds_read_b128 {vr(PF+4*ks,4)}, v{KA_} offset:{PX-QAI+ks*1024}")
    g(f"""
    ds_read2_b32 {vr(KB_,2)}, v{vX} offset0:128 offset1:160
    ds_read2_b32 {vr(KB_+2,2)}, v{vX} offset0:192 offset1:224
    """)
    O = 132
    PK = 196
    def pack_store(e2, gq):
        b = PK + 16*e2 + 4*gq
        for d in range(4):
            g(f"v_cvt_pk_bf16_f32 v{b+d}, v{O+32*e2+4*gq+d}, v{O+32*e2+16+4*gq+d}")
        off = e2*4096 + gq*1024
        g(f"buffer_store_dwordx4 {vr(b,4)}, v{vL16 if off < 4096 else KB_+4}, {srd(SRD_WS)}, {sH} offen offset:{off & 4095}")
    g(f"v_add_u32 v{KB_+4}, 4096, v{vL16}")
    issued = 6
    for n in range(32):
        e2, ks, e = n >> 4, (n >> 1) & 7, n & 1
        tt = 2*e2 + e
        if issued < 32: rdpv(issued); issued += 1
        nV = 2*(issued-6)
        needP = (7-ks) + 2 + nV if e2 == 0 else 99
        needV = 2*(issued-1-n) if n >= 6 else 99
        w = min(needP, needV)
        g(f"s_waitcnt lgkmcnt({min(w, 13)})")
        acc = vr(O+16*tt, 16)
        g(f"v_mfma_f32_32x32x16_bf16 {acc}, {vr(PF+4*ks,4)}, {vr(VF+4*(n%8),4)}, {acc if ks else 0}")
        if n >= 20 and n % 2 == 0 and n <= 26: pack_store(0, (n-20)//2)
    STG = KB_+4
    FG = 76
    g(f"""
    v_mov_b32 v{FG}, v{vM}
    v_add_f32 v{FG+1}, v{KB_}, v{KB_+1}
    v_add_f32 v{FG+2}, v{KB_+2}, v{KB_+3}
    v_add_f32 v{FG+1}, v{FG+1}, v{FG+2}
    v_mov_b32 v{FG+2}, {sE}
    v_mov_b32 v{FG+3}, {sXcc}
    s_lshl_b32 {sRec}, {sP}, 2
    s_add_u32 {sRec}, {sRec}, {sW}
    s_lshl_b32 {sOff}, {sGrp}, 15
    s_lshr_b32 {sT0}, {sRec}, 4
    s_lshl_b32 {sT0}, {sT0}, 9
    s_add_u32 {sOff}, {sOff}, {sT0}
    """)
    for gq in range(4): pack_store(1, gq)
    g.ts(6)
    vFo, vDl, vBp, MK = 80, 81, 82, 84
    g(f"""
    s_and_b32 {sT0}, {sRec}, 7
    s_lshl_b32 {sT0}, {sT0}, 6
    s_add_u32 {sOff}, {sOff}, {sT0}
    s_add_u32 {sOff}, {sOff}, {WS['ST']}
    v_lshrrev_b32 v{vFo}, 2, v0
    v_lshlrev_b32 v{vFo}, 11, v{vFo}
    v_and_b32 v{T+7}, 3, v0
    v_lshl_add_u32 v{vFo}, v{T+7}, 4, v{vFo}
    v_lshrrev_b32 v{T+8}, 5, v0
    v_and_b32 v{vDl}, 31, v0
    v_lshlrev_b32 v{vDl}, 4, v{vDl}
    v_lshl_add_u32 v{vDl}, v{T+8}, 15, v{vDl}
    s_lshl_b32 {sOff2}, {sGrp}, 19
    s_lshl_b32 {sT0}, {sRec}, 9
    s_add_u32 {sOff2}, {sOff2}, {sT0}
    s_add_u32 {sOff2}, {sOff2}, {WS['PO']}
    v_bfe_u32 v{T+9}, v0, 2, 2
    v_lshl_add_u32 v{vBp}, v{T+8}, 2, v{T+9}
    v_lshlrev_b32 v{vBp}, 2, v{vBp}
    v_and_b32 v{T+7}, 1, v0
    v_lshlrev_b32 v{T+7}, 4, v{T+7}
    v_mov_b32 v{T+8}, 0xffff
    v_lshlrev_b32 v{T+7}, v{T+7}, v{T+8}
    v_lshrrev_b32 v{T+8}, 3, v0
    v_xor_b32 v{T+8}, v{T+8}, v0
    v_and_b32 v{T+8}, 2, v{T+8}
    v_cmp_eq_u32 vcc, 0, v{T+8}
    s_nop 1
    v_cndmask_b32 v{T+7}, 0, v{T+7}, vcc
    """)
    for d in range(4):
        g(f"v_cmp_eq_u32 vcc, {d}, v{T+9}\ns_nop 1\nv_cndmask_b32 v{MK+d}, 0, v{T+7}, vcc")
    g(f"""
    s_waitcnt vmcnt(0)
    s_mov_b32 exec_hi, 0
    buffer_store_dwordx4 {vr(FG,4)}, v{vL16}, {srd(SRD_WS)}, {sJ} offen
    s_mov_b64 exec, -1
    """)
    g.ts(7)
    def restore():
        for e2 in range(2):
            for gq in range(4):
                off = e2*4096 + gq*1024
                g(f"buffer_store_dwordx4 {vr(PK+16*e2+4*gq,4)}, v{vL16 if off < 4096 else KB_+4}, {srd(SRD_WS)}, {sH} offen offset:{off & 4095} sc1")
        g(f"""
        s_waitcnt vmcnt(0)
        v_mov_b32 v{FG+3}, 0xff
        s_mov_b32 exec_hi, 0
        buffer_store_dwordx4 {vr(FG,4)}, v{vL16}, {srd(SRD_WS)}, {sJ} offen sc1
        s_mov_b64 exec, -1
        s_mov_b32 {sDone}, 1
        """)
    FR = 88
    L = g.poll_begin("st"); Lok, Lnr = g.label("stok"), g.label("norest")
    g(f"""
    buffer_load_dwordx4 {vr(FR,4)}, v{vFo}, {srd(SRD_WS)}, {sOff} offen sc1
    s_waitcnt vmcnt(0)
    v_cmp_ne_u32 vcc, {sXcc}, v{FR+3}
    v_mov_b32 v{T+7}, 0xff
    v_cmp_ne_u32 {sEx}, v{T+7}, v{FR+3}
    s_and_b64 {sEx}, {sEx}, vcc
    v_cmp_ne_u32 vcc, {sE}, v{FR+2}
    s_or_b64 vcc, vcc, {sEx}
    s_cbranch_vccz {Lok}
    s_add_u32 {sCnt}, {sCnt}, 1
    s_cmp_lg_u32 {sCnt}, {o.get('nfall', 24)}
    s_cbranch_scc1 {Lnr}
    """)
    restore()
    g(f"""
    {Lnr}:
    s_cmp_lt_u32 {sCnt}, {MAXPOLL}
    s_cbranch_scc1 {L}
    {Lok}:
    """)
    DT = 92
    for u in range(8):
        g(f"buffer_load_dwordx4 {vr(DT+4*u,4)}, v{vDl}, {srd(SRD_WS)}, {sOff2} offen sc1")
        if u < 7: g(f"s_add_u32 {sOff2}, {sOff2}, 0x10000")
    g.ts(8)
    if o.get("ts"): g(f"s_mov_b32 s{TSB+14}, {sCnt}")
    vW = T+6
    g(f"v_mov_b32 v{vM}, v{FR}")
    g.allred16("v_max_f32", vM, (4, 8)); g.swapred("v_max_f32", vM, T+7, 16); g.swapred("v_max_f32", vM, T+7, 32)
    g(f"""
    v_sub_f32 v{vW}, v{FR}, v{vM}
    v_exp_f32 v{vW}, v{vW}
    s_nop 0
    v_cvt_pk_bf16_f32 v{vW}, v{vW}, v{vW}
    v_and_b32 v{vLs}, 0xffff0000, v{vW}
    v_mul_f32 v{vLs}, v{vLs}, v{FR+1}
    """)
    WV = 124
    for u in range(8): g(f"ds_bpermute_b32 v{WV+u}, v{vBp}, v{vW} offset:{32*u}")
    g.allred16("v_add_f32", vLs, (4, 8)); g.swapred("v_add_f32", vLs, T+7, 16); g.swapred("v_add_f32", vLs, T+7, 32)
    AFr = 132
    g(f"""
    v_rcp_f32 v{T+8}, v{vLs}
    v_log_f32 v{T+9}, v{vLs}
    v_lshrrev_b32 v{T+7}, 4, v0
    v_lshlrev_b32 v{T+3}, 2, v{T+7}
    ds_bpermute_b32 v{T+8}, v{T+3}, v{T+8}
    v_add_f32 v{FR}, v{vM}, v{T+9}
    v_mov_b32 v{FR+1}, {sE}
    v_mov_b32 v{FR+2}, {sE}
    v_mov_b32 v{FR+3}, {sE}
    v_and_b32 v{T+2}, 15, v0
    v_lshlrev_b32 v{T+2}, 4, v{T+2}
    v_lshl_add_u32 v{T+2}, v{T+7}, 14, v{T+2}
    s_and_b32 {sT0}, {sRec}, 7
    s_lshl_b32 {sOff}, {sT0}, 16
    s_lshl_b32 {sT1}, {sGrp}, 11
    s_add_u32 {sOff}, {sOff}, {sT1}
    s_lshr_b32 {sT1}, {sRec}, 3
    s_lshl_b32 {sT1}, {sT1}, 8
    s_add_u32 {sOff}, {sOff}, {sT1}
    s_add_u32 {sOff}, {sOff}, {WS['CL']}
    s_lshl_b32 {sT0}, {sT0}, 7
    s_lshl_b32 {sT1}, {sGrp}, 10
    s_add_u32 {sT0}, {sT0}, {sT1}
    s_add_u32 {sT0}, {sT0}, {WS['CS']}
    s_waitcnt lgkmcnt(0)
    """)
    for u in range(8):
        for d in range(4): g(f"v_and_b32 v{AFr+4*u+d}, v{MK+d}, v{WV+u}")
    D = 164
    g("s_nop 0")
    for u in range(8):
        g(f"s_waitcnt vmcnt({7-u})")
        g(f"v_mfma_f32_16x16x32_bf16 {vr(D,4)}, {vr(AFr+4*u,4)}, {vr(DT+4*u,4)}, {vr(D,4) if u else 0}")
    Lns = g.label("nocs")
    g(f"""
    s_cmp_ge_u32 {sRec}, 8
    s_cbranch_scc1 {Lns}
    s_mov_b64 exec, 15
    buffer_store_dwordx4 {vr(FR,4)}, v{vL16}, {srd(SRD_WS)}, {sT0} offen sc1
    s_mov_b64 exec, -1
    {Lns}:
    """)
    g.nop(6)
    for r in range(4): g(f"v_mul_f32 v{D+r}, v{D+r}, v{T+8}")
    g.tag(range(D, D+4))
    g(f"buffer_store_dwordx4 {vr(D,4)}, v{T+2}, {srd(SRD_WS)}, {sOff} offen sc1")
    g.ts(9)
    Lz, Lend = g.label("z"), g.label("Aend")
    g(f"s_cmp_lg_u32 {sDone}, 0\ns_cbranch_scc1 {Lz}")
    restore()
    g(f"{Lz}:")
    g.ts(10)
    g(f"""
    s_cmp_lg_u32 {sW}, 0
    s_cbranch_scc1 {Lend}
    s_sub_u32 {sH}, s2, 128
    s_cmp_ge_u32 {sH}, 40
    s_cbranch_scc1 {Lend}
    s_lshr_b32 {sT0}, {sH}, 1
    s_mul_i32 {sT1}, {sT0}, 52
    s_lshr_b32 {sT1}, {sT1}, 8
    s_mul_i32 {sT2}, {sT1}, 5
    s_sub_u32 {sT0}, {sT0}, {sT2}
    s_lshl_b32 {sT0}, {sT0}, 8
    s_lshl_b32 {sT1}, {sT1}, 5
    s_add_u32 {sT0}, {sT0}, {sT1}
    s_and_b32 {sT1}, {sH}, 1
    s_lshl_b32 {sT1}, {sT1}, 4
    s_add_u32 {sT0}, {sT0}, {sT1}
    v_lshrrev_b32 v{T}, 5, v0
    v_lshlrev_b32 v{T}, 7, v{T}
    v_bfe_u32 v{T+1}, v0, 4, 1
    v_mul_u32_u24 v{T+1}, 1280, v{T+1}
    v_and_b32 v{T+2}, 7, v0
    v_lshlrev_b32 v{T+2}, 1, v{T+2}
    v_add3_u32 v{T}, v{T}, v{T+1}, v{T+2}
    v_add_u32 v{T}, {sT0}, v{T}
    s_lshl_b32 {sT0}, {sH}, 13
    s_add_u32 {sOff}, {sT0}, {WS['YP']}
    s_add_u32 {sOff2}, {sT0}, {WS['SP']}
    """)
    g.mksrd(SRD_B, "x"); g.mksrd(SRD_C, "out")
    g(f"buffer_load_ushort v{T+1}, v{T}, {srd(SRD_B)}, 0 offen")
    Z = 92
    def zsum(n, dst):
        for i in range(1, n):
            g(f"v_pk_add_f32 {vr(Z,2)}, {vr(Z,2)}, {vr(Z+4*i,2)}\nv_pk_add_f32 {vr(Z+2,2)}, {vr(Z+2,2)}, {vr(Z+4*i+2,2)}")
        g(f"""
        s_nop 1
        v_permlane32_swap_b32 v{Z}, v{Z+2}
        v_permlane32_swap_b32 v{Z+1}, v{Z+3}
        s_nop 1
        v_add_f32 v{Z}, v{Z}, v{Z+2}
        v_add_f32 v{Z+1}, v{Z+1}, v{Z+3}
        s_nop 1
        v_permlane16_swap_b32 v{Z}, v{Z+1}
        s_nop 1
        v_add_f32 v{Z}, v{Z}, v{Z+1}
        s_nop 1
        v_add_f32_dpp v{dst}, v{Z}, v{Z} row_ror:8 row_mask:0xf bank_mask:0xf
        """)
    for r in range(4): g(f"v_mov_b32 v{Z+24+r}, {sTag}")
    L = g.poll_begin("yp")
    for i in range(7):
        if i == 6: g("s_mov_b32 exec_hi, 0xffff")
        g(f"buffer_load_dwordx4 {vr(Z+4*i,4)}, v{vL16 if i < 4 else KB_+4}, {srd(SRD_WS)}, {sOff} offen offset:{(i&3)*1024} sc1")
    g("s_mov_b64 exec, -1\ns_waitcnt vmcnt(0)")
    g.chk(T+7, list(range(Z, Z+28))); g.poll_end(L)
    g.ts(11)
    zsum(7, T+2)
    g(f"""
    v_mul_f32 v{T+3}, {-LOG2E!r}, v{T+2}
    v_exp_f32 v{T+3}, v{T+3}
    v_lshlrev_b32 v{T+1}, 16, v{T+1}
    v_add_f32 v{T+3}, 1.0, v{T+3}
    v_rcp_f32 v{T+3}, v{T+3}
    s_nop 0
    v_mul_f32 v{T+2}, v{T+2}, v{T+3}
    """)
    L = g.poll_begin("sp")
    for i in range(8):
        g(f"buffer_load_dwordx4 {vr(Z+4*i,4)}, v{vL16 if i < 4 else KB_+4}, {srd(SRD_WS)}, {sOff2} offen offset:{(i&3)*1024} sc1")
    g("s_waitcnt vmcnt(0)")
    g.chk(T+7, list(range(Z, Z+32))); g.poll_end(L)
    g.ts(12)
    zsum(8, T+3)
    g(f"""
    v_fmac_f32 v{T+1}, v{T+2}, v{T+3}
    v_cvt_pk_bf16_f32 v{T+1}, v{T+1}, v{T+1}
    s_mov_b32 {sT0}, 0x00ff00ff
    s_mov_b32 {sT1}, 0x00ff00ff
    s_mov_b64 exec, s[24:25]
    buffer_store_short v{T+1}, v{T}, {srd(SRD_C)}, 0 offen
    s_cmp_lg_u32 {sH}, 0
    s_cbranch_scc1 {Lend}
    s_mov_b64 exec, 1
    v_mov_b32 v{T+2}, {sE}
    v_mov_b32 v{T+3}, 0
    buffer_store_dword v{T+2}, v{T+3}, {srd(SRD_WS)}, 0 offen sc1
    {Lend}:
    """)
    g.finish()

def build(opt):
    g = G(opt)
    if opt.get("ts"):
        for i in range(16): g(f"s_mov_b32 s{TSB+i}, 0")
        g.ts(0)
    g(f"""
    s_cmp_ge_u32 s2, 256
    s_cbranch_scc1 L_exit
    s_load_dwordx16 s[64:79], s[0:1], 0
    s_load_dwordx8 s[80:87], s[0:1], 64
    s_load_dwordx2 s[88:89], s[0:1], 96
    v_readfirstlane_b32 {sW}, v0
    v_and_b32 v0, 63, v0
    s_nop 2
    s_lshr_b32 {sW}, {sW}, 6
    s_cmp_ge_u32 s2, 128
    s_cbranch_scc1 L_roleA
    """)
    role_w(g)
    g("L_exit:\ns_endpgm")
    g(".p2align 6\nL_roleA:")
    role_a(g)
    g("L_codeend:")
    K = NAME + "_kernel"
    s = header(["; @launch grid=(256,1,1) block=(256,1,1) lds=163840"])
    s += kernel_text(K, g.text())
    s += '.section .rodata,"a"\n' + descriptor(K, vgpr=256, sgpr=96)
    return s

if __name__ == "__main__":
    opt = {}
    out = sys.argv[1]
    for kv in sys.argv[2:]:
        k, v = kv.split("=")
        opt[k] = int(v) if v.lstrip("-").isdigit() else v
    open(out, "w").write(build(opt))
```

```python
import sys, math
from common import *

WS = dict(E=0, QP=0x10000, QA=0x20000, QC=0x30000, FX=0x38000, ST=0x40000, CL=0x80000, CS=0x100000,
          SP=0x110000, YP=0x160000, TS=0x1C0000, PO=0x200000)
WS_USED = 0x600000
XN, XNP = 0, 1344
QS, QO, CLB, CX, ZERO, IMG = 3072, 7168, 3072, 7680, 8064, 8192
UKIMG = IMG + 40960
QAI = 131072
MX, LS, PX = QAI, QAI + 512, QAI + 1024
MAXPOLL = 1 << 15
LOG2E = 1.4426950408889634

sW = "s3"
SRD_WS, SRD_A, SRD_B, SRD_C = 4, 8, 12, 16
sE, sTag, sMsk, sCnt, sT0, sT1, sT2, sT3 = "s20", "s21", "s22", "s23", "s24", "s25", "s26", "s27"
sH, sJ, sOff, sK, sDone, sXcc, sGrp, sP = "s28", "s29", "s30", "s31", "s32", "s33", "s34", "s35"
sEx = "s[36:37]"
sRec = "s38"; sOff2 = "s39"
TSB = 40
sTm = "s[56:57]"
sJ2m = "s[58:59]"
PTR = dict(x=64, ckv=66, wq=68, wuk=70, wuv=72, wo=74, bx=76, wg=78, wu=80, wd=82, out=84, dbg=86, ws=88)

def srd(n): return f"s[{n}:{n+3}]"
def vr(a, n=1): return f"v{a}" if n == 1 else f"v[{a}:{a+n-1}]"

class G(Asm):
    def __init__(self, opt):
        super().__init__(); self.o = opt; self.nl = 0
    def label(self, base):
        self.nl += 1; return f"L{self.nl}_{base}"
    def mksrd(self, d, name, size=None):
        p = PTR[name]
        self(f"s_mov_b64 s[{d}:{d+1}], s[{p}:{p+1}]\ns_mov_b32 s{d+2}, {size or SZ[name]}\ns_mov_b32 s{d+3}, 0x20000")
    def ts(self, i):
        if self.o.get("ts"):
            self(f"s_memrealtime {sTm}\ns_waitcnt lgkmcnt(0)\ns_mov_b32 s{TSB+i}, s56")
    def nop(self, n):
        while n > 0:
            k = min(n, 16); self(f"s_nop {k-1}"); n -= k
    def tag(self, regs):
        for r in regs: self(f"v_bfi_b32 v{r}, {sMsk}, v{self.vTag}, v{r}")
    def chk(self, acc, regs):
        self(f"v_xor_b32 v{acc}, {sTag}, v{regs[0]}")
        for r in regs[1:]: self(f"v_bitop3_b32 v{acc}, v{acc}, v{r}, {sTag} bitop3:0xf6")
        self(f"v_and_b32 v{acc}, {sMsk}, v{acc}\nv_cmp_ne_u32 vcc, 0, v{acc}")
    def poll_begin(self, name):
        L = self.label(name); self(f"s_mov_b32 {sCnt}, 0\n{L}:"); return L
    def poll_end(self, L):
        D = self.label("ok")
        self(f"s_cbranch_vccz {D}\ns_add_u32 {sCnt}, {sCnt}, 1\ns_cmp_lt_u32 {sCnt}, {MAXPOLL}\ns_cbranch_scc1 {L}\n{D}:")
    def allred16(self, op, v, steps=(8, 4, 2, 1)):
        for s in steps:
            self(f"s_nop 1\n{op}_dpp v{v}, v{v}, v{v} row_ror:{s} row_mask:0xf bank_mask:0xf")
    def swapred(self, op, v, t, which):
        self(f"v_mov_b32 v{t}, v{v}\ns_nop 1\nv_permlane{which}_swap_b32 v{v}, v{t}\ns_nop 1\n{op} v{v}, v{v}, v{t}")
    def finish(self):
        if self.o.get("ts"):
            self.ts(15)
            self(f"s_mov_b64 exec, -1\nv_mov_b32 v1, 0")
            for i in range(16): self(f"v_writelane_b32 v1, s{TSB+i}, {i}")
            self(f"""
            s_lshl_b32 {sT0}, s2, 2
            s_add_u32 {sT0}, {sT0}, {sW}
            s_lshl_b32 {sT0}, {sT0}, 6
            s_add_u32 {sT0}, {sT0}, {WS['TS']}
            v_lshlrev_b32 v2, 2, v0
            s_mov_b64 exec, 0xffff
            buffer_store_dword v1, v2, {srd(SRD_WS)}, {sT0} offen
            """)
        self("s_endpgm")

def dma(g, voff, s, soff, flags=""):
    g(f"buffer_load_dwordx4 v{voff}, {srd(s)}, {soff} offen {flags} lds")

def dma_loop(g, n, voff, s, step_src, step_lds=4096, flags=""):
    L = g.label("dma")
    g(f"s_mov_b32 {sK}, {n}\n{L}:")
    dma(g, voff, s, sOff, flags)
    g(f"""
    s_add_u32 {sOff}, {sOff}, {step_src}
    s_add_u32 m0, m0, {step_lds}
    s_sub_u32 {sK}, {sK}, 1
    s_cmp_lg_u32 {sK}, 0
    s_cbranch_scc1 {L}
    """)

def epoch_regs(g):
    g(f"s_add_u32 {sE}, {sE}, 1\ns_movk_i32 {sMsk}, 0xfff\ns_and_b32 {sTag}, {sE}, {sMsk}\nv_mov_b32 v{g.vTag}, {sTag}")

def role_w(g):
    o = g.o
    vLR, vCB, vTB, vXB, vTag = 1, 2, 3, 4, 5
    g.vTag = vTag
    T = 6
    g(f"""
    s_lshr_b32 {sT0}, s2, 5
    s_lshl_b32 {sT0}, {sT0}, 3
    s_and_b32 {sH}, s2, 7
    s_add_u32 {sH}, {sH}, {sT0}
    s_bfe_u32 {sJ}, s2, 0x20003
    s_lshr_b32 {sT0}, {sW}, 1
    s_lshl_b32 {sT0}, {sT0}, 4
    s_and_b32 {sT1}, {sW}, 1
    s_lshl_b32 {sT1}, {sT1}, 2
    s_add_u32 {sT0}, {sT0}, {sT1}
    v_lshrrev_b32 v{T}, 3, v0
    v_and_b32 v{T+1}, 3, v{T}
    v_lshrrev_b32 v{T+2}, 5, v0
    v_lshl_add_u32 v{vLR}, v{T+2}, 3, v{T+1}
    v_add_u32 v{vLR}, {sT0}, v{vLR}
    v_and_b32 v{T}, 6, v{T}
    v_and_b32 v{T+1}, 7, v0
    v_xor_b32 v{T}, v{T}, v{T+1}
    v_lshlrev_b32 v{vCB}, 4, v{T}
    v_lshl_add_u32 v{T+3}, v{vLR}, 13, v{vCB}
    v_lshlrev_b32 v{T+4}, 2, v0
    s_lshr_b32 {sT0}, {sJ}, 1
    s_mul_i32 {sT0}, {sT0}, {320*8192}
    s_and_b32 {sT1}, {sJ}, 1
    s_lshl_b32 {sT1}, {sT1}, 7
    s_lshl_b32 {sT2}, {sH}, 8
    s_add_u32 {sOff}, {sT0}, {sT1}
    s_add_u32 {sOff}, {sOff}, {sT2}
    s_lshl_b32 {sT3}, {sW}, 10
    s_add_u32 m0, {sT3}, {IMG}
    s_mul_i32 {sT0}, {sW}, 1280
    s_waitcnt lgkmcnt(0)
    """)
    g.mksrd(SRD_C, "x"); g.mksrd(SRD_A, "wq")
    X = 112
    for i in range(5):
        g(f"buffer_load_dword v{X+i}, v{T+4}, {srd(SRD_C)}, {sT0} offen offset:{i*256}")
    dma_loop(g, 10, T+3, SRD_A, 32*8192, flags=o.get("wq_flags", ""))
    g.mksrd(SRD_WS, "ws", WS_USED); g.mksrd(SRD_B, "wuk")
    g(f"s_load_dword {sE}, s[88:89], 0")
    g.ts(1)
    Lskip = g.label("noln")
    g(f"s_cmp_ge_u32 {sW}, 2\ns_cbranch_scc1 {Lskip}")
    V = 118
    g("s_waitcnt vmcnt(10)")
    for i in range(5):
        g(f"v_lshlrev_b32 v{V+2*i}, 16, v{X+i}\nv_and_b32 v{V+2*i+1}, 0xffff0000, v{X+i}")
    g(f"v_add_f32 v{T}, v{V}, v{V+1}")
    for i in range(2, 10): g(f"v_add_f32 v{T}, v{T}, v{V+i}")
    g.allred16("v_add_f32", T); g.swapred("v_add_f32", T, T+1, 16); g.swapred("v_add_f32", T, T+1, 32)
    g(f"v_mul_f32 v{T}, {1/640!r}, v{T}")
    for i in range(10): g(f"v_sub_f32 v{V+i}, v{V+i}, v{T}")
    g(f"v_mul_f32 v{T+2}, v{V}, v{V}")
    for i in range(1, 10): g(f"v_fmac_f32 v{T+2}, v{V+i}, v{V+i}")
    g.allred16("v_add_f32", T+2); g.swapred("v_add_f32", T+2, T+1, 16); g.swapred("v_add_f32", T+2, T+1, 32)
    g(f"""
    v_mul_f32 v{T+2}, {1/640!r}, v{T+2}
    v_cvt_pk_bf16_f32 v{T+1}, v{T}, v{T+2}
    v_and_b32 v{T+2}, 0xffff0000, v{T+1}
    v_lshlrev_b32 v{T+1}, 16, v{T+1}
    v_add_f32 v{T+2}, 1e-5, v{T+2}
    v_cvt_pk_bf16_f32 v{T+2}, v{T+2}, v{T+2}
    v_and_b32 v{T+2}, 0xffff0000, v{T+2}
    v_sqrt_f32 v{T+2}, v{T+2}
    v_sub_f32 v{T}, v{T}, v{T+1}
    v_cvt_pk_bf16_f32 v{T+2}, v{T+2}, v{T+2}
    v_and_b32 v{T+2}, 0xffff0000, v{T+2}
    v_rcp_f32 v{T+2}, v{T+2}
    s_mul_i32 {sT0}, {sW}, {XNP}
    v_add_u32 v{T+5}, {sT0}, v{T+4}
    v_mul_f32 v{T}, v{T}, v{T+2}
    """)
    for i in range(10): g(f"v_fma_f32 v{V+i}, v{V+i}, v{T+2}, v{T}")
    for i in range(5):
        g(f"v_cvt_pk_bf16_f32 v{X+i}, v{V+2*i}, v{V+2*i+1}\nds_write_b32 v{T+5}, v{X+i} offset:{XN+i*256}")
    g(f"{Lskip}:")
    U = 16
    g(f"""
    s_waitcnt lgkmcnt(0)
    v_lshrrev_b32 v{T}, 4, v0
    v_and_b32 v{T+1}, 15, v0
    v_xor_b32 v{T+2}, v{T}, v{T+1}
    v_lshlrev_b32 v{T+2}, 4, v{T+2}
    v_lshl_add_u32 v{U}, v{T}, 13, v{T+2}
    v_xor_b32 v{U+1}, 64, v{U}
    v_xor_b32 v{U+2}, 0x80, v{U}
    v_xor_b32 v{U+3}, 0xc0, v{U}
    s_lshl_b32 {sT0}, {sJ}, 2
    s_add_u32 {sT0}, {sT0}, {sW}
    s_lshl_b32 {sT0}, {sT0}, 18
    s_lshl_b32 {sT2}, {sH}, 8
    s_add_u32 {sOff}, {sT0}, {sT2}
    s_lshl_b32 {sT0}, {sW}, 13
    s_add_u32 m0, {sT0}, {UKIMG}
    """)
    for u in range(8):
        g(f"s_add_u32 {sOff2}, {sOff}, {(8*(u&3)+4*(u>>2))*8192}")
        dma(g, U+(u & 3), SRD_B, sOff2, o.get("wuk_flags", ""))
        if u < 7: g("s_add_u32 m0, m0, 1024")
    epoch_regs(g)
    vUA = 20
    g(f"""
    v_lshl_add_u32 v{vUA}, v{T+1}, 8, v{T+2}
    v_add_u32 v{vUA}, {sT0}, v{vUA}
    v_and_b32 v{T+3}, 1, v0
    v_mul_u32_u24 v{vXB}, {XNP}, v{T+3}
    v_lshl_add_u32 v{vXB}, v{T}, 4, v{vXB}
    v_bfe_u32 v{T+4}, v0, 2, 3
    v_lshrrev_b32 v{T+5}, 5, v0
    v_lshl_add_u32 v{T+5}, v{T+5}, 4, v{T+4}
    v_lshrrev_b32 v{T+4}, 1, v{T+4}
    v_xor_b32 v{T+4}, {sW}, v{T+4}
    v_lshlrev_b32 v{T+4}, 5, v{T+4}
    v_lshl_add_u32 v{vTB}, v{T+5}, 7, v{T+4}
    v_and_b32 v{T+4}, 3, v0
    v_lshl_add_u32 v{vTB}, v{T+4}, 3, v{vTB}
    v_cmp_gt_u32 {sJ2m}, 2, v{T+1}
    v_mov_b32 v{T+6}, 0
    v_lshlrev_b32 v{T+7}, 2, v0
    v_and_b32 v{T+7}, 0x7c, v{T+7}
    ds_write_b32 v{T+7}, v{T+6} offset:{ZERO}
    s_lshr_b32 {sT0}, {sJ}, 1
    s_mul_i32 {sT0}, {sT0}, 640
    v_add_u32 v{T+8}, {sT0}, v{vXB}
    """)
    g.ts(2)
    AF, BF, D = 32, 72, 24
    g("s_waitcnt vmcnt(8) lgkmcnt(0)\ns_barrier")
    g.ts(3)
    def rd(s):
        g(f"ds_read_b64_tr_b16 {vr(AF+4*s,2)}, v{vTB} offset:{IMG+s*4096}")
        g(f"ds_read_b64_tr_b16 {vr(AF+4*s+2,2)}, v{vTB} offset:{IMG+s*4096+1024}")
        g(f"ds_read_b128 {vr(BF+4*s,4)}, v{T+8} offset:{XN+s*64}")
    for s in range(5): rd(s)
    for s in range(10):
        rem = min(9, s+4) - s
        g(f"s_waitcnt lgkmcnt({3*rem})")
        g(f"v_mfma_f32_16x16x32_bf16 {vr(D,4)}, {vr(AF+4*s,4)}, {vr(BF+4*s,4)}, {vr(D,4) if s else 0}")
        if s+5 < 10: rd(s+5)
    g(f"""
    s_lshl_b32 {sOff}, {sH}, 11
    s_add_u32 {sOff}, {sOff}, {WS['QP']}
    s_lshl_b32 {sT0}, {sJ}, 9
    s_lshl_b32 {sT1}, {sW}, 7
    s_add_u32 {sT0}, {sT0}, {sT1}
    s_add_u32 {sOff2}, {sOff}, {sT0}
    v_lshlrev_b32 v{T+9}, 6, v{T+3}
    v_lshl_add_u32 v{T+9}, v{T}, 4, v{T+9}
    v_lshlrev_b32 v{T+4}, 4, v0
    """)
    g.tag(range(D, D+4))
    g(f"""
    s_mov_b64 exec, {sJ2m}
    buffer_store_dwordx4 {vr(D,4)}, v{T+9}, {srd(SRD_WS)}, {sOff2} offen sc1
    s_mov_b64 exec, -1
    v_bfe_u32 v{T+5}, v0, 2, 1
    v_mul_u32_u24 v{T+5}, 320, v{T+5}
    v_lshrrev_b32 v{T+6}, 3, v0
    v_lshl_add_u32 v{T+5}, v{T+6}, 5, v{T+5}
    v_and_b32 v{T+6}, 3, v0
    v_lshl_add_u32 v{T+5}, v{T+6}, 3, v{T+5}
    v_add_u32 v{T+5}, {sT3}, v{T+5}
    v_mul_u32_u24 v{T+6}, 320, v{T+3}
    v_lshl_add_u32 v{T+6}, v{T}, 4, v{T+6}
    v_add_u32 v{T+6}, {sT3}, v{T+6}
    v_xor_b32 v{vUA+1}, 64, v{vUA}
    v_xor_b32 v{vUA+2}, 0x80, v{vUA}
    v_xor_b32 v{vUA+3}, 0xc0, v{vUA}
    s_waitcnt vmcnt(1)
    """)
    g.ts(4)
    for tl in range(2):
        for s in range(4):
            g(f"ds_read_b128 {vr(AF+16*tl+4*s,4)}, v{vUA+s} offset:{UKIMG+tl*4096}")
    P0 = 72
    L = g.poll_begin("qp")
    g(f"""
    buffer_load_dwordx4 {vr(P0,4)}, v{T+4}, {srd(SRD_WS)}, {sOff} offen sc1
    buffer_load_dwordx4 {vr(P0+4,4)}, v{T+4}, {srd(SRD_WS)}, {sOff} offen offset:1024 sc1
    s_waitcnt vmcnt(0)
    """)
    g.chk(T+7, list(range(P0, P0+8))); g.poll_end(L)
    g.ts(5)
    for r in range(4): g(f"v_add_f32 v{P0+r}, v{P0+r}, v{P0+4+r}")
    g(f"""
    v_cvt_pk_bf16_f32 v{P0}, v{P0}, v{P0+1}
    v_cvt_pk_bf16_f32 v{P0+1}, v{P0+2}, v{P0+3}
    ds_write_b64 v{T+5}, {vr(P0,2)} offset:{QS}
    s_waitcnt lgkmcnt(0)
    """)
    QB = 80
    for s in range(4): g(f"ds_read_b128 {vr(QB+4*s,4)}, v{T+6} offset:{QS+s*64}")
    for s in range(4):
        g(f"s_waitcnt lgkmcnt({3-s})")
        for tl in range(2):
            g(f"v_mfma_f32_16x16x32_bf16 {vr(D+4*tl,4)}, {vr(AF+16*tl+4*s,4)}, {vr(QB+4*s,4)}, {vr(D+4*tl,4) if s else 0}")
    g(f"""
    v_lshlrev_b32 v{T+5}, 8, v{T+3}
    v_lshl_add_u32 v{T+5}, v{T}, 4, v{T+5}
    s_lshl_b32 {sT0}, {sW}, 6
    v_add_u32 v{T+5}, {sT0}, v{T+5}
    s_mov_b32 {sT1}, {128**-0.5*LOG2E!r}
    v_lshlrev_b32 v{T+6}, 4, v{T+1}
    v_lshl_add_u32 v{T+6}, v{T}, 15, v{T+6}
    s_lshl_b32 {sT0}, {sJ}, 5
    s_add_u32 {sT0}, {sT0}, {sH}
    s_lshl_b32 {sOff}, {sT0}, 8
    s_add_u32 {sOff}, {sOff}, {WS['QA']}
    s_lshl_b32 {sOff2}, {sT0}, 7
    s_add_u32 {sOff2}, {sOff2}, {WS['QC']}
    """)
    for r in range(8): g(f"v_mul_f32 v{D+r}, {sT1}, v{D+r}")
    for r in range(4): g(f"v_cvt_pk_bf16_f32 v{P0+r}, v{D+2*r}, v{D+2*r+1}")
    Lp = g.label("nopub")
    g(f"""
    s_mov_b64 exec, {sJ2m}
    ds_write_b128 v{T+5}, {vr(P0,4)} offset:{QO}
    s_mov_b64 exec, -1
    s_waitcnt lgkmcnt(0)
    s_barrier
    s_cmp_lg_u32 {sW}, 0
    s_cbranch_scc1 {Lp}
    s_mov_b32 exec_hi, 0
    ds_read_b128 {vr(P0,4)}, v{T+4} offset:{QO}
    v_lshlrev_b32 v{T+8}, 2, v{T}
    s_waitcnt lgkmcnt(0)
    buffer_store_dwordx4 {vr(P0,4)}, v{T+6}, {srd(SRD_WS)}, {sOff} offen sc1
    v_add3_u32 v{T+7}, v{P0}, v{P0+1}, v{P0+2}
    v_add_u32 v{T+7}, v{T+7}, v{P0+3}
    """)
    g.allred16("v_add_u32", T+7)
    g(f"""
    v_add_u32 v{T+7}, {sE}, v{T+7}
    s_mov_b64 exec, 0x10001
    buffer_store_dword v{T+7}, v{T+8}, {srd(SRD_WS)}, {sOff2} offen sc1
    s_mov_b64 exec, -1
    """)
    g.ts(6)
    g(f"s_waitcnt vmcnt(0)\n{Lp}:\ns_barrier")
    g.ts(7)
    Lf, Lend = g.label("F"), g.label("Wend")
    AM = 16
    g(f"""
    s_cmp_ge_u32 s2, 118
    s_cbranch_scc1 {Lend}
    s_cmp_ge_u32 s2, 64
    s_cbranch_scc1 {Lf}
    """)
    def gemm2_addrs():
        g(f"""
        v_mul_u32_u24 v{T+5}, 192, v{T+3}
        v_lshl_add_u32 v{T+5}, v{T}, 4, v{T+5}
        v_add_u32 v{T+5}, {CX}, v{T+5}
        v_mov_b32 v{T+6}, {ZERO}
        v_lshrrev_b32 v{T+7}, 1, v{T+1}
        """)
        for i in range(8):
            g(f"v_cmp_eq_u32 vcc, {i}, v{T+7}\ns_nop 1\nv_cndmask_b32 v{AM+i}, v{T+6}, v{T+5}, vcc")
        g(f"""
        v_lshrrev_b32 v{T+5}, 3, v0
        v_and_b32 v{T+6}, 7, v0
        v_lshlrev_b32 v{T+6}, 4, v{T+6}
        v_lshl_add_u32 v{T+9}, v{T+5}, 13, v{T+6}
        """)
    def gemm2(WF, nk, AR, region, slot_sub):
        for kk in range(nk):
            for i in range(8):
                g(f"ds_read_b128 {vr(AR+4*(8*kk+i),4)}, v{AM+i} offset:{kk*64}")
        g(f"""
        s_mul_i32 {sT0}, {sW}, {10*8192}
        s_sub_u32 {sT1}, s2, {slot_sub}
        s_lshl_b32 {sT1}, {sT1}, 7
        s_add_u32 {sOff}, {sT0}, {sT1}
        s_add_u32 {sOff}, {sOff}, {WS[region]}
        s_add_u32 {sOff2}, {sOff}, {8*8192}
        """)
        n = 8*nk; first0 = first1 = True
        for idx in range(n):
            kk, i = idx >> 3, idx & 7
            g(f"s_waitcnt lgkmcnt({min(15, n-1-idx)})")
            g(f"v_mfma_f32_16x16x32_bf16 {vr(D,4)}, {vr(AR+4*idx,4)}, {vr(WF+4*(nk*i+kk),4)}, {0 if first0 else vr(D,4)}"); first0 = False
            if i < 2:
                g(f"v_mfma_f32_16x16x32_bf16 {vr(D+4,4)}, {vr(AR+4*idx,4)}, {vr(WF+4*(nk*(8+i)+kk),4)}, {0 if first1 else vr(D+4,4)}"); first1 = False
        g.tag(range(D+4, D+8))
        g(f"""
        s_mov_b64 exec, 0xffff
        buffer_store_dwordx4 {vr(D+4,4)}, v{T+9}, {srd(SRD_WS)}, {sOff2} offen sc1
        s_mov_b64 exec, -1
        s_nop 0
        """)
        g.tag(range(D, D+4))
        g(f"buffer_store_dwordx4 {vr(D,4)}, v{T+9}, {srd(SRD_WS)}, {sOff} offen sc1")

    g(f"""
    s_and_b32 {sH}, s2, 31
    s_lshr_b32 {sJ}, s2, 5
    s_and_b32 {sT0}, {sW}, 1
    s_lshr_b32 {sT1}, {sW}, 1
    s_lshl_b32 {sT1}, {sT1}, 2
    s_add_u32 {sT0}, {sT0}, {sT1}
    v_lshrrev_b32 v{T+5}, 5, v0
    v_lshl_add_u32 v{T+5}, v{T+5}, 1, {sT0}
    v_bfe_u32 v{T+6}, v0, 3, 1
    v_lshl_add_u32 v{T+5}, v{T+6}, 5, v{T+5}
    v_bfe_u32 v{T+6}, v0, 4, 1
    v_lshl_add_u32 v{T+5}, v{T+6}, 4, v{T+5}
    v_lshl_add_u32 v{T+5}, v{T+5}, 13, v{vCB}
    s_lshl_b32 {sOff}, {sH}, 8
    s_lshl_b32 {sT0}, {sJ}, 7
    s_add_u32 {sOff}, {sOff}, {sT0}
    s_add_u32 m0, {sT3}, {IMG}
    """)
    g.mksrd(SRD_A, "wuv"); g.mksrd(SRD_B, "wo")
    L = g.label("uv")
    g(f"s_mov_b32 {sK}, 8\n{L}:")
    dma(g, T+5, SRD_A, sOff, o.get("late_flags", ""))
    g(f"s_add_u32 {sOff}, {sOff}, {8*8192}\ns_add_u32 m0, m0, 4096\ns_sub_u32 {sK}, {sK}, 1")
    dma(g, T+5, SRD_A, sOff, o.get("late_flags", ""))
    g(f"s_add_u32 {sOff}, {sOff}, {56*8192}\ns_add_u32 m0, m0, 4096\ns_cmp_lg_u32 {sK}, 0\ns_cbranch_scc1 {L}")
    g(f"""
    v_mul_u32_u24 v{T+6}, 1280, v{vLR}
    v_add_u32 v{T+6}, v{T+6}, v{vCB}
    s_lshl_b32 {sT0}, {sH}, 1
    s_add_u32 {sT0}, {sT0}, {sJ}
    s_mul_i32 {sOff}, {sT0}, {64*1280}
    """)
    L = g.label("wo")
    g(f"s_mov_b32 {sK}, 10\n{L}:")
    dma(g, T+6, SRD_B, sOff, o.get("late_flags", ""))
    g(f"s_add_u32 {sOff2}, {sOff}, {32*1280}\ns_add_u32 m0, m0, 4096\ns_sub_u32 {sK}, {sK}, 1")
    dma(g, T+6, SRD_B, sOff2, o.get("late_flags", ""))
    g(f"s_add_u32 {sOff}, {sOff}, 128\ns_add_u32 m0, m0, 4096\ns_cmp_lg_u32 {sK}, 0\ns_cbranch_scc1 {L}")
    g.ts(8)
    gemm2_addrs()
    UV, WO, BR = 32, 96, 176
    vTB1, vTB2, vTB3 = 240, 241, 242
    vCLo, vCSo, vCLw, vCLr, vCXw = 243, 244, 245, 246, 247
    g(f"""
    v_add_u32 v{vTB1}, {IMG}, v{vTB}
    v_add_u32 v{vTB2}, {IMG+65536}, v{vTB}
    v_add_u32 v{vTB3}, {IMG+131072}, v{vTB}
    s_lshl_b32 {sOff}, {sH}, 14
    s_lshr_b32 {sT0}, {sW}, 1
    s_lshl_b32 {sT1}, {sT0}, 13
    s_add_u32 {sOff}, {sOff}, {sT1}
    s_and_b32 {sT1}, {sW}, 1
    s_lshl_b32 {sT2}, {sT1}, 10
    s_add_u32 {sOff}, {sOff}, {sT2}
    s_add_u32 {sOff}, {sOff}, {WS['CL']}
    s_add_u32 {sRec}, {sOff}, 4096
    v_lshlrev_b32 v{vCLo}, 4, v0
    s_lshl_b32 {sOff2}, {sT0}, 12
    s_lshr_b32 {sT2}, {sH}, 2
    s_lshl_b32 {sT2}, {sT2}, 7
    s_add_u32 {sOff2}, {sOff2}, {sT2}
    s_and_b32 {sT2}, {sH}, 3
    s_lshl_b32 {sT2}, {sT2}, 4
    s_add_u32 {sOff2}, {sOff2}, {sT2}
    s_add_u32 {sOff2}, {sOff2}, {WS['CS']}
    v_and_b32 v{vCSo}, 3, v0
    v_lshlrev_b32 v{vCSo}, 10, v{vCSo}
    s_mul_i32 {sT0}, {sT0}, 1088
    s_lshl_b32 {sT1}, {sT1}, 9
    s_add_u32 {sT0}, {sT0}, {sT1}
    v_lshl_add_u32 v{vCLw}, v0, 3, {sT0}
    v_mul_u32_u24 v{vCLr}, 1088, v{T+3}
    v_lshl_add_u32 v{vCLr}, v{T}, 4, v{vCLr}
    v_mul_u32_u24 v{vCXw}, 192, v{T+3}
    v_lshl_add_u32 v{vCXw}, v{T}, 3, v{vCXw}
    s_lshl_b32 {sT0}, {sW}, 5
    v_add_u32 v{vCXw}, {sT0}, v{vCXw}
    s_waitcnt vmcnt(20)
    s_barrier
    """)
    for s in range(16):
        for t in range(2):
            g(f"ds_read_b64_tr_b16 {vr(UV+4*s+2*t,2)}, v{vTB1} offset:{s*4096+t*1024}")
    g("s_waitcnt vmcnt(0)\ns_barrier")
    g.ts(9)
    for idx in range(20):
        for t in range(2):
            off = idx*4096 + t*1024
            b = vTB2 if off < 65536 else vTB3
            g(f"ds_read_b64_tr_b16 {vr(WO+4*idx+2*t,2)}, v{b} offset:{off & 0xffff}")
    C0, S0 = BR, BR+16
    L = g.poll_begin("cl")
    g(f"""
    buffer_load_dwordx4 {vr(S0,4)}, v{vCSo}, {srd(SRD_WS)}, {sOff2} offen sc1
    buffer_load_dwordx4 {vr(C0,4)}, v{vCLo}, {srd(SRD_WS)}, {sOff} offen sc1
    buffer_load_dwordx4 {vr(C0+4,4)}, v{vCLo}, {srd(SRD_WS)}, {sOff} offen offset:2048 sc1
    buffer_load_dwordx4 {vr(C0+8,4)}, v{vCLo}, {srd(SRD_WS)}, {sRec} offen sc1
    buffer_load_dwordx4 {vr(C0+12,4)}, v{vCLo}, {srd(SRD_WS)}, {sRec} offen offset:2048 sc1
    s_waitcnt vmcnt(4)
    v_max_f32_dpp v{T+5}, v{S0}, v{S0} quad_perm:[1,0,3,2] row_mask:0xf bank_mask:0xf
    s_nop 1
    v_max_f32_dpp v{T+5}, v{T+5}, v{T+5} quad_perm:[2,3,0,1] row_mask:0xf bank_mask:0xf
    v_sub_f32 v{T+5}, v{S0}, v{T+5}
    v_exp_f32 v{T+5}, v{T+5}
    s_nop 1
    v_add_f32_dpp v{T+6}, v{T+5}, v{T+5} quad_perm:[1,0,3,2] row_mask:0xf bank_mask:0xf
    s_nop 1
    v_add_f32_dpp v{T+6}, v{T+6}, v{T+6} quad_perm:[2,3,0,1] row_mask:0xf bank_mask:0xf
    v_rcp_f32 v{T+6}, v{T+6}
    s_nop 0
    v_mul_f32 v{T+5}, v{T+5}, v{T+6}
    s_waitcnt vmcnt(0)
    """)
    g.chk(T+7, [S0+1, S0+2, S0+3] + list(range(C0, C0+16))); g.poll_end(L)
    g.ts(10)
    for r in range(4):
        g(f"v_mul_f32_dpp v{S0+r}, v{T+5}, v{C0+r} quad_perm:[0,0,0,0] row_mask:0xf bank_mask:0xf")
    for i in range(1, 4):
        for r in range(4):
            g(f"v_fmac_f32_dpp v{S0+r}, v{T+5}, v{C0+4*i+r} quad_perm:[{i},{i},{i},{i}] row_mask:0xf bank_mask:0xf")
    g(f"""
    v_cvt_pk_bf16_f32 v{S0}, v{S0}, v{S0+1}
    v_cvt_pk_bf16_f32 v{S0+1}, v{S0+2}, v{S0+3}
    ds_write_b64 v{vCLw}, {vr(S0,2)} offset:{CLB}
    s_waitcnt lgkmcnt(0)
    s_barrier
    """)
    for s in range(16): g(f"ds_read_b128 {vr(BR+4*s,4)}, v{vCLr} offset:{CLB+s*64}")
    for s in range(16):
        g(f"s_waitcnt lgkmcnt({15-s})")
        g(f"v_mfma_f32_16x16x32_bf16 {vr(D,4)}, {vr(UV+4*s,4)}, {vr(BR+4*s,4)}, {vr(D,4) if s else 0}")
    g.nop(8)
    g(f"""
    v_cvt_pk_bf16_f32 v{D}, v{D}, v{D+1}
    v_cvt_pk_bf16_f32 v{D+1}, v{D+2}, v{D+3}
    s_mov_b64 exec, {sJ2m}
    ds_write_b64 v{vCXw}, {vr(D,2)} offset:{CX}
    s_mov_b64 exec, -1
    s_waitcnt lgkmcnt(0)
    s_barrier
    """)
    g.ts(11)
    gemm2(WO, 2, BR, "SP", 0)
    g.ts(12)
    g(f"s_branch {Lend}")

    g(f"""
    {Lf}:
    s_sub_u32 {sH}, s2, 64
    s_and_b32 {sJ}, {sH}, 1
    v_mul_u32_u24 v{T+6}, 1280, v{vLR}
    v_add_u32 v{T+6}, v{T+6}, v{vCB}
    s_mul_i32 {sOff}, {sH}, {32*1280}
    s_add_u32 m0, {sT3}, {IMG}
    """)
    g.mksrd(SRD_B, "wd")
    dma_loop(g, 10, T+6, SRD_B, 128, flags=o.get("late_flags", ""))
    g(f"""
    s_cmp_eq_u32 {sJ}, 0
    s_cselect_b64 s[{SRD_A}:{SRD_A+1}], s[{PTR['wg']}:{PTR['wg']+1}], s[{PTR['wu']}:{PTR['wu']+1}]
    s_mov_b32 s{SRD_A+2}, {SZ['wg']}
    s_mov_b32 s{SRD_A+3}, 0x20000
    v_mul_u32_u24 v{T+5}, 3456, v{vLR}
    v_add_u32 v{T+5}, v{T+5}, v{vCB}
    s_lshr_b32 {sOff}, {sH}, 1
    s_lshl_b32 {sOff}, {sOff}, 7
    """)
    dma_loop(g, 20, T+5, SRD_A, 32*3456, flags=o.get("late_flags", ""))
    g.ts(8)
    gemm2_addrs()
    WD, XF, GF = 32, 72, 152
    g(f"""
    v_add_u32 v{vTB1}, {IMG}, v{vTB}
    v_add_u32 v{vTB2}, {IMG+40960}, v{vTB}
    v_add_u32 v{vTB3}, {IMG+40960+65536}, v{vTB}
    v_lshlrev_b32 v{vCLo}, 6, v{T+3}
    v_lshl_add_u32 v{vCLo}, v{T}, 4, v{vCLo}
    s_lshl_b32 {sOff}, {sH}, 8
    s_and_b32 {sT1}, {sW}, 1
    s_lshl_b32 {sT0}, {sT1}, 7
    s_add_u32 {sOff}, {sOff}, {sT0}
    s_add_u32 {sOff}, {sOff}, {WS['FX']}
    s_xor_b32 {sOff2}, {sOff}, 256
    v_mul_u32_u24 v{vCXw}, 192, v{T+3}
    v_lshl_add_u32 v{vCXw}, v{T}, 3, v{vCXw}
    s_lshl_b32 {sT0}, {sT1}, 5
    v_add_u32 v{vCXw}, {sT0}, v{vCXw}
    """)
    for s in range(20): g(f"ds_read_b128 {vr(XF+4*s,4)}, v{vXB} offset:{XN+s*64}")
    g("s_waitcnt vmcnt(20)\ns_barrier")
    for blk in range(10):
        for t in range(2):
            g(f"ds_read_b64_tr_b16 {vr(WD+4*blk+2*t,2)}, v{vTB1} offset:{blk*4096+t*1024}")
    g("s_waitcnt vmcnt(0)\ns_barrier")
    g.ts(9)
    def rdg(s):
        for t in range(2):
            off = s*4096 + t*1024
            b = vTB2 if off < 65536 else vTB3
            g(f"ds_read_b64_tr_b16 {vr(GF+4*s+2*t,2)}, v{b} offset:{off & 0xffff}")
    for s in range(7): rdg(s)
    for s in range(20):
        rem = min(19, s+6) - s
        g(f"s_waitcnt lgkmcnt({2*rem})")
        g(f"v_mfma_f32_16x16x32_bf16 {vr(D,4)}, {vr(GF+4*s,4)}, {vr(XF+4*s,4)}, {vr(D,4) if s else 0}")
        if s+7 < 20: rdg(s+7)
    Lk, Lj = g.label("keep"), g.label("fjoin")
    g(f"""
    s_lshr_b32 {sT0}, {sW}, 1
    s_cmp_eq_u32 {sT0}, {sJ}
    s_cbranch_scc1 {Lk}
    s_nop 4
    """)
    g.tag(range(D, D+4))
    g(f"""
    s_mov_b64 exec, {sJ2m}
    buffer_store_dwordx4 {vr(D,4)}, v{vCLo}, {srd(SRD_WS)}, {sOff} offen sc1
    s_mov_b64 exec, -1
    s_branch {Lj}
    {Lk}:
    """)
    L = g.poll_begin("fx")
    g(f"buffer_load_dwordx4 {vr(D+4,4)}, v{vCLo}, {srd(SRD_WS)}, {sOff2} offen sc1\ns_waitcnt vmcnt(0)")
    g.chk(T+7, list(range(D+4, D+8))); g.poll_end(L)
    g.ts(10)
    g(f"s_cmp_eq_u32 {sJ}, 0\ns_cselect_b64 vcc, -1, 0\ns_nop 1")
    c1 = -2*0.7978845608028654*LOG2E
    for r in range(4):
        g(f"v_cndmask_b32 v{XF+r}, v{D+4+r}, v{D+r}, vcc\nv_cndmask_b32 v{XF+4+r}, v{D+r}, v{D+4+r}, vcc")
    g(f"s_mov_b32 {sT0}, {c1*0.044715!r}\nv_mov_b32 v{T+5}, {c1!r}")
    for r in range(4): g(f"v_mul_f32 v{XF+8+r}, v{XF+r}, v{XF+r}")
    for r in range(4): g(f"v_fma_f32 v{XF+8+r}, v{XF+8+r}, {sT0}, v{T+5}")
    for r in range(4): g(f"v_mul_f32 v{XF+8+r}, v{XF+8+r}, v{XF+r}")
    for r in range(4): g(f"v_exp_f32 v{XF+8+r}, v{XF+8+r}")
    for r in range(4): g(f"v_add_f32 v{XF+8+r}, 1.0, v{XF+8+r}")
    for r in range(4): g(f"v_rcp_f32 v{XF+8+r}, v{XF+8+r}")
    for r in range(4): g(f"v_mul_f32 v{XF+r}, v{XF+r}, v{XF+8+r}")
    for r in range(4): g(f"v_mul_f32 v{XF+r}, v{XF+r}, v{XF+4+r}")
    g(f"""
    v_cvt_pk_bf16_f32 v{XF}, v{XF}, v{XF+1}
    v_cvt_pk_bf16_f32 v{XF+1}, v{XF+2}, v{XF+3}
    s_mov_b64 exec, {sJ2m}
    ds_write_b64 v{vCXw}, {vr(XF,2)} offset:{CX}
    s_mov_b64 exec, -1
    {Lj}:
    s_waitcnt lgkmcnt(0)
    s_barrier
    """)
    g.ts(11)
    gemm2(WD, 1, GF, "YP", 64)
    g.ts(12)
    g(f"{Lend}:")
    g.finish()

def role_a(g):
    o = g.o
    T = 6
    vTag = 5; g.vTag = vTag
    vDo, vQo, vL16 = 1, 2, 3
    g(f"""
    s_and_b32 {sGrp}, s2, 7
    s_bfe_u32 {sP}, s2, 0x40003
    v_lshrrev_b32 v{T}, 4, v0
    v_and_b32 v{T+1}, 15, v0
    v_lshl_or_b32 v{T+2}, v{T}, 2, {sW}
    v_xor_b32 v{T+2}, v{T+2}, v{T+1}
    v_lshlrev_b32 v{T+2}, 4, v{T+2}
    s_lshl_b32 {sT0}, {sW}, 2
    v_add_u32 v{T+3}, {sT0}, v{T}
    v_lshl_add_u32 v{vDo}, v{T+3}, 10, v{T+2}
    v_lshl_add_u32 v{vQo}, v{T+3}, 8, v{T+2}
    s_lshl_b32 {sT0}, {sGrp}, 4
    s_add_u32 {sT0}, {sT0}, {sP}
    s_lshl_b32 {sOff}, {sT0}, 17
    s_lshl_b32 {sT3}, {sW}, 10
    s_mov_b32 m0, {sT3}
    s_waitcnt lgkmcnt(0)
    """)
    g.mksrd(SRD_A, "ckv"); g.mksrd(SRD_WS, "ws", WS_USED)
    if o.get("codepf", 1):
        g(f"""
        s_getpc_b64 s[60:61]
        L_pc:
        s_sub_u32 s60, s60, L_pc-{NAME}_kernel
        s_subb_u32 s61, s61, 0
        s_lshl_b32 {sT0}, {sP}, 2
        s_add_u32 {sT0}, {sT0}, {sW}
        s_lshl_b32 {sT0}, {sT0}, 8
        v_lshl_add_u32 v{T+4}, v0, 7, {sT0}
        v_min_u32 v{T+4}, L_codeend-{NAME}_kernel-4, v{T+4}
        s_mov_b64 exec, 3
        global_load_dword v230, v{T+4}, s[60:61]
        s_mov_b64 exec, -1
        """)
    thr, nr = o.get("thr", 2), o.get("nr", 2)
    fl = o.get("ckv_flags", "nt")
    for i in range(32):
        dma(g, vDo, SRD_A, sOff, fl)
        if i == 0: g(f"s_load_dword {sE}, s[88:89], 0\ns_getreg_b32 {sXcc}, hwreg(HW_REG_XCC_ID, 0, 4)\ns_movk_i32 {sK}, 0x4000\ns_movk_i32 {sT2}, 0x1000")
        if i < 31:
            if (i & 7) == 7: g(f"s_sub_u32 {sOff}, {sOff}, {7*16384-256}")
            else: g(f"s_add_u32 {sOff}, {sOff}, {sK}")
            g(f"s_add_u32 m0, m0, {sT2}")
            if thr and (i+1) % thr == 0 and (i+1)//thr <= nr: g("s_waitcnt vmcnt(0)")
            else: g("s_nop 0")
    g("s_waitcnt lgkmcnt(0)")
    g.ts(1)
    epoch_regs(g)
    vCk = 4
    CK = 16
    g(f"""
    v_lshrrev_b32 v{T+4}, 2, v0
    v_lshlrev_b32 v{T+4}, 4, v{T+4}
    v_and_b32 v{T+5}, 3, v0
    s_lshl_b32 {sT0}, {sW}, 2
    v_add3_u32 v{T+4}, v{T+4}, v{T+5}, {sT0}
    v_lshlrev_b32 v{vCk}, 7, v{T+4}
    s_lshr_b32 {sT0}, {sGrp}, 2
    s_lshl_b32 {sOff2}, {sT0}, 2
    s_add_u32 {sOff2}, {sOff2}, {WS['QC']}
    s_lshl_b32 {sRec}, {sT0}, 15
    s_add_u32 {sRec}, {sRec}, {WS['QA']}
    v_lshlrev_b32 v{vL16}, 4, v0
    v_add_u32 v{T+8}, {sT3}, v{vL16}
    v_add_u32 v{T+8}, {QAI}, v{T+8}
    v_mov_b32 v{CK}, 0
    s_mov_b32 {sDone}, 0
    """)
    Lq = g.poll_begin("qa")
    g(f"s_mov_b32 {sOff}, {sRec}\ns_add_u32 m0, {sT3}, {QAI}")
    dma_loop(g, 8, vQo, SRD_WS, 4096, flags="sc1")
    Lnp, Lw = g.label("nopf"), g.label("qw")
    g(f"""
    s_mov_b32 exec_hi, 0
    buffer_load_dword v{CK}, v{vCk}, {srd(SRD_WS)}, {sOff2} offen sc1
    s_mov_b64 exec, -1
    s_cmp_lg_u32 {sCnt}, 0
    s_cbranch_scc1 {Lnp}
    s_lshl_b32 {sT0}, {sGrp}, 4
    s_add_u32 {sT0}, {sT0}, {sP}
    s_lshl_b32 {sT0}, {sT0}, 2
    s_add_u32 {sT0}, {sT0}, {sW}
    s_lshl_b32 {sH}, {sT0}, 13
    s_add_u32 {sH}, {sH}, {WS['PO']}
    s_lshl_b32 {sJ}, {sT0}, 9
    s_add_u32 {sJ}, {sJ}, {WS['ST']}
    v_lshlrev_b32 v{T+4}, 7, v0
    buffer_load_dword v228, v{T+4}, {srd(SRD_WS)}, {sH} offen sc1
    s_mov_b64 exec, 15
    buffer_load_dword v229, v{T+4}, {srd(SRD_WS)}, {sJ} offen sc1
    s_mov_b64 exec, -1
    """)
    KA_, KB_, VB = 18, 26, 34
    g(f"""
    v_and_b32 v{T+7}, 3, v0
    v_bfe_u32 v{T+9}, v0, 2, 2
    v_lshl_or_b32 v{KB_}, v{T+7}, 2, v{T+9}
    v_lshrrev_b32 v{KB_+1}, 5, v0
    v_xor_b32 v{KB_}, v{KB_}, v{KB_+1}
    v_lshlrev_b32 v{KB_}, 4, v{KB_}
    v_and_b32 v{KB_+2}, 31, v0
    v_lshl_add_u32 v{KB_}, v{KB_+2}, 8, v{KB_}
    s_lshl_b32 {sT0}, {sW}, 13
    v_add_u32 v{KA_}, {sT0}, v{KB_}
    v_add_u32 v{KB_}, {QAI}, v{KB_}
    v_bfe_u32 v{VB}, v0, 4, 1
    v_lshrrev_b32 v{VB+1}, 1, v{T+7}
    v_lshl_or_b32 v{VB}, v{VB}, 1, v{VB+1}
    v_xor_b32 v{VB}, v{VB}, v{KB_+1}
    v_lshl_or_b32 v{VB}, v{T+9}, 2, v{VB}
    v_lshlrev_b32 v{VB}, 4, v{VB}
    v_and_b32 v{VB+1}, 1, v0
    v_lshl_add_u32 v{VB}, v{VB+1}, 3, v{VB}
    v_lshl_add_u32 v{VB+1}, v{KB_+1}, 2, v{T+9}
    v_lshl_add_u32 v{VB}, v{VB+1}, 8, v{VB}
    s_lshl_b32 {sT0}, {sW}, 15
    v_add_u32 v{VB}, {sT0}, v{VB}
    """)
    for s in range(1, 8):
        g(f"v_xor_b32 v{KA_+s}, {s<<5}, v{KA_}\nv_xor_b32 v{KB_+s}, {s<<5}, v{KB_}\nv_xor_b32 v{VB+s}, {s<<5}, v{VB}")
    g(f"""
    s_waitcnt vmcnt(2)
    s_branch {Lw}
    {Lnp}:
    s_waitcnt vmcnt(0)
    {Lw}:
    """)
    FB = 44
    for i in range(8): g(f"ds_read_b128 {vr(FB+4*i,4)}, v{T+8} offset:{i*4096}")
    g(f"v_sub_u32 v{T+4}, 0, v{CK}")
    for i in range(8):
        g(f"s_waitcnt lgkmcnt({7-i})")
        g(f"v_add3_u32 v{T+4}, v{T+4}, v{FB+4*i}, v{FB+4*i+1}\nv_add3_u32 v{T+4}, v{T+4}, v{FB+4*i+2}, v{FB+4*i+3}")
    g.allred16("v_add_u32", T+4); g.swapred("v_add_u32", T+4, T+7, 16); g.swapred("v_add_u32", T+4, T+7, 32)
    g(f"s_lshl_b32 {sT0}, {sE}, 5\nv_add_u32 v{T+4}, {sT0}, v{T+4}\nv_cmp_ne_u32 vcc, 0, v{T+4}")
    g.poll_end(Lq)
    g.ts(2)
    if o.get("ts"): g(f"s_mov_b32 s{TSB+13}, {sCnt}")
    g("s_barrier")
    g.ts(3)
    S = 76
    PD = 4
    def rdqk(s):
        b = FB + 8*(s % PD); ch = s >> 3
        g(f"ds_read_b128 {vr(b,4)}, v{KA_+(s&7)} offset:{(ch&1)*32768}")
        g(f"ds_read_b128 {vr(b+4,4)}, v{KB_+(s&7)} offset:{ch*8192}")
        if ch == 1: g(f"v_add_u32 v{KA_+(s&7)}, 0x10000, v{KA_+(s&7)}")
    for s in range(PD-1): rdqk(s)
    for s in range(32):
        if s+PD-1 < 32: rdqk(s+PD-1)
        rem = min(31, s+PD-1) - s
        g(f"s_waitcnt lgkmcnt({2*rem})")
        b = FB + 8*(s % PD)
        g(f"v_mfma_f32_32x32x16_bf16 {vr(S,16)}, {vr(b,4)}, {vr(b+4,4)}, {vr(S,16) if s else 0}")
        if s == 16: g("s_barrier")
    vX = T+8
    g(f"""
    v_and_b32 v{vX}, 31, v0
    v_lshlrev_b32 v{vX}, 2, v{vX}
    v_add_u32 v{vX}, {QAI}, v{vX}
    s_lshl_b32 {sT0}, {sW}, 7
    v_add_u32 v{T+9}, {sT0}, v{vX}
    v_add_u32 v{KA_}, {QAI}, v{vL16}
    s_lshl_b32 {sT0}, {sW}, 11
    v_add_u32 v{KA_+1}, {sT0}, v{KA_}
    """)
    VF = FB
    def rdpv(n):
        e2, ks, e = n >> 4, (n >> 1) & 7, n & 1
        tt = 2*e2 + e; b = VF + 4*(n % 8)
        for t in range(2):
            g(f"ds_read_b64_tr_b16 {vr(b+2*t,2)}, v{VB+2*tt+t} offset:{ks*4096+t*2048}")
    g.nop(4)
    g.ts(4)
    vM, vLs = T+4, T+5
    g(f"v_max3_f32 v{vM}, v{S}, v{S+1}, v{S+2}")
    for r in range(3, 15, 2): g(f"v_max3_f32 v{vM}, v{vM}, v{S+r}, v{S+r+1}")
    g(f"v_max_f32 v{vM}, v{vM}, v{S+15}")
    g.swapred("v_max_f32", vM, T+7, 32)
    g(f"""
    ds_write_b32 v{T+9}, v{vM}
    s_waitcnt lgkmcnt(0)
    s_barrier
    ds_read2_b32 {vr(KB_,2)}, v{vX} offset0:0 offset1:32
    ds_read2_b32 {vr(KB_+2,2)}, v{vX} offset0:64 offset1:96
    """)
    for n in range(6): rdpv(n)
    g(f"""
    s_waitcnt lgkmcnt(12)
    v_max3_f32 v{vM}, v{KB_}, v{KB_+1}, v{KB_+2}
    v_max_f32 v{vM}, v{vM}, v{KB_+3}
    """)
    PF = 92
    for r in range(16): g(f"v_sub_f32 v{S+r}, v{S+r}, v{vM}")
    for r in range(16): g(f"v_exp_f32 v{S+r}, v{S+r}")
    OWN = 124
    for r in range(8): g(f"v_cvt_pk_bf16_f32 v{OWN+r}, v{S+2*r}, v{S+2*r+1}")
    g(f"ds_write_b128 v{KA_+1}, {vr(OWN,4)} offset:{PX-QAI}\nds_write_b128 v{KA_+1}, {vr(OWN+4,4)} offset:{PX-QAI+1024}")
    g(f"v_add_f32 v{vLs}, v{S}, v{S+1}")
    for r in range(2, 16): g(f"v_add_f32 v{vLs}, v{vLs}, v{S+r}")
    g.swapred("v_add_f32", vLs, T+7, 32)
    g(f"""
    ds_write_b32 v{T+9}, v{vLs} offset:{LS-QAI}
    s_waitcnt lgkmcnt(0)
    s_barrier
    """)
    g.ts(5)
    for ks in range(8): g(f"ds_read_b128 {vr(PF+4*ks,4)}, v{KA_} offset:{PX-QAI+ks*1024}")
    g(f"""
    ds_read2_b32 {vr(KB_,2)}, v{vX} offset0:128 offset1:160
    ds_read2_b32 {vr(KB_+2,2)}, v{vX} offset0:192 offset1:224
    """)
    O = 132
    PK = 196
    def pack_store(e2, gq):
        b = PK + 16*e2 + 4*gq
        for d in range(4):
            g(f"v_cvt_pk_bf16_f32 v{b+d}, v{O+32*e2+4*gq+d}, v{O+32*e2+16+4*gq+d}")
        off = e2*4096 + gq*1024
        g(f"buffer_store_dwordx4 {vr(b,4)}, v{vL16 if off < 4096 else KB_+4}, {srd(SRD_WS)}, {sH} offen offset:{off & 4095}")
    g(f"v_add_u32 v{KB_+4}, 4096, v{vL16}")
    issued = 6
    for n in range(32):
        e2, ks, e = n >> 4, (n >> 1) & 7, n & 1
        tt = 2*e2 + e
        if issued < 32: rdpv(issued); issued += 1
        nV = 2*(issued-6)
        needP = (7-ks) + 2 + nV if e2 == 0 else 99
        needV = 2*(issued-1-n) if n >= 6 else 99
        w = min(needP, needV)
        g(f"s_waitcnt lgkmcnt({min(w, 13)})")
        acc = vr(O+16*tt, 16)
        g(f"v_mfma_f32_32x32x16_bf16 {acc}, {vr(PF+4*ks,4)}, {vr(VF+4*(n%8),4)}, {acc if ks else 0}")
        if n >= 20 and n % 2 == 0 and n <= 26: pack_store(0, (n-20)//2)
    STG = KB_+4
    FG = 76
    g(f"""
    v_mov_b32 v{FG}, v{vM}
    v_add_f32 v{FG+1}, v{KB_}, v{KB_+1}
    v_add_f32 v{FG+2}, v{KB_+2}, v{KB_+3}
    v_add_f32 v{FG+1}, v{FG+1}, v{FG+2}
    v_mov_b32 v{FG+2}, {sE}
    v_mov_b32 v{FG+3}, {sXcc}
    s_lshl_b32 {sRec}, {sP}, 2
    s_add_u32 {sRec}, {sRec}, {sW}
    s_lshl_b32 {sOff}, {sGrp}, 15
    s_lshr_b32 {sT0}, {sRec}, 4
    s_lshl_b32 {sT0}, {sT0}, 9
    s_add_u32 {sOff}, {sOff}, {sT0}
    """)
    for gq in range(4): pack_store(1, gq)
    g.ts(6)
    vFo, vDl, vBp, MK = 80, 81, 82, 84
    g(f"""
    s_and_b32 {sT0}, {sRec}, 7
    s_lshl_b32 {sT0}, {sT0}, 6
    s_add_u32 {sOff}, {sOff}, {sT0}
    s_add_u32 {sOff}, {sOff}, {WS['ST']}
    v_lshrrev_b32 v{vFo}, 2, v0
    v_lshlrev_b32 v{vFo}, 11, v{vFo}
    v_and_b32 v{T+7}, 3, v0
    v_lshl_add_u32 v{vFo}, v{T+7}, 4, v{vFo}
    v_lshrrev_b32 v{T+8}, 5, v0
    v_and_b32 v{vDl}, 31, v0
    v_lshlrev_b32 v{vDl}, 4, v{vDl}
    v_lshl_add_u32 v{vDl}, v{T+8}, 15, v{vDl}
    s_lshl_b32 {sOff2}, {sGrp}, 19
    s_lshl_b32 {sT0}, {sRec}, 9
    s_add_u32 {sOff2}, {sOff2}, {sT0}
    s_add_u32 {sOff2}, {sOff2}, {WS['PO']}
    v_bfe_u32 v{T+9}, v0, 2, 2
    v_lshl_add_u32 v{vBp}, v{T+8}, 2, v{T+9}
    v_lshlrev_b32 v{vBp}, 2, v{vBp}
    v_and_b32 v{T+7}, 1, v0
    v_lshlrev_b32 v{T+7}, 4, v{T+7}
    v_mov_b32 v{T+8}, 0xffff
    v_lshlrev_b32 v{T+7}, v{T+7}, v{T+8}
    v_lshrrev_b32 v{T+8}, 3, v0
    v_xor_b32 v{T+8}, v{T+8}, v0
    v_and_b32 v{T+8}, 2, v{T+8}
    v_cmp_eq_u32 vcc, 0, v{T+8}
    s_nop 1
    v_cndmask_b32 v{T+7}, 0, v{T+7}, vcc
    """)
    for d in range(4):
        g(f"v_cmp_eq_u32 vcc, {d}, v{T+9}\ns_nop 1\nv_cndmask_b32 v{MK+d}, 0, v{T+7}, vcc")
    g(f"""
    s_waitcnt vmcnt(0)
    s_mov_b32 exec_hi, 0
    buffer_store_dwordx4 {vr(FG,4)}, v{vL16}, {srd(SRD_WS)}, {sJ} offen
    s_mov_b64 exec, -1
    """)
    g.ts(7)
    def restore():
        for e2 in range(2):
            for gq in range(4):
                off = e2*4096 + gq*1024
                g(f"buffer_store_dwordx4 {vr(PK+16*e2+4*gq,4)}, v{vL16 if off < 4096 else KB_+4}, {srd(SRD_WS)}, {sH} offen offset:{off & 4095} sc1")
        g(f"""
        s_waitcnt vmcnt(0)
        v_or_b32 v{FG+3}, 0x100, v{FG+3}
        s_mov_b32 exec_hi, 0
        buffer_store_dwordx4 {vr(FG,4)}, v{vL16}, {srd(SRD_WS)}, {sJ} offen sc1
        s_mov_b64 exec, -1
        s_mov_b32 {sDone}, 1
        """)
    FR = 88
    L = g.poll_begin("st"); Lok, Lnr = g.label("stok"), g.label("norest")
    g(f"""
    buffer_load_dwordx4 {vr(FR,4)}, v{vFo}, {srd(SRD_WS)}, {sOff} offen sc1
    s_waitcnt vmcnt(0)
    v_and_b32 v{T+7}, 15, v{FR+3}
    v_cmp_ne_u32 s[62:63], {sXcc}, v{T+7}
    v_cmp_gt_u32 {sEx}, 16, v{FR+3}
    v_cmp_ne_u32 vcc, {sE}, v{FR+2}
    s_and_b64 {sEx}, {sEx}, s[62:63]
    s_or_b64 vcc, vcc, {sEx}
    s_cbranch_vccz {Lok}
    s_add_u32 {sCnt}, {sCnt}, 1
    s_cmp_lg_u32 {sCnt}, {o.get('nfall', 24)}
    s_cbranch_scc1 {Lnr}
    """)
    restore()
    g(f"""
    {Lnr}:
    s_cmp_lt_u32 {sCnt}, {MAXPOLL}
    s_cbranch_scc1 {L}
    {Lok}:
    """)
    DT = 92
    for u in range(8):
        g(f"buffer_load_dwordx4 {vr(DT+4*u,4)}, v{vDl}, {srd(SRD_WS)}, {sOff2} offen sc1")
        if u < 7: g(f"s_add_u32 {sOff2}, {sOff2}, 0x10000")
    g.ts(8)
    if o.get("ts"): g(f"s_mov_b32 s{TSB+14}, {sCnt}")
    vW = T+6
    g(f"v_mov_b32 v{vM}, v{FR}")
    g.allred16("v_max_f32", vM, (4, 8)); g.swapred("v_max_f32", vM, T+7, 16); g.swapred("v_max_f32", vM, T+7, 32)
    g(f"""
    v_sub_f32 v{vW}, v{FR}, v{vM}
    v_exp_f32 v{vW}, v{vW}
    s_nop 0
    v_cvt_pk_bf16_f32 v{vW}, v{vW}, v{vW}
    v_and_b32 v{vLs}, 0xffff0000, v{vW}
    v_mul_f32 v{vLs}, v{vLs}, v{FR+1}
    """)
    WV = 124
    for u in range(8): g(f"ds_bpermute_b32 v{WV+u}, v{vBp}, v{vW} offset:{32*u}")
    g.allred16("v_add_f32", vLs, (4, 8)); g.swapred("v_add_f32", vLs, T+7, 16); g.swapred("v_add_f32", vLs, T+7, 32)
    AFr = 132
    g(f"""
    v_rcp_f32 v{T+8}, v{vLs}
    v_log_f32 v{T+9}, v{vLs}
    v_lshrrev_b32 v{T+7}, 4, v0
    v_lshlrev_b32 v{T+3}, 2, v{T+7}
    ds_bpermute_b32 v{T+8}, v{T+3}, v{T+8}
    v_add_f32 v{FR}, v{vM}, v{T+9}
    v_mov_b32 v{FR+1}, {sE}
    v_mov_b32 v{FR+2}, {sE}
    v_mov_b32 v{FR+3}, {sE}
    v_and_b32 v{T+2}, 15, v0
    v_lshlrev_b32 v{T+2}, 4, v{T+2}
    v_lshl_add_u32 v{T+2}, v{T+7}, 14, v{T+2}
    s_and_b32 {sT0}, {sRec}, 7
    s_lshl_b32 {sOff}, {sT0}, 16
    s_lshl_b32 {sT1}, {sGrp}, 11
    s_add_u32 {sOff}, {sOff}, {sT1}
    s_lshr_b32 {sT1}, {sRec}, 3
    s_lshl_b32 {sT1}, {sT1}, 8
    s_add_u32 {sOff}, {sOff}, {sT1}
    s_add_u32 {sOff}, {sOff}, {WS['CL']}
    s_lshl_b32 {sT0}, {sT0}, 7
    s_lshl_b32 {sT1}, {sGrp}, 10
    s_add_u32 {sT0}, {sT0}, {sT1}
    s_add_u32 {sT0}, {sT0}, {WS['CS']}
    s_waitcnt lgkmcnt(0)
    """)
    for u in range(8):
        for d in range(4): g(f"v_and_b32 v{AFr+4*u+d}, v{MK+d}, v{WV+u}")
    D = 164
    g("s_nop 0")
    for u in range(8):
        g(f"s_waitcnt vmcnt({7-u})")
        g(f"v_mfma_f32_16x16x32_bf16 {vr(D,4)}, {vr(AFr+4*u,4)}, {vr(DT+4*u,4)}, {vr(D,4) if u else 0}")
    Lns = g.label("nocs")
    g(f"""
    s_cmp_ge_u32 {sRec}, 8
    s_cbranch_scc1 {Lns}
    s_mov_b64 exec, 15
    buffer_store_dwordx4 {vr(FR,4)}, v{vL16}, {srd(SRD_WS)}, {sT0} offen sc1
    s_mov_b64 exec, -1
    {Lns}:
    """)
    g.nop(6)
    for r in range(4): g(f"v_mul_f32 v{D+r}, v{D+r}, v{T+8}")
    g.tag(range(D, D+4))
    g(f"buffer_store_dwordx4 {vr(D,4)}, v{T+2}, {srd(SRD_WS)}, {sOff} offen sc1")
    g.ts(9)
    Lz, Lend = g.label("z"), g.label("Aend")
    g(f"s_cmp_lg_u32 {sDone}, 0\ns_cbranch_scc1 {Lz}\ns_cmp_eq_u64 s[62:63], 0\ns_cbranch_scc1 {Lz}")
    restore()
    g(f"{Lz}:")
    g.ts(10)
    g(f"""
    s_cmp_lg_u32 {sW}, 0
    s_cbranch_scc1 {Lend}
    s_sub_u32 {sH}, s2, 128
    s_cmp_ge_u32 {sH}, 40
    s_cbranch_scc1 {Lend}
    s_lshr_b32 {sT0}, {sH}, 1
    s_mul_i32 {sT1}, {sT0}, 52
    s_lshr_b32 {sT1}, {sT1}, 8
    s_mul_i32 {sT2}, {sT1}, 5
    s_sub_u32 {sT0}, {sT0}, {sT2}
    s_lshl_b32 {sT0}, {sT0}, 8
    s_lshl_b32 {sT1}, {sT1}, 5
    s_add_u32 {sT0}, {sT0}, {sT1}
    s_and_b32 {sT1}, {sH}, 1
    s_lshl_b32 {sT1}, {sT1}, 4
    s_add_u32 {sT0}, {sT0}, {sT1}
    v_lshrrev_b32 v{T}, 5, v0
    v_lshlrev_b32 v{T}, 7, v{T}
    v_bfe_u32 v{T+1}, v0, 4, 1
    v_mul_u32_u24 v{T+1}, 1280, v{T+1}
    v_and_b32 v{T+2}, 7, v0
    v_lshlrev_b32 v{T+2}, 1, v{T+2}
    v_add3_u32 v{T}, v{T}, v{T+1}, v{T+2}
    v_add_u32 v{T}, {sT0}, v{T}
    s_lshl_b32 {sT0}, {sH}, 13
    s_add_u32 {sOff}, {sT0}, {WS['YP']}
    s_add_u32 {sOff2}, {sT0}, {WS['SP']}
    """)
    g.mksrd(SRD_B, "x"); g.mksrd(SRD_C, "out")
    g(f"buffer_load_ushort v{T+1}, v{T}, {srd(SRD_B)}, 0 offen")
    Z = 92
    def zsum(n, dst):
        for i in range(1, n):
            g(f"v_pk_add_f32 {vr(Z,2)}, {vr(Z,2)}, {vr(Z+4*i,2)}\nv_pk_add_f32 {vr(Z+2,2)}, {vr(Z+2,2)}, {vr(Z+4*i+2,2)}")
        g(f"""
        s_nop 1
        v_permlane32_swap_b32 v{Z}, v{Z+2}
        v_permlane32_swap_b32 v{Z+1}, v{Z+3}
        s_nop 1
        v_add_f32 v{Z}, v{Z}, v{Z+2}
        v_add_f32 v{Z+1}, v{Z+1}, v{Z+3}
        s_nop 1
        v_permlane16_swap_b32 v{Z}, v{Z+1}
        s_nop 1
        v_add_f32 v{Z}, v{Z}, v{Z+1}
        s_nop 1
        v_add_f32_dpp v{dst}, v{Z}, v{Z} row_ror:8 row_mask:0xf bank_mask:0xf
        """)
    for r in range(4): g(f"v_mov_b32 v{Z+24+r}, {sTag}")
    L = g.poll_begin("yp")
    for i in range(7):
        if i == 6: g("s_mov_b32 exec_hi, 0xffff")
        g(f"buffer_load_dwordx4 {vr(Z+4*i,4)}, v{vL16 if i < 4 else KB_+4}, {srd(SRD_WS)}, {sOff} offen offset:{(i&3)*1024} sc1")
    g("s_mov_b64 exec, -1\ns_waitcnt vmcnt(0)")
    g.chk(T+7, list(range(Z, Z+28))); g.poll_end(L)
    g.ts(11)
    zsum(7, T+2)
    g(f"""
    v_mul_f32 v{T+3}, {-LOG2E!r}, v{T+2}
    v_exp_f32 v{T+3}, v{T+3}
    v_lshlrev_b32 v{T+1}, 16, v{T+1}
    v_add_f32 v{T+3}, 1.0, v{T+3}
    v_rcp_f32 v{T+3}, v{T+3}
    s_nop 0
    v_mul_f32 v{T+2}, v{T+2}, v{T+3}
    """)
    L = g.poll_begin("sp")
    for i in range(8):
        g(f"buffer_load_dwordx4 {vr(Z+4*i,4)}, v{vL16 if i < 4 else KB_+4}, {srd(SRD_WS)}, {sOff2} offen offset:{(i&3)*1024} sc1")
    g("s_waitcnt vmcnt(0)")
    g.chk(T+7, list(range(Z, Z+32))); g.poll_end(L)
    g.ts(12)
    zsum(8, T+3)
    g(f"""
    v_fmac_f32 v{T+1}, v{T+2}, v{T+3}
    v_cvt_pk_bf16_f32 v{T+1}, v{T+1}, v{T+1}
    s_mov_b32 {sT0}, 0x00ff00ff
    s_mov_b32 {sT1}, 0x00ff00ff
    s_mov_b64 exec, s[24:25]
    buffer_store_short v{T+1}, v{T}, {srd(SRD_C)}, 0 offen
    s_cmp_lg_u32 {sH}, 0
    s_cbranch_scc1 {Lend}
    s_mov_b64 exec, 1
    v_mov_b32 v{T+2}, {sE}
    v_mov_b32 v{T+3}, 0
    buffer_store_dword v{T+2}, v{T+3}, {srd(SRD_WS)}, 0 offen sc1
    {Lend}:
    """)
    g.finish()

def build(opt):
    g = G(opt)
    if opt.get("ts"):
        for i in range(16): g(f"s_mov_b32 s{TSB+i}, 0")
        g.ts(0)
    g(f"""
    s_cmp_ge_u32 s2, 256
    s_cbranch_scc1 L_exit
    s_load_dwordx16 s[64:79], s[0:1], 0
    s_load_dwordx8 s[80:87], s[0:1], 64
    s_load_dwordx2 s[88:89], s[0:1], 96
    v_readfirstlane_b32 {sW}, v0
    v_and_b32 v0, 63, v0
    s_nop 2
    s_lshr_b32 {sW}, {sW}, 6
    s_cmp_ge_u32 s2, 128
    s_cbranch_scc1 L_roleA
    """)
    role_w(g)
    g("L_exit:\ns_endpgm")
    g(".p2align 6\nL_roleA:")
    role_a(g)
    g("L_codeend:")
    K = NAME + "_kernel"
    s = header(["; @launch grid=(256,1,1) block=(256,1,1) lds=163840"])
    s += kernel_text(K, g.text())
    s += '.section .rodata,"a"\n' + descriptor(K, vgpr=256, sgpr=96)
    return s

if __name__ == "__main__":
    opt = {}
    out = sys.argv[1]
    for kv in sys.argv[2:]:
        k, v = kv.split("=")
        opt[k] = int(v) if v.lstrip("-").isdigit() else v
    open(out, "w").write(build(opt))
```

```python
import sys, math
from common import *

WS = dict(E=0, QP=0x10000, QA=0x20000, QC=0x30000, FX=0x38000, ST=0x40000, CL=0x80000, CS=0x100000,
          SP=0x110000, YP=0x160000, TS=0x1C0000, PO=0x200000)
WS_USED = 0x600000
XN, XNP = 0, 1344
QS, QO, CLB, CX, ZERO, IMG = 3072, 7168, 3072, 7680, 8064, 8192
UKIMG = IMG + 40960
QAI = 131072
MX, LS, PX = QAI, QAI + 512, QAI + 1024
MAXPOLL = 1 << 15
LOG2E = 1.4426950408889634

sW = "s3"
SRD_WS, SRD_A, SRD_B, SRD_C = 4, 8, 12, 16
sE, sTag, sMsk, sCnt, sT0, sT1, sT2, sT3 = "s20", "s21", "s22", "s23", "s24", "s25", "s26", "s27"
sH, sJ, sOff, sK, sDone, sXcc, sGrp, sP = "s28", "s29", "s30", "s31", "s32", "s33", "s34", "s35"
sEx = "s[36:37]"
sRec = "s38"; sOff2 = "s39"
TSB = 40
sTm = "s[56:57]"
sJ2m = "s[58:59]"
PTR = dict(x=64, ckv=66, wq=68, wuk=70, wuv=72, wo=74, bx=76, wg=78, wu=80, wd=82, out=84, dbg=86, ws=88)

def srd(n): return f"s[{n}:{n+3}]"
def vr(a, n=1): return f"v{a}" if n == 1 else f"v[{a}:{a+n-1}]"

class G(Asm):
    def __init__(self, opt):
        super().__init__(); self.o = opt; self.nl = 0
    def label(self, base):
        self.nl += 1; return f"L{self.nl}_{base}"
    def mksrd(self, d, name, size=None):
        p = PTR[name]
        self(f"s_mov_b64 s[{d}:{d+1}], s[{p}:{p+1}]\ns_mov_b32 s{d+2}, {size or SZ[name]}\ns_mov_b32 s{d+3}, 0x20000")
    def ts(self, i):
        if self.o.get("ts"):
            self(f"s_memrealtime {sTm}\ns_waitcnt lgkmcnt(0)\ns_mov_b32 s{TSB+i}, s56")
    def nop(self, n):
        while n > 0:
            k = min(n, 16); self(f"s_nop {k-1}"); n -= k
    def tag(self, regs):
        for r in regs: self(f"v_bfi_b32 v{r}, {sMsk}, v{self.vTag}, v{r}")
    def chk(self, acc, regs):
        self(f"v_xor_b32 v{acc}, {sTag}, v{regs[0]}")
        for r in regs[1:]: self(f"v_bitop3_b32 v{acc}, v{acc}, v{r}, {sTag} bitop3:0xf6")
        self(f"v_and_b32 v{acc}, {sMsk}, v{acc}\nv_cmp_ne_u32 vcc, 0, v{acc}")
    def poll_begin(self, name):
        L = self.label(name); self(f"s_mov_b32 {sCnt}, 0\n{L}:"); return L
    def poll_end(self, L):
        D = self.label("ok")
        self(f"s_cbranch_vccz {D}\ns_add_u32 {sCnt}, {sCnt}, 1\ns_cmp_lt_u32 {sCnt}, {MAXPOLL}\ns_cbranch_scc1 {L}\n{D}:")
    def allred16(self, op, v, steps=(8, 4, 2, 1)):
        for s in steps:
            self(f"s_nop 1\n{op}_dpp v{v}, v{v}, v{v} row_ror:{s} row_mask:0xf bank_mask:0xf")
    def swapred(self, op, v, t, which):
        self(f"v_mov_b32 v{t}, v{v}\ns_nop 1\nv_permlane{which}_swap_b32 v{v}, v{t}\ns_nop 1\n{op} v{v}, v{v}, v{t}")
    def finish(self):
        if self.o.get("ts"):
            self.ts(15)
            self(f"s_mov_b64 exec, -1\nv_mov_b32 v1, 0")
            for i in range(16): self(f"v_writelane_b32 v1, s{TSB+i}, {i}")
            self(f"""
            s_lshl_b32 {sT0}, s2, 2
            s_add_u32 {sT0}, {sT0}, {sW}
            s_lshl_b32 {sT0}, {sT0}, 6
            s_add_u32 {sT0}, {sT0}, {WS['TS']}
            v_lshlrev_b32 v2, 2, v0
            s_mov_b64 exec, 0xffff
            buffer_store_dword v1, v2, {srd(SRD_WS)}, {sT0} offen
            """)
        self("s_endpgm")

def dma(g, voff, s, soff, flags=""):
    g(f"buffer_load_dwordx4 v{voff}, {srd(s)}, {soff} offen {flags} lds")

def dma_loop(g, n, voff, s, step_src, step_lds=4096, flags=""):
    L = g.label("dma")
    g(f"s_mov_b32 {sK}, {n}\n{L}:")
    dma(g, voff, s, sOff, flags)
    g(f"""
    s_add_u32 {sOff}, {sOff}, {step_src}
    s_add_u32 m0, m0, {step_lds}
    s_sub_u32 {sK}, {sK}, 1
    s_cmp_lg_u32 {sK}, 0
    s_cbranch_scc1 {L}
    """)

def epoch_regs(g):
    g(f"s_add_u32 {sE}, {sE}, 1\ns_movk_i32 {sMsk}, 0xfff\ns_and_b32 {sTag}, {sE}, {sMsk}\nv_mov_b32 v{g.vTag}, {sTag}")

def role_w(g):
    o = g.o
    vLR, vCB, vTB, vXB, vTag = 1, 2, 3, 4, 5
    g.vTag = vTag
    T = 6
    g(f"""
    s_lshr_b32 {sT0}, s2, 5
    s_lshl_b32 {sT0}, {sT0}, 3
    s_and_b32 {sH}, s2, 7
    s_add_u32 {sH}, {sH}, {sT0}
    s_bfe_u32 {sJ}, s2, 0x20003
    s_lshr_b32 {sT0}, {sW}, 1
    s_lshl_b32 {sT0}, {sT0}, 4
    s_and_b32 {sT1}, {sW}, 1
    s_lshl_b32 {sT1}, {sT1}, 2
    s_add_u32 {sT0}, {sT0}, {sT1}
    v_lshrrev_b32 v{T}, 3, v0
    v_and_b32 v{T+1}, 3, v{T}
    v_lshrrev_b32 v{T+2}, 5, v0
    v_lshl_add_u32 v{vLR}, v{T+2}, 3, v{T+1}
    v_add_u32 v{vLR}, {sT0}, v{vLR}
    v_and_b32 v{T}, 6, v{T}
    v_and_b32 v{T+1}, 7, v0
    v_xor_b32 v{T}, v{T}, v{T+1}
    v_lshlrev_b32 v{vCB}, 4, v{T}
    v_lshl_add_u32 v{T+3}, v{vLR}, 13, v{vCB}
    v_lshlrev_b32 v{T+4}, 2, v0
    s_lshr_b32 {sT0}, {sJ}, 1
    s_mul_i32 {sT0}, {sT0}, {320*8192}
    s_and_b32 {sT1}, {sJ}, 1
    s_lshl_b32 {sT1}, {sT1}, 7
    s_lshl_b32 {sT2}, {sH}, 8
    s_add_u32 {sOff}, {sT0}, {sT1}
    s_add_u32 {sOff}, {sOff}, {sT2}
    s_lshl_b32 {sT3}, {sW}, 10
    s_add_u32 m0, {sT3}, {IMG}
    s_mul_i32 {sT0}, {sW}, 1280
    s_waitcnt lgkmcnt(0)
    """)
    g.mksrd(SRD_C, "x"); g.mksrd(SRD_A, "wq")
    X = 112
    for i in range(5):
        g(f"buffer_load_dword v{X+i}, v{T+4}, {srd(SRD_C)}, {sT0} offen offset:{i*256}")
    dma_loop(g, 10, T+3, SRD_A, 32*8192, flags=o.get("wq_flags", ""))
    g.mksrd(SRD_WS, "ws", WS_USED); g.mksrd(SRD_B, "wuk")
    g(f"s_load_dword {sE}, s[88:89], 0")
    g.ts(1)
    Lskip = g.label("noln")
    g(f"s_cmp_ge_u32 {sW}, 2\ns_cbranch_scc1 {Lskip}")
    V = 118
    g("s_waitcnt vmcnt(10)")
    for i in range(5):
        g(f"v_lshlrev_b32 v{V+2*i}, 16, v{X+i}\nv_and_b32 v{V+2*i+1}, 0xffff0000, v{X+i}")
    g(f"v_add_f32 v{T}, v{V}, v{V+1}")
    for i in range(2, 10): g(f"v_add_f32 v{T}, v{T}, v{V+i}")
    g.allred16("v_add_f32", T); g.swapred("v_add_f32", T, T+1, 16); g.swapred("v_add_f32", T, T+1, 32)
    g(f"v_mul_f32 v{T}, {1/640!r}, v{T}")
    for i in range(10): g(f"v_sub_f32 v{V+i}, v{V+i}, v{T}")
    g(f"v_mul_f32 v{T+2}, v{V}, v{V}")
    for i in range(1, 10): g(f"v_fmac_f32 v{T+2}, v{V+i}, v{V+i}")
    g.allred16("v_add_f32", T+2); g.swapred("v_add_f32", T+2, T+1, 16); g.swapred("v_add_f32", T+2, T+1, 32)
    g(f"""
    v_mul_f32 v{T+2}, {1/640!r}, v{T+2}
    v_cvt_pk_bf16_f32 v{T+1}, v{T}, v{T+2}
    v_and_b32 v{T+2}, 0xffff0000, v{T+1}
    v_lshlrev_b32 v{T+1}, 16, v{T+1}
    v_add_f32 v{T+2}, 1e-5, v{T+2}
    v_cvt_pk_bf16_f32 v{T+2}, v{T+2}, v{T+2}
    v_and_b32 v{T+2}, 0xffff0000, v{T+2}
    v_sqrt_f32 v{T+2}, v{T+2}
    v_sub_f32 v{T}, v{T}, v{T+1}
    v_cvt_pk_bf16_f32 v{T+2}, v{T+2}, v{T+2}
    v_and_b32 v{T+2}, 0xffff0000, v{T+2}
    v_rcp_f32 v{T+2}, v{T+2}
    s_mul_i32 {sT0}, {sW}, {XNP}
    v_add_u32 v{T+5}, {sT0}, v{T+4}
    v_mul_f32 v{T}, v{T}, v{T+2}
    """)
    for i in range(10): g(f"v_fma_f32 v{V+i}, v{V+i}, v{T+2}, v{T}")
    for i in range(5):
        g(f"v_cvt_pk_bf16_f32 v{X+i}, v{V+2*i}, v{V+2*i+1}\nds_write_b32 v{T+5}, v{X+i} offset:{XN+i*256}")
    g(f"{Lskip}:")
    U = 16
    g(f"""
    s_waitcnt lgkmcnt(0)
    v_lshrrev_b32 v{T}, 4, v0
    v_and_b32 v{T+1}, 15, v0
    v_xor_b32 v{T+2}, v{T}, v{T+1}
    v_lshlrev_b32 v{T+2}, 4, v{T+2}
    v_lshl_add_u32 v{U}, v{T}, 13, v{T+2}
    v_xor_b32 v{U+1}, 64, v{U}
    v_xor_b32 v{U+2}, 0x80, v{U}
    v_xor_b32 v{U+3}, 0xc0, v{U}
    s_lshl_b32 {sT0}, {sJ}, 2
    s_add_u32 {sT0}, {sT0}, {sW}
    s_lshl_b32 {sT0}, {sT0}, 18
    s_lshl_b32 {sT2}, {sH}, 8
    s_add_u32 {sOff}, {sT0}, {sT2}
    s_lshl_b32 {sT0}, {sW}, 13
    s_add_u32 m0, {sT0}, {UKIMG}
    """)
    for u in range(8):
        g(f"s_add_u32 {sOff2}, {sOff}, {(8*(u&3)+4*(u>>2))*8192}")
        dma(g, U+(u & 3), SRD_B, sOff2, o.get("wuk_flags", ""))
        if u < 7: g("s_add_u32 m0, m0, 1024")
    epoch_regs(g)
    vUA = 20
    g(f"""
    v_lshl_add_u32 v{vUA}, v{T+1}, 8, v{T+2}
    v_add_u32 v{vUA}, {sT0}, v{vUA}
    v_and_b32 v{T+3}, 1, v0
    v_mul_u32_u24 v{vXB}, {XNP}, v{T+3}
    v_lshl_add_u32 v{vXB}, v{T}, 4, v{vXB}
    v_bfe_u32 v{T+4}, v0, 2, 3
    v_lshrrev_b32 v{T+5}, 5, v0
    v_lshl_add_u32 v{T+5}, v{T+5}, 4, v{T+4}
    v_lshrrev_b32 v{T+4}, 1, v{T+4}
    v_xor_b32 v{T+4}, {sW}, v{T+4}
    v_lshlrev_b32 v{T+4}, 5, v{T+4}
    v_lshl_add_u32 v{vTB}, v{T+5}, 7, v{T+4}
    v_and_b32 v{T+4}, 3, v0
    v_lshl_add_u32 v{vTB}, v{T+4}, 3, v{vTB}
    v_cmp_gt_u32 {sJ2m}, 2, v{T+1}
    v_mov_b32 v{T+6}, 0
    v_lshlrev_b32 v{T+7}, 2, v0
    v_and_b32 v{T+7}, 0x7c, v{T+7}
    ds_write_b32 v{T+7}, v{T+6} offset:{ZERO}
    s_lshr_b32 {sT0}, {sJ}, 1
    s_mul_i32 {sT0}, {sT0}, 640
    v_add_u32 v{T+8}, {sT0}, v{vXB}
    """)
    g.ts(2)
    AF, BF, D = 32, 72, 24
    g("s_waitcnt vmcnt(8) lgkmcnt(0)\ns_barrier")
    g.ts(3)
    def rd(s):
        g(f"ds_read_b64_tr_b16 {vr(AF+4*s,2)}, v{vTB} offset:{IMG+s*4096}")
        g(f"ds_read_b64_tr_b16 {vr(AF+4*s+2,2)}, v{vTB} offset:{IMG+s*4096+1024}")
        g(f"ds_read_b128 {vr(BF+4*s,4)}, v{T+8} offset:{XN+s*64}")
    for s in range(5): rd(s)
    for s in range(10):
        rem = min(9, s+4) - s
        g(f"s_waitcnt lgkmcnt({3*rem})")
        g(f"v_mfma_f32_16x16x32_bf16 {vr(D,4)}, {vr(AF+4*s,4)}, {vr(BF+4*s,4)}, {vr(D,4) if s else 0}")
        if s+5 < 10: rd(s+5)
    g(f"""
    s_lshl_b32 {sOff}, {sH}, 11
    s_add_u32 {sOff}, {sOff}, {WS['QP']}
    s_lshl_b32 {sT0}, {sJ}, 9
    s_lshl_b32 {sT1}, {sW}, 7
    s_add_u32 {sT0}, {sT0}, {sT1}
    s_add_u32 {sOff2}, {sOff}, {sT0}
    v_lshlrev_b32 v{T+9}, 6, v{T+3}
    v_lshl_add_u32 v{T+9}, v{T}, 4, v{T+9}
    v_lshlrev_b32 v{T+4}, 4, v0
    """)
    g.tag(range(D, D+4))
    g(f"""
    s_mov_b64 exec, {sJ2m}
    buffer_store_dwordx4 {vr(D,4)}, v{T+9}, {srd(SRD_WS)}, {sOff2} offen sc1
    s_mov_b64 exec, -1
    v_bfe_u32 v{T+5}, v0, 2, 1
    v_mul_u32_u24 v{T+5}, 320, v{T+5}
    v_lshrrev_b32 v{T+6}, 3, v0
    v_lshl_add_u32 v{T+5}, v{T+6}, 5, v{T+5}
    v_and_b32 v{T+6}, 3, v0
    v_lshl_add_u32 v{T+5}, v{T+6}, 3, v{T+5}
    v_add_u32 v{T+5}, {sT3}, v{T+5}
    v_mul_u32_u24 v{T+6}, 320, v{T+3}
    v_lshl_add_u32 v{T+6}, v{T}, 4, v{T+6}
    v_add_u32 v{T+6}, {sT3}, v{T+6}
    v_xor_b32 v{vUA+1}, 64, v{vUA}
    v_xor_b32 v{vUA+2}, 0x80, v{vUA}
    v_xor_b32 v{vUA+3}, 0xc0, v{vUA}
    s_waitcnt vmcnt(1)
    """)
    g.ts(4)
    for tl in range(2):
        for s in range(4):
            g(f"ds_read_b128 {vr(AF+16*tl+4*s,4)}, v{vUA+s} offset:{UKIMG+tl*4096}")
    P0 = 72
    L = g.poll_begin("qp")
    g(f"""
    buffer_load_dwordx4 {vr(P0,4)}, v{T+4}, {srd(SRD_WS)}, {sOff} offen sc1
    buffer_load_dwordx4 {vr(P0+4,4)}, v{T+4}, {srd(SRD_WS)}, {sOff} offen offset:1024 sc1
    s_waitcnt vmcnt(0)
    """)
    g.chk(T+7, list(range(P0, P0+8))); g.poll_end(L)
    g.ts(5)
    for r in range(4): g(f"v_add_f32 v{P0+r}, v{P0+r}, v{P0+4+r}")
    g(f"""
    v_cvt_pk_bf16_f32 v{P0}, v{P0}, v{P0+1}
    v_cvt_pk_bf16_f32 v{P0+1}, v{P0+2}, v{P0+3}
    ds_write_b64 v{T+5}, {vr(P0,2)} offset:{QS}
    s_waitcnt lgkmcnt(0)
    """)
    QB = 80
    for s in range(4): g(f"ds_read_b128 {vr(QB+4*s,4)}, v{T+6} offset:{QS+s*64}")
    for s in range(4):
        g(f"s_waitcnt lgkmcnt({3-s})")
        for tl in range(2):
            g(f"v_mfma_f32_16x16x32_bf16 {vr(D+4*tl,4)}, {vr(AF+16*tl+4*s,4)}, {vr(QB+4*s,4)}, {vr(D+4*tl,4) if s else 0}")
    g(f"""
    v_lshlrev_b32 v{T+5}, 8, v{T+3}
    v_lshl_add_u32 v{T+5}, v{T}, 4, v{T+5}
    s_lshl_b32 {sT0}, {sW}, 6
    v_add_u32 v{T+5}, {sT0}, v{T+5}
    s_mov_b32 {sT1}, {128**-0.5*LOG2E!r}
    v_lshlrev_b32 v{T+6}, 4, v{T+1}
    v_lshl_add_u32 v{T+6}, v{T}, 15, v{T+6}
    s_lshl_b32 {sT0}, {sJ}, 5
    s_add_u32 {sT0}, {sT0}, {sH}
    s_lshl_b32 {sOff}, {sT0}, 8
    s_add_u32 {sOff}, {sOff}, {WS['QA']}
    s_lshl_b32 {sOff2}, {sT0}, 7
    s_add_u32 {sOff2}, {sOff2}, {WS['QC']}
    """)
    for r in range(8): g(f"v_mul_f32 v{D+r}, {sT1}, v{D+r}")
    for r in range(4): g(f"v_cvt_pk_bf16_f32 v{P0+r}, v{D+2*r}, v{D+2*r+1}")
    Lp = g.label("nopub")
    g(f"""
    s_mov_b64 exec, {sJ2m}
    ds_write_b128 v{T+5}, {vr(P0,4)} offset:{QO}
    s_mov_b64 exec, -1
    s_waitcnt lgkmcnt(0)
    s_barrier
    s_cmp_lg_u32 {sW}, 0
    s_cbranch_scc1 {Lp}
    s_mov_b32 exec_hi, 0
    ds_read_b128 {vr(P0,4)}, v{T+4} offset:{QO}
    v_lshlrev_b32 v{T+8}, 2, v{T}
    s_waitcnt lgkmcnt(0)
    buffer_store_dwordx4 {vr(P0,4)}, v{T+6}, {srd(SRD_WS)}, {sOff} offen sc1
    v_add3_u32 v{T+7}, v{P0}, v{P0+1}, v{P0+2}
    v_add_u32 v{T+7}, v{T+7}, v{P0+3}
    """)
    g.allred16("v_add_u32", T+7)
    g(f"""
    v_add_u32 v{T+7}, {sE}, v{T+7}
    s_mov_b64 exec, 0x10001
    buffer_store_dword v{T+7}, v{T+8}, {srd(SRD_WS)}, {sOff2} offen sc1
    s_mov_b64 exec, -1
    """)
    g.ts(6)
    g(f"s_waitcnt vmcnt(0)\n{Lp}:\ns_barrier")
    g.ts(7)
    Lf, Lend = g.label("F"), g.label("Wend")
    AM = 16
    g(f"""
    s_cmp_ge_u32 s2, 118
    s_cbranch_scc1 {Lend}
    s_cmp_ge_u32 s2, 64
    s_cbranch_scc1 {Lf}
    """)
    def gemm2_addrs():
        g(f"""
        v_mul_u32_u24 v{T+5}, 192, v{T+3}
        v_lshl_add_u32 v{T+5}, v{T}, 4, v{T+5}
        v_add_u32 v{T+5}, {CX}, v{T+5}
        v_mov_b32 v{T+6}, {ZERO}
        v_lshrrev_b32 v{T+7}, 1, v{T+1}
        """)
        for i in range(8):
            g(f"v_cmp_eq_u32 vcc, {i}, v{T+7}\ns_nop 1\nv_cndmask_b32 v{AM+i}, v{T+6}, v{T+5}, vcc")
        g(f"""
        v_lshrrev_b32 v{T+5}, 3, v0
        v_and_b32 v{T+6}, 7, v0
        v_lshlrev_b32 v{T+6}, 4, v{T+6}
        v_lshl_add_u32 v{T+9}, v{T+5}, 13, v{T+6}
        """)
    def gemm2(WF, nk, AR, region, slot_sub):
        for kk in range(nk):
            for i in range(8):
                g(f"ds_read_b128 {vr(AR+4*(8*kk+i),4)}, v{AM+i} offset:{kk*64}")
        g(f"""
        s_mul_i32 {sT0}, {sW}, {10*8192}
        s_sub_u32 {sT1}, s2, {slot_sub}
        s_lshl_b32 {sT1}, {sT1}, 7
        s_add_u32 {sOff}, {sT0}, {sT1}
        s_add_u32 {sOff}, {sOff}, {WS[region]}
        s_add_u32 {sOff2}, {sOff}, {8*8192}
        """)
        n = 8*nk; first0 = first1 = True
        for idx in range(n):
            kk, i = idx >> 3, idx & 7
            g(f"s_waitcnt lgkmcnt({min(15, n-1-idx)})")
            g(f"v_mfma_f32_16x16x32_bf16 {vr(D,4)}, {vr(AR+4*idx,4)}, {vr(WF+4*(nk*i+kk),4)}, {0 if first0 else vr(D,4)}"); first0 = False
            if i < 2:
                g(f"v_mfma_f32_16x16x32_bf16 {vr(D+4,4)}, {vr(AR+4*idx,4)}, {vr(WF+4*(nk*(8+i)+kk),4)}, {0 if first1 else vr(D+4,4)}"); first1 = False
        g.tag(range(D+4, D+8))
        g(f"""
        s_mov_b64 exec, 0xffff
        buffer_store_dwordx4 {vr(D+4,4)}, v{T+9}, {srd(SRD_WS)}, {sOff2} offen sc1
        s_mov_b64 exec, -1
        s_nop 0
        """)
        g.tag(range(D, D+4))
        g(f"buffer_store_dwordx4 {vr(D,4)}, v{T+9}, {srd(SRD_WS)}, {sOff} offen sc1")

    g(f"""
    s_and_b32 {sH}, s2, 31
    s_lshr_b32 {sJ}, s2, 5
    s_and_b32 {sT0}, {sW}, 1
    s_lshr_b32 {sT1}, {sW}, 1
    s_lshl_b32 {sT1}, {sT1}, 2
    s_add_u32 {sT0}, {sT0}, {sT1}
    v_lshrrev_b32 v{T+5}, 5, v0
    v_lshl_add_u32 v{T+5}, v{T+5}, 1, {sT0}
    v_bfe_u32 v{T+6}, v0, 3, 1
    v_lshl_add_u32 v{T+5}, v{T+6}, 5, v{T+5}
    v_bfe_u32 v{T+6}, v0, 4, 1
    v_lshl_add_u32 v{T+5}, v{T+6}, 4, v{T+5}
    v_lshl_add_u32 v{T+5}, v{T+5}, 13, v{vCB}
    s_lshl_b32 {sOff}, {sH}, 8
    s_lshl_b32 {sT0}, {sJ}, 7
    s_add_u32 {sOff}, {sOff}, {sT0}
    s_add_u32 m0, {sT3}, {IMG}
    """)
    g.mksrd(SRD_A, "wuv"); g.mksrd(SRD_B, "wo")
    L = g.label("uv")
    g(f"s_mov_b32 {sK}, 8\n{L}:")
    dma(g, T+5, SRD_A, sOff, o.get("late_flags", ""))
    g(f"s_add_u32 {sOff}, {sOff}, {8*8192}\ns_add_u32 m0, m0, 4096\ns_sub_u32 {sK}, {sK}, 1")
    dma(g, T+5, SRD_A, sOff, o.get("late_flags", ""))
    g(f"s_add_u32 {sOff}, {sOff}, {56*8192}\ns_add_u32 m0, m0, 4096\ns_cmp_lg_u32 {sK}, 0\ns_cbranch_scc1 {L}")
    g(f"""
    v_mul_u32_u24 v{T+6}, 1280, v{vLR}
    v_add_u32 v{T+6}, v{T+6}, v{vCB}
    s_lshl_b32 {sT0}, {sH}, 1
    s_add_u32 {sT0}, {sT0}, {sJ}
    s_mul_i32 {sOff}, {sT0}, {64*1280}
    """)
    L = g.label("wo")
    g(f"s_mov_b32 {sK}, 10\n{L}:")
    dma(g, T+6, SRD_B, sOff, o.get("late_flags", ""))
    g(f"s_add_u32 {sOff2}, {sOff}, {32*1280}\ns_add_u32 m0, m0, 4096\ns_sub_u32 {sK}, {sK}, 1")
    dma(g, T+6, SRD_B, sOff2, o.get("late_flags", ""))
    g(f"s_add_u32 {sOff}, {sOff}, 128\ns_add_u32 m0, m0, 4096\ns_cmp_lg_u32 {sK}, 0\ns_cbranch_scc1 {L}")
    g.ts(8)
    gemm2_addrs()
    UV, WO, BR = 32, 96, 176
    vTB1, vTB2, vTB3 = 240, 241, 242
    vCLo, vCSo, vCLw, vCLr, vCXw = 243, 244, 245, 246, 247
    g(f"""
    v_add_u32 v{vTB1}, {IMG}, v{vTB}
    v_add_u32 v{vTB2}, {IMG+65536}, v{vTB}
    v_add_u32 v{vTB3}, {IMG+131072}, v{vTB}
    s_lshl_b32 {sOff}, {sH}, 14
    s_lshr_b32 {sT0}, {sW}, 1
    s_lshl_b32 {sT1}, {sT0}, 13
    s_add_u32 {sOff}, {sOff}, {sT1}
    s_and_b32 {sT1}, {sW}, 1
    s_lshl_b32 {sT2}, {sT1}, 10
    s_add_u32 {sOff}, {sOff}, {sT2}
    s_add_u32 {sOff}, {sOff}, {WS['CL']}
    s_add_u32 {sRec}, {sOff}, 4096
    v_lshlrev_b32 v{vCLo}, 4, v0
    s_lshl_b32 {sOff2}, {sT0}, 12
    s_lshr_b32 {sT2}, {sH}, 2
    s_lshl_b32 {sT2}, {sT2}, 7
    s_add_u32 {sOff2}, {sOff2}, {sT2}
    s_and_b32 {sT2}, {sH}, 3
    s_lshl_b32 {sT2}, {sT2}, 4
    s_add_u32 {sOff2}, {sOff2}, {sT2}
    s_add_u32 {sOff2}, {sOff2}, {WS['CS']}
    v_and_b32 v{vCSo}, 3, v0
    v_lshlrev_b32 v{vCSo}, 10, v{vCSo}
    s_mul_i32 {sT0}, {sT0}, 1088
    s_lshl_b32 {sT1}, {sT1}, 9
    s_add_u32 {sT0}, {sT0}, {sT1}
    v_lshl_add_u32 v{vCLw}, v0, 3, {sT0}
    v_mul_u32_u24 v{vCLr}, 1088, v{T+3}
    v_lshl_add_u32 v{vCLr}, v{T}, 4, v{vCLr}
    v_mul_u32_u24 v{vCXw}, 192, v{T+3}
    v_lshl_add_u32 v{vCXw}, v{T}, 3, v{vCXw}
    s_lshl_b32 {sT0}, {sW}, 5
    v_add_u32 v{vCXw}, {sT0}, v{vCXw}
    s_waitcnt vmcnt(20)
    s_barrier
    """)
    for s in range(16):
        for t in range(2):
            g(f"ds_read_b64_tr_b16 {vr(UV+4*s+2*t,2)}, v{vTB1} offset:{s*4096+t*1024}")
    g("s_waitcnt vmcnt(0)\ns_barrier")
    g.ts(9)
    for idx in range(20):
        for t in range(2):
            off = idx*4096 + t*1024
            b = vTB2 if off < 65536 else vTB3
            g(f"ds_read_b64_tr_b16 {vr(WO+4*idx+2*t,2)}, v{b} offset:{off & 0xffff}")
    C0, S0 = BR, BR+16
    L = g.poll_begin("cl")
    g(f"""
    buffer_load_dwordx4 {vr(S0,4)}, v{vCSo}, {srd(SRD_WS)}, {sOff2} offen sc1
    buffer_load_dwordx4 {vr(C0,4)}, v{vCLo}, {srd(SRD_WS)}, {sOff} offen sc1
    buffer_load_dwordx4 {vr(C0+4,4)}, v{vCLo}, {srd(SRD_WS)}, {sOff} offen offset:2048 sc1
    buffer_load_dwordx4 {vr(C0+8,4)}, v{vCLo}, {srd(SRD_WS)}, {sRec} offen sc1
    buffer_load_dwordx4 {vr(C0+12,4)}, v{vCLo}, {srd(SRD_WS)}, {sRec} offen offset:2048 sc1
    s_waitcnt vmcnt(4)
    v_max_f32_dpp v{T+5}, v{S0}, v{S0} quad_perm:[1,0,3,2] row_mask:0xf bank_mask:0xf
    s_nop 1
    v_max_f32_dpp v{T+5}, v{T+5}, v{T+5} quad_perm:[2,3,0,1] row_mask:0xf bank_mask:0xf
    v_sub_f32 v{T+5}, v{S0}, v{T+5}
    v_exp_f32 v{T+5}, v{T+5}
    s_nop 1
    v_add_f32_dpp v{T+6}, v{T+5}, v{T+5} quad_perm:[1,0,3,2] row_mask:0xf bank_mask:0xf
    s_nop 1
    v_add_f32_dpp v{T+6}, v{T+6}, v{T+6} quad_perm:[2,3,0,1] row_mask:0xf bank_mask:0xf
    v_rcp_f32 v{T+6}, v{T+6}
    s_nop 0
    v_mul_f32 v{T+5}, v{T+5}, v{T+6}
    s_waitcnt vmcnt(0)
    """)
    g.chk(T+7, [S0+1, S0+2, S0+3] + list(range(C0, C0+16))); g.poll_end(L)
    g.ts(10)
    for r in range(4):
        g(f"v_mul_f32_dpp v{S0+r}, v{T+5}, v{C0+r} quad_perm:[0,0,0,0] row_mask:0xf bank_mask:0xf")
    for i in range(1, 4):
        for r in range(4):
            g(f"v_fmac_f32_dpp v{S0+r}, v{T+5}, v{C0+4*i+r} quad_perm:[{i},{i},{i},{i}] row_mask:0xf bank_mask:0xf")
    g(f"""
    v_cvt_pk_bf16_f32 v{S0}, v{S0}, v{S0+1}
    v_cvt_pk_bf16_f32 v{S0+1}, v{S0+2}, v{S0+3}
    ds_write_b64 v{vCLw}, {vr(S0,2)} offset:{CLB}
    s_waitcnt lgkmcnt(0)
    s_barrier
    """)
    for s in range(16): g(f"ds_read_b128 {vr(BR+4*s,4)}, v{vCLr} offset:{CLB+s*64}")
    for s in range(16):
        g(f"s_waitcnt lgkmcnt({15-s})")
        g(f"v_mfma_f32_16x16x32_bf16 {vr(D,4)}, {vr(UV+4*s,4)}, {vr(BR+4*s,4)}, {vr(D,4) if s else 0}")
    g.nop(8)
    g(f"""
    v_cvt_pk_bf16_f32 v{D}, v{D}, v{D+1}
    v_cvt_pk_bf16_f32 v{D+1}, v{D+2}, v{D+3}
    s_mov_b64 exec, {sJ2m}
    ds_write_b64 v{vCXw}, {vr(D,2)} offset:{CX}
    s_mov_b64 exec, -1
    s_waitcnt lgkmcnt(0)
    s_barrier
    """)
    g.ts(11)
    gemm2(WO, 2, BR, "SP", 0)
    g.ts(12)
    g(f"s_branch {Lend}")

    g(f"""
    {Lf}:
    s_sub_u32 {sH}, s2, 64
    s_and_b32 {sJ}, {sH}, 1
    v_mul_u32_u24 v{T+6}, 1280, v{vLR}
    v_add_u32 v{T+6}, v{T+6}, v{vCB}
    s_mul_i32 {sOff}, {sH}, {32*1280}
    s_add_u32 m0, {sT3}, {IMG}
    """)
    g.mksrd(SRD_B, "wd")
    dma_loop(g, 10, T+6, SRD_B, 128, flags=o.get("late_flags", ""))
    g(f"""
    s_cmp_eq_u32 {sJ}, 0
    s_cselect_b64 s[{SRD_A}:{SRD_A+1}], s[{PTR['wg']}:{PTR['wg']+1}], s[{PTR['wu']}:{PTR['wu']+1}]
    s_mov_b32 s{SRD_A+2}, {SZ['wg']}
    s_mov_b32 s{SRD_A+3}, 0x20000
    v_mul_u32_u24 v{T+5}, 3456, v{vLR}
    v_add_u32 v{T+5}, v{T+5}, v{vCB}
    s_lshr_b32 {sOff}, {sH}, 1
    s_lshl_b32 {sOff}, {sOff}, 7
    """)
    dma_loop(g, 20, T+5, SRD_A, 32*3456, flags=o.get("late_flags", ""))
    g.ts(8)
    gemm2_addrs()
    WD, XF, GF = 32, 72, 152
    g(f"""
    v_add_u32 v{vTB1}, {IMG}, v{vTB}
    v_add_u32 v{vTB2}, {IMG+40960}, v{vTB}
    v_add_u32 v{vTB3}, {IMG+40960+65536}, v{vTB}
    v_lshlrev_b32 v{vCLo}, 6, v{T+3}
    v_lshl_add_u32 v{vCLo}, v{T}, 4, v{vCLo}
    s_lshl_b32 {sOff}, {sH}, 8
    s_and_b32 {sT1}, {sW}, 1
    s_lshl_b32 {sT0}, {sT1}, 7
    s_add_u32 {sOff}, {sOff}, {sT0}
    s_add_u32 {sOff}, {sOff}, {WS['FX']}
    s_xor_b32 {sOff2}, {sOff}, 256
    v_mul_u32_u24 v{vCXw}, 192, v{T+3}
    v_lshl_add_u32 v{vCXw}, v{T}, 3, v{vCXw}
    s_lshl_b32 {sT0}, {sT1}, 5
    v_add_u32 v{vCXw}, {sT0}, v{vCXw}
    """)
    for s in range(20): g(f"ds_read_b128 {vr(XF+4*s,4)}, v{vXB} offset:{XN+s*64}")
    g("s_waitcnt vmcnt(20)\ns_barrier")
    for blk in range(10):
        for t in range(2):
            g(f"ds_read_b64_tr_b16 {vr(WD+4*blk+2*t,2)}, v{vTB1} offset:{blk*4096+t*1024}")
    g("s_waitcnt vmcnt(0)\ns_barrier")
    g.ts(9)
    def rdg(s):
        for t in range(2):
            off = s*4096 + t*1024
            b = vTB2 if off < 65536 else vTB3
            g(f"ds_read_b64_tr_b16 {vr(GF+4*s+2*t,2)}, v{b} offset:{off & 0xffff}")
    for s in range(7): rdg(s)
    for s in range(20):
        rem = min(19, s+6) - s
        g(f"s_waitcnt lgkmcnt({2*rem})")
        g(f"v_mfma_f32_16x16x32_bf16 {vr(D,4)}, {vr(GF+4*s,4)}, {vr(XF+4*s,4)}, {vr(D,4) if s else 0}")
        if s+7 < 20: rdg(s+7)
    Lk, Lj = g.label("keep"), g.label("fjoin")
    g(f"""
    s_lshr_b32 {sT0}, {sW}, 1
    s_cmp_eq_u32 {sT0}, {sJ}
    s_cbranch_scc1 {Lk}
    s_nop 4
    """)
    g.tag(range(D, D+4))
    g(f"""
    s_mov_b64 exec, {sJ2m}
    buffer_store_dwordx4 {vr(D,4)}, v{vCLo}, {srd(SRD_WS)}, {sOff} offen sc1
    s_mov_b64 exec, -1
    s_branch {Lj}
    {Lk}:
    """)
    L = g.poll_begin("fx")
    g(f"buffer_load_dwordx4 {vr(D+4,4)}, v{vCLo}, {srd(SRD_WS)}, {sOff2} offen sc1\ns_waitcnt vmcnt(0)")
    g.chk(T+7, list(range(D+4, D+8))); g.poll_end(L)
    g.ts(10)
    g(f"s_cmp_eq_u32 {sJ}, 0\ns_cselect_b64 vcc, -1, 0\ns_nop 1")
    c1 = -2*0.7978845608028654*LOG2E
    for r in range(4):
        g(f"v_cndmask_b32 v{XF+r}, v{D+4+r}, v{D+r}, vcc\nv_cndmask_b32 v{XF+4+r}, v{D+r}, v{D+4+r}, vcc")
    g(f"s_mov_b32 {sT0}, {c1*0.044715!r}\nv_mov_b32 v{T+5}, {c1!r}")
    for r in range(4): g(f"v_mul_f32 v{XF+8+r}, v{XF+r}, v{XF+r}")
    for r in range(4): g(f"v_fma_f32 v{XF+8+r}, v{XF+8+r}, {sT0}, v{T+5}")
    for r in range(4): g(f"v_mul_f32 v{XF+8+r}, v{XF+8+r}, v{XF+r}")
    for r in range(4): g(f"v_exp_f32 v{XF+8+r}, v{XF+8+r}")
    for r in range(4): g(f"v_add_f32 v{XF+8+r}, 1.0, v{XF+8+r}")
    for r in range(4): g(f"v_rcp_f32 v{XF+8+r}, v{XF+8+r}")
    for r in range(4): g(f"v_mul_f32 v{XF+r}, v{XF+r}, v{XF+8+r}")
    for r in range(4): g(f"v_mul_f32 v{XF+r}, v{XF+r}, v{XF+4+r}")
    g(f"""
    v_cvt_pk_bf16_f32 v{XF}, v{XF}, v{XF+1}
    v_cvt_pk_bf16_f32 v{XF+1}, v{XF+2}, v{XF+3}
    s_mov_b64 exec, {sJ2m}
    ds_write_b64 v{vCXw}, {vr(XF,2)} offset:{CX}
    s_mov_b64 exec, -1
    {Lj}:
    s_waitcnt lgkmcnt(0)
    s_barrier
    """)
    g.ts(11)
    gemm2(WD, 1, GF, "YP", 64)
    g.ts(12)
    g(f"{Lend}:")
    g.finish()

def role_a(g):
    o = g.o
    T = 6
    vTag = 5; g.vTag = vTag
    vDo, vQo, vL16 = 1, 2, 3
    g(f"""
    s_and_b32 {sGrp}, s2, 7
    s_bfe_u32 {sP}, s2, 0x40003
    v_lshrrev_b32 v{T}, 4, v0
    v_and_b32 v{T+1}, 15, v0
    v_lshl_or_b32 v{T+2}, v{T}, 2, {sW}
    v_xor_b32 v{T+2}, v{T+2}, v{T+1}
    v_lshlrev_b32 v{T+2}, 4, v{T+2}
    s_lshl_b32 {sT0}, {sW}, 2
    v_add_u32 v{T+3}, {sT0}, v{T}
    v_lshl_add_u32 v{vDo}, v{T+3}, 10, v{T+2}
    v_lshl_add_u32 v{vQo}, v{T+3}, 8, v{T+2}
    s_lshl_b32 {sT0}, {sGrp}, 4
    s_add_u32 {sT0}, {sT0}, {sP}
    s_lshl_b32 {sOff}, {sT0}, 17
    s_lshl_b32 {sT3}, {sW}, 10
    s_mov_b32 m0, {sT3}
    s_waitcnt lgkmcnt(0)
    """)
    g.mksrd(SRD_A, "ckv"); g.mksrd(SRD_WS, "ws", WS_USED)
    if o.get("codepf", 1):
        g(f"""
        s_getpc_b64 s[60:61]
        L_pc:
        s_sub_u32 s60, s60, L_pc-{NAME}_kernel
        s_subb_u32 s61, s61, 0
        s_lshl_b32 {sT0}, {sP}, 2
        s_add_u32 {sT0}, {sT0}, {sW}
        s_lshl_b32 {sT0}, {sT0}, 8
        v_lshl_add_u32 v{T+4}, v0, 7, {sT0}
        v_min_u32 v{T+4}, L_codeend-{NAME}_kernel-4, v{T+4}
        s_mov_b64 exec, 3
        global_load_dword v230, v{T+4}, s[60:61]
        s_mov_b64 exec, -1
        """)
    thr, nr = o.get("thr", 2), o.get("nr", 2)
    fl = o.get("ckv_flags", "nt")
    for i in range(32):
        dma(g, vDo, SRD_A, sOff, fl)
        if i == 0: g(f"s_load_dword {sE}, s[88:89], 0\ns_getreg_b32 {sXcc}, hwreg(HW_REG_XCC_ID, 0, 4)\ns_movk_i32 {sK}, 0x4000\ns_movk_i32 {sT2}, 0x1000")
        if i < 31:
            if (i & 7) == 7: g(f"s_sub_u32 {sOff}, {sOff}, {7*16384-256}")
            else: g(f"s_add_u32 {sOff}, {sOff}, {sK}")
            g(f"s_add_u32 m0, m0, {sT2}")
            if thr and (i+1) % thr == 0 and (i+1)//thr <= nr: g("s_waitcnt vmcnt(0)")
            else: g("s_nop 0")
    g("s_waitcnt lgkmcnt(0)")
    g.ts(1)
    epoch_regs(g)
    vCk = 4
    CK = 16
    g(f"""
    v_lshrrev_b32 v{T+4}, 2, v0
    v_lshlrev_b32 v{T+4}, 4, v{T+4}
    v_and_b32 v{T+5}, 3, v0
    s_lshl_b32 {sT0}, {sW}, 2
    v_add3_u32 v{T+4}, v{T+4}, v{T+5}, {sT0}
    v_lshlrev_b32 v{vCk}, 7, v{T+4}
    s_lshr_b32 {sT0}, {sGrp}, 2
    s_lshl_b32 {sOff2}, {sT0}, 2
    s_add_u32 {sOff2}, {sOff2}, {WS['QC']}
    s_lshl_b32 {sRec}, {sT0}, 15
    s_add_u32 {sRec}, {sRec}, {WS['QA']}
    v_lshlrev_b32 v{vL16}, 4, v0
    v_add_u32 v{T+8}, {sT3}, v{vL16}
    v_add_u32 v{T+8}, {QAI}, v{T+8}
    v_mov_b32 v{CK}, 0
    s_mov_b32 {sDone}, 0
    """)
    Lq = g.poll_begin("qa")
    g(f"s_mov_b32 {sOff}, {sRec}\ns_add_u32 m0, {sT3}, {QAI}")
    dma_loop(g, 8, vQo, SRD_WS, 4096, flags="sc1")
    Lnp, Lw = g.label("nopf"), g.label("qw")
    g(f"""
    s_mov_b32 exec_hi, 0
    buffer_load_dword v{CK}, v{vCk}, {srd(SRD_WS)}, {sOff2} offen sc1
    s_mov_b64 exec, -1
    s_cmp_lg_u32 {sCnt}, 0
    s_cbranch_scc1 {Lnp}
    s_lshl_b32 {sT0}, {sGrp}, 4
    s_add_u32 {sT0}, {sT0}, {sP}
    s_lshl_b32 {sT0}, {sT0}, 2
    s_add_u32 {sT0}, {sT0}, {sW}
    s_lshl_b32 {sH}, {sT0}, 13
    s_add_u32 {sH}, {sH}, {WS['PO']}
    s_lshl_b32 {sJ}, {sT0}, 9
    s_add_u32 {sJ}, {sJ}, {WS['ST']}
    v_lshlrev_b32 v{T+4}, 7, v0
    buffer_load_dword v228, v{T+4}, {srd(SRD_WS)}, {sH} offen sc1
    s_mov_b64 exec, 15
    buffer_load_dword v229, v{T+4}, {srd(SRD_WS)}, {sJ} offen sc1
    s_mov_b64 exec, -1
    """)
    KA_, KB_, VB = 18, 26, 34
    g(f"""
    v_and_b32 v{T+7}, 3, v0
    v_bfe_u32 v{T+9}, v0, 2, 2
    v_lshl_or_b32 v{KB_}, v{T+7}, 2, v{T+9}
    v_lshrrev_b32 v{KB_+1}, 5, v0
    v_xor_b32 v{KB_}, v{KB_}, v{KB_+1}
    v_lshlrev_b32 v{KB_}, 4, v{KB_}
    v_and_b32 v{KB_+2}, 31, v0
    v_lshl_add_u32 v{KB_}, v{KB_+2}, 8, v{KB_}
    s_lshl_b32 {sT0}, {sW}, 13
    v_add_u32 v{KA_}, {sT0}, v{KB_}
    v_add_u32 v{KB_}, {QAI}, v{KB_}
    v_bfe_u32 v{VB}, v0, 4, 1
    v_lshrrev_b32 v{VB+1}, 1, v{T+7}
    v_lshl_or_b32 v{VB}, v{VB}, 1, v{VB+1}
    v_xor_b32 v{VB}, v{VB}, v{KB_+1}
    v_lshl_or_b32 v{VB}, v{T+9}, 2, v{VB}
    v_lshlrev_b32 v{VB}, 4, v{VB}
    v_and_b32 v{VB+1}, 1, v0
    v_lshl_add_u32 v{VB}, v{VB+1}, 3, v{VB}
    v_lshl_add_u32 v{VB+1}, v{KB_+1}, 2, v{T+9}
    v_lshl_add_u32 v{VB}, v{VB+1}, 8, v{VB}
    s_lshl_b32 {sT0}, {sW}, 15
    v_add_u32 v{VB}, {sT0}, v{VB}
    """)
    for s in range(1, 8):
        g(f"v_xor_b32 v{KA_+s}, {s<<5}, v{KA_}\nv_xor_b32 v{KB_+s}, {s<<5}, v{KB_}\nv_xor_b32 v{VB+s}, {s<<5}, v{VB}")
    g(f"""
    s_waitcnt vmcnt(2)
    s_branch {Lw}
    {Lnp}:
    s_waitcnt vmcnt(0)
    {Lw}:
    """)
    FB = 44
    for i in range(8): g(f"ds_read_b128 {vr(FB+4*i,4)}, v{T+8} offset:{i*4096}")
    g(f"v_sub_u32 v{T+4}, 0, v{CK}")
    for i in range(8):
        g(f"s_waitcnt lgkmcnt({7-i})")
        g(f"v_add3_u32 v{T+4}, v{T+4}, v{FB+4*i}, v{FB+4*i+1}\nv_add3_u32 v{T+4}, v{T+4}, v{FB+4*i+2}, v{FB+4*i+3}")
    g.allred16("v_add_u32", T+4); g.swapred("v_add_u32", T+4, T+7, 16); g.swapred("v_add_u32", T+4, T+7, 32)
    g(f"s_lshl_b32 {sT0}, {sE}, 5\nv_add_u32 v{T+4}, {sT0}, v{T+4}\nv_cmp_ne_u32 vcc, 0, v{T+4}")
    g.poll_end(Lq)
    g.ts(2)
    if o.get("ts"): g(f"s_mov_b32 s{TSB+13}, {sCnt}")
    g("s_barrier")
    g.ts(3)
    S = 76
    PD = 4
    def rdqk(s):
        b = FB + 8*(s % PD); ch = s >> 3
        g(f"ds_read_b128 {vr(b,4)}, v{KA_+(s&7)} offset:{(ch&1)*32768}")
        g(f"ds_read_b128 {vr(b+4,4)}, v{KB_+(s&7)} offset:{ch*8192}")
        if ch == 1: g(f"v_add_u32 v{KA_+(s&7)}, 0x10000, v{KA_+(s&7)}")
    for s in range(PD-1): rdqk(s)
    for s in range(32):
        if s+PD-1 < 32: rdqk(s+PD-1)
        rem = min(31, s+PD-1) - s
        g(f"s_waitcnt lgkmcnt({2*rem})")
        b = FB + 8*(s % PD)
        g(f"v_mfma_f32_32x32x16_bf16 {vr(S,16)}, {vr(b,4)}, {vr(b+4,4)}, {vr(S,16) if s else 0}")
        if s == 16: g("s_barrier")
    vX = T+8
    g(f"""
    v_and_b32 v{vX}, 31, v0
    v_lshlrev_b32 v{vX}, 2, v{vX}
    v_add_u32 v{vX}, {QAI}, v{vX}
    s_lshl_b32 {sT0}, {sW}, 7
    v_add_u32 v{T+9}, {sT0}, v{vX}
    v_add_u32 v{KA_}, {QAI}, v{vL16}
    s_lshl_b32 {sT0}, {sW}, 11
    v_add_u32 v{KA_+1}, {sT0}, v{KA_}
    """)
    VF = FB
    def rdpv(n):
        e2, ks, e = n >> 4, (n >> 1) & 7, n & 1
        tt = 2*e2 + e; b = VF + 4*(n % 8)
        for t in range(2):
            g(f"ds_read_b64_tr_b16 {vr(b+2*t,2)}, v{VB+2*tt+t} offset:{ks*4096+t*2048}")
    g.nop(4)
    g.ts(4)
    vM, vLs = T+4, T+5
    g(f"v_max3_f32 v{vM}, v{S}, v{S+1}, v{S+2}")
    for r in range(3, 15, 2): g(f"v_max3_f32 v{vM}, v{vM}, v{S+r}, v{S+r+1}")
    g(f"v_max_f32 v{vM}, v{vM}, v{S+15}")
    g.swapred("v_max_f32", vM, T+7, 32)
    g(f"""
    ds_write_b32 v{T+9}, v{vM}
    s_waitcnt lgkmcnt(0)
    s_barrier
    ds_read2_b32 {vr(KB_,2)}, v{vX} offset0:0 offset1:32
    ds_read2_b32 {vr(KB_+2,2)}, v{vX} offset0:64 offset1:96
    """)
    for n in range(6): rdpv(n)
    g(f"""
    s_waitcnt lgkmcnt(12)
    v_max3_f32 v{vM}, v{KB_}, v{KB_+1}, v{KB_+2}
    v_max_f32 v{vM}, v{vM}, v{KB_+3}
    """)
    PF = 92
    for r in range(16): g(f"v_sub_f32 v{S+r}, v{S+r}, v{vM}")
    for r in range(16): g(f"v_exp_f32 v{S+r}, v{S+r}")
    OWN = 124
    for r in range(8): g(f"v_cvt_pk_bf16_f32 v{OWN+r}, v{S+2*r}, v{S+2*r+1}")
    g(f"ds_write_b128 v{KA_+1}, {vr(OWN,4)} offset:{PX-QAI}\nds_write_b128 v{KA_+1}, {vr(OWN+4,4)} offset:{PX-QAI+1024}")
    g(f"v_add_f32 v{vLs}, v{S}, v{S+1}")
    for r in range(2, 16): g(f"v_add_f32 v{vLs}, v{vLs}, v{S+r}")
    g.swapred("v_add_f32", vLs, T+7, 32)
    g(f"""
    ds_write_b32 v{T+9}, v{vLs} offset:{LS-QAI}
    s_waitcnt lgkmcnt(0)
    s_barrier
    """)
    g.ts(5)
    for ks in range(8): g(f"ds_read_b128 {vr(PF+4*ks,4)}, v{KA_} offset:{PX-QAI+ks*1024}")
    g(f"""
    ds_read2_b32 {vr(KB_,2)}, v{vX} offset0:128 offset1:160
    ds_read2_b32 {vr(KB_+2,2)}, v{vX} offset0:192 offset1:224
    """)
    O = 132
    PK = 196
    def pack_store(e2, gq):
        b = PK + 16*e2 + 4*gq
        for d in range(4):
            g(f"v_cvt_pk_bf16_f32 v{b+d}, v{O+32*e2+4*gq+d}, v{O+32*e2+16+4*gq+d}")
        off = e2*4096 + gq*1024
        g(f"buffer_store_dwordx4 {vr(b,4)}, v{vL16 if off < 4096 else KB_+4}, {srd(SRD_WS)}, {sH} offen offset:{off & 4095}")
    g(f"v_add_u32 v{KB_+4}, 4096, v{vL16}")
    issued = 6
    for n in range(32):
        e2, ks, e = n >> 4, (n >> 1) & 7, n & 1
        tt = 2*e2 + e
        if issued < 32: rdpv(issued); issued += 1
        nV = 2*(issued-6)
        needP = (7-ks) + 2 + nV if e2 == 0 else 99
        needV = 2*(issued-1-n) if n >= 6 else 99
        w = min(needP, needV)
        g(f"s_waitcnt lgkmcnt({min(w, 13)})")
        acc = vr(O+16*tt, 16)
        g(f"v_mfma_f32_32x32x16_bf16 {acc}, {vr(PF+4*ks,4)}, {vr(VF+4*(n%8),4)}, {acc if ks else 0}")
        if n >= 20 and n % 2 == 0 and n <= 26: pack_store(0, (n-20)//2)
    STG = KB_+4
    FG = 76
    g(f"""
    v_mov_b32 v{FG}, v{vM}
    v_add_f32 v{FG+1}, v{KB_}, v{KB_+1}
    v_add_f32 v{FG+2}, v{KB_+2}, v{KB_+3}
    v_add_f32 v{FG+1}, v{FG+1}, v{FG+2}
    v_mov_b32 v{FG+2}, {sE}
    v_mov_b32 v{FG+3}, {sXcc}
    s_lshl_b32 {sRec}, {sP}, 2
    s_add_u32 {sRec}, {sRec}, {sW}
    s_lshl_b32 {sOff}, {sGrp}, 15
    s_lshr_b32 {sT0}, {sRec}, 4
    s_lshl_b32 {sT0}, {sT0}, 9
    s_add_u32 {sOff}, {sOff}, {sT0}
    """)
    for gq in range(4): pack_store(1, gq)
    g.ts(6)
    vFo, vDl, vBp, MK = 80, 81, 82, 84
    g(f"""
    s_and_b32 {sT0}, {sRec}, 7
    s_lshl_b32 {sT0}, {sT0}, 6
    s_add_u32 {sOff}, {sOff}, {sT0}
    s_add_u32 {sOff}, {sOff}, {WS['ST']}
    v_lshrrev_b32 v{vFo}, 2, v0
    v_lshlrev_b32 v{vFo}, 11, v{vFo}
    v_and_b32 v{T+7}, 3, v0
    v_lshl_add_u32 v{vFo}, v{T+7}, 4, v{vFo}
    v_lshrrev_b32 v{T+8}, 5, v0
    v_and_b32 v{vDl}, 31, v0
    v_lshlrev_b32 v{vDl}, 4, v{vDl}
    v_lshl_add_u32 v{vDl}, v{T+8}, 15, v{vDl}
    s_lshl_b32 {sOff2}, {sGrp}, 19
    s_lshl_b32 {sT0}, {sRec}, 9
    s_add_u32 {sOff2}, {sOff2}, {sT0}
    s_add_u32 {sOff2}, {sOff2}, {WS['PO']}
    v_bfe_u32 v{T+9}, v0, 2, 2
    v_lshl_add_u32 v{vBp}, v{T+8}, 2, v{T+9}
    v_lshlrev_b32 v{vBp}, 2, v{vBp}
    v_and_b32 v{T+7}, 1, v0
    v_lshlrev_b32 v{T+7}, 4, v{T+7}
    v_mov_b32 v{T+8}, 0xffff
    v_lshlrev_b32 v{T+7}, v{T+7}, v{T+8}
    v_lshrrev_b32 v{T+8}, 3, v0
    v_xor_b32 v{T+8}, v{T+8}, v0
    v_and_b32 v{T+8}, 2, v{T+8}
    v_cmp_eq_u32 vcc, 0, v{T+8}
    s_nop 1
    v_cndmask_b32 v{T+7}, 0, v{T+7}, vcc
    """)
    for d in range(4):
        g(f"v_cmp_eq_u32 vcc, {d}, v{T+9}\ns_nop 1\nv_cndmask_b32 v{MK+d}, 0, v{T+7}, vcc")
    g(f"""
    s_waitcnt vmcnt(0)
    s_mov_b32 exec_hi, 0
    buffer_store_dwordx4 {vr(FG,4)}, v{vL16}, {srd(SRD_WS)}, {sJ} offen
    s_mov_b64 exec, -1
    """)
    g.ts(7)
    def restore():
        for e2 in range(2):
            for gq in range(4):
                off = e2*4096 + gq*1024
                g(f"buffer_store_dwordx4 {vr(PK+16*e2+4*gq,4)}, v{vL16 if off < 4096 else KB_+4}, {srd(SRD_WS)}, {sH} offen offset:{off & 4095} sc1")
        g(f"""
        s_waitcnt vmcnt(0)
        v_or_b32 v{FG+3}, 0x100, v{FG+3}
        s_mov_b32 exec_hi, 0
        buffer_store_dwordx4 {vr(FG,4)}, v{vL16}, {srd(SRD_WS)}, {sJ} offen sc1
        s_mov_b64 exec, -1
        s_mov_b32 {sDone}, 1
        """)
    FR = 88
    L = g.poll_begin("st"); Lok, Lnr = g.label("stok"), g.label("norest")
    g(f"""
    buffer_load_dwordx4 {vr(FR,4)}, v{vFo}, {srd(SRD_WS)}, {sOff} offen sc1
    s_waitcnt vmcnt(0)
    v_and_b32 v{T+7}, 15, v{FR+3}
    v_cmp_ne_u32 s[62:63], {sXcc}, v{T+7}
    v_cmp_gt_u32 {sEx}, 16, v{FR+3}
    v_cmp_ne_u32 vcc, {sE}, v{FR+2}
    s_and_b64 {sEx}, {sEx}, s[62:63]
    s_or_b64 vcc, vcc, {sEx}
    s_cbranch_vccz {Lok}
    s_add_u32 {sCnt}, {sCnt}, 1
    s_cmp_lg_u32 {sCnt}, {o.get('nfall', 24)}
    s_cbranch_scc1 {Lnr}
    """)
    restore()
    g(f"""
    {Lnr}:
    s_cmp_lt_u32 {sCnt}, {MAXPOLL}
    s_cbranch_scc1 {L}
    {Lok}:
    """)
    DT = 92
    for u in range(8):
        g(f"buffer_load_dwordx4 {vr(DT+4*u,4)}, v{vDl}, {srd(SRD_WS)}, {sOff2} offen sc1")
        if u < 7: g(f"s_add_u32 {sOff2}, {sOff2}, 0x10000")
    g.ts(8)
    if o.get("ts"): g(f"s_mov_b32 s{TSB+14}, {sCnt}")
    vW = T+6
    g(f"v_mov_b32 v{vM}, v{FR}")
    g.allred16("v_max_f32", vM, (4, 8)); g.swapred("v_max_f32", vM, T+7, 16); g.swapred("v_max_f32", vM, T+7, 32)
    g(f"""
    v_sub_f32 v{vW}, v{FR}, v{vM}
    v_exp_f32 v{vW}, v{vW}
    s_nop 0
    v_cvt_pk_bf16_f32 v{vW}, v{vW}, v{vW}
    v_and_b32 v{vLs}, 0xffff0000, v{vW}
    v_mul_f32 v{vLs}, v{vLs}, v{FR+1}
    """)
    WV = 124
    for u in range(8): g(f"ds_bpermute_b32 v{WV+u}, v{vBp}, v{vW} offset:{32*u}")
    g.allred16("v_add_f32", vLs, (4, 8)); g.swapred("v_add_f32", vLs, T+7, 16); g.swapred("v_add_f32", vLs, T+7, 32)
    AFr = 132
    g(f"""
    v_rcp_f32 v{T+8}, v{vLs}
    v_log_f32 v{T+9}, v{vLs}
    v_lshrrev_b32 v{T+7}, 4, v0
    v_lshlrev_b32 v{T+3}, 2, v{T+7}
    ds_bpermute_b32 v{T+8}, v{T+3}, v{T+8}
    v_add_f32 v{FR}, v{vM}, v{T+9}
    v_mov_b32 v{FR+1}, {sE}
    v_mov_b32 v{FR+2}, {sE}
    v_mov_b32 v{FR+3}, {sE}
    v_and_b32 v{T+2}, 15, v0
    v_lshlrev_b32 v{T+2}, 4, v{T+2}
    v_lshl_add_u32 v{T+2}, v{T+7}, 14, v{T+2}
    s_and_b32 {sT0}, {sRec}, 7
    s_lshl_b32 {sOff}, {sT0}, 16
    s_lshl_b32 {sT1}, {sGrp}, 11
    s_add_u32 {sOff}, {sOff}, {sT1}
    s_lshr_b32 {sT1}, {sRec}, 3
    s_lshl_b32 {sT1}, {sT1}, 8
    s_add_u32 {sOff}, {sOff}, {sT1}
    s_add_u32 {sOff}, {sOff}, {WS['CL']}
    s_lshl_b32 {sT0}, {sT0}, 7
    s_lshl_b32 {sT1}, {sGrp}, 10
    s_add_u32 {sT0}, {sT0}, {sT1}
    s_add_u32 {sT0}, {sT0}, {WS['CS']}
    s_waitcnt lgkmcnt(0)
    """)
    for u in range(8):
        for d in range(4): g(f"v_and_b32 v{AFr+4*u+d}, v{MK+d}, v{WV+u}")
    D = 164
    g("s_nop 0")
    for u in range(8):
        g(f"s_waitcnt vmcnt({7-u})")
        g(f"v_mfma_f32_16x16x32_bf16 {vr(D,4)}, {vr(AFr+4*u,4)}, {vr(DT+4*u,4)}, {vr(D,4) if u else 0}")
    Lns = g.label("nocs")
    g(f"""
    s_cmp_ge_u32 {sRec}, 8
    s_cbranch_scc1 {Lns}
    s_mov_b64 exec, 15
    buffer_store_dwordx4 {vr(FR,4)}, v{vL16}, {srd(SRD_WS)}, {sT0} offen sc1
    s_mov_b64 exec, -1
    {Lns}:
    """)
    g.nop(6)
    for r in range(4): g(f"v_mul_f32 v{D+r}, v{D+r}, v{T+8}")
    g.tag(range(D, D+4))
    g(f"buffer_store_dwordx4 {vr(D,4)}, v{T+2}, {srd(SRD_WS)}, {sOff} offen sc1")
    g.ts(9)
    Lz, Lend = g.label("z"), g.label("Aend")
    g(f"s_cmp_lg_u32 {sDone}, 0\ns_cbranch_scc1 {Lz}\ns_cmp_eq_u64 s[62:63], 0\ns_cbranch_scc1 {Lz}")
    restore()
    g(f"{Lz}:")
    g.ts(10)
    g(f"""
    s_cmp_lg_u32 {sW}, 0
    s_cbranch_scc1 {Lend}
    s_sub_u32 {sH}, s2, 128
    s_cmp_ge_u32 {sH}, 40
    s_cbranch_scc1 {Lend}
    s_lshr_b32 {sT0}, {sH}, 1
    s_mul_i32 {sT1}, {sT0}, 52
    s_lshr_b32 {sT1}, {sT1}, 8
    s_mul_i32 {sT2}, {sT1}, 5
    s_sub_u32 {sT0}, {sT0}, {sT2}
    s_lshl_b32 {sT0}, {sT0}, 8
    s_lshl_b32 {sT1}, {sT1}, 5
    s_add_u32 {sT0}, {sT0}, {sT1}
    s_and_b32 {sT1}, {sH}, 1
    s_lshl_b32 {sT1}, {sT1}, 4
    s_add_u32 {sT0}, {sT0}, {sT1}
    v_lshrrev_b32 v{T}, 5, v0
    v_lshlrev_b32 v{T}, 7, v{T}
    v_bfe_u32 v{T+1}, v0, 4, 1
    v_mul_u32_u24 v{T+1}, 1280, v{T+1}
    v_and_b32 v{T+2}, 7, v0
    v_lshlrev_b32 v{T+2}, 1, v{T+2}
    v_add3_u32 v{T}, v{T}, v{T+1}, v{T+2}
    v_add_u32 v{T}, {sT0}, v{T}
    s_lshl_b32 {sT0}, {sH}, 13
    s_add_u32 {sOff}, {sT0}, {WS['YP']}
    s_add_u32 {sOff2}, {sT0}, {WS['SP']}
    """)
    g.mksrd(SRD_B, "x"); g.mksrd(SRD_C, "out")
    g(f"buffer_load_ushort v{T+1}, v{T}, {srd(SRD_B)}, 0 offen")
    Z = 92
    def zsum(n, dst):
        for i in range(1, n):
            g(f"v_pk_add_f32 {vr(Z,2)}, {vr(Z,2)}, {vr(Z+4*i,2)}\nv_pk_add_f32 {vr(Z+2,2)}, {vr(Z+2,2)}, {vr(Z+4*i+2,2)}")
        g(f"""
        s_nop 1
        v_permlane32_swap_b32 v{Z}, v{Z+2}
        v_permlane32_swap_b32 v{Z+1}, v{Z+3}
        s_nop 1
        v_add_f32 v{Z}, v{Z}, v{Z+2}
        v_add_f32 v{Z+1}, v{Z+1}, v{Z+3}
        s_nop 1
        v_permlane16_swap_b32 v{Z}, v{Z+1}
        s_nop 1
        v_add_f32 v{Z}, v{Z}, v{Z+1}
        s_nop 1
        v_add_f32_dpp v{dst}, v{Z}, v{Z} row_ror:8 row_mask:0xf bank_mask:0xf
        """)
    for r in range(4): g(f"v_mov_b32 v{Z+24+r}, {sTag}")
    L = g.poll_begin("yp")
    for i in range(7):
        if i == 6: g("s_mov_b32 exec_hi, 0xffff")
        g(f"buffer_load_dwordx4 {vr(Z+4*i,4)}, v{vL16 if i < 4 else KB_+4}, {srd(SRD_WS)}, {sOff} offen offset:{(i&3)*1024} sc1")
    g("s_mov_b64 exec, -1\ns_waitcnt vmcnt(0)")
    g.chk(T+7, list(range(Z, Z+28))); g.poll_end(L)
    g.ts(11)
    zsum(7, T+2)
    g(f"""
    v_mul_f32 v{T+3}, {-LOG2E!r}, v{T+2}
    v_exp_f32 v{T+3}, v{T+3}
    v_lshlrev_b32 v{T+1}, 16, v{T+1}
    v_add_f32 v{T+3}, 1.0, v{T+3}
    v_rcp_f32 v{T+3}, v{T+3}
    s_nop 0
    v_mul_f32 v{T+2}, v{T+2}, v{T+3}
    """)
    L = g.poll_begin("sp")
    for i in range(8):
        g(f"buffer_load_dwordx4 {vr(Z+4*i,4)}, v{vL16 if i < 4 else KB_+4}, {srd(SRD_WS)}, {sOff2} offen offset:{(i&3)*1024} sc1")
    g("s_waitcnt vmcnt(0)")
    g.chk(T+7, list(range(Z, Z+32))); g.poll_end(L)
    g.ts(12)
    zsum(8, T+3)
    g(f"""
    v_fmac_f32 v{T+1}, v{T+2}, v{T+3}
    v_cvt_pk_bf16_f32 v{T+1}, v{T+1}, v{T+1}
    s_mov_b32 {sT0}, 0x00ff00ff
    s_mov_b32 {sT1}, 0x00ff00ff
    s_mov_b64 exec, s[24:25]
    buffer_store_short v{T+1}, v{T}, {srd(SRD_C)}, 0 offen
    s_cmp_lg_u32 {sH}, 0
    s_cbranch_scc1 {Lend}
    s_mov_b64 exec, 1
    v_mov_b32 v{T+2}, {sE}
    v_mov_b32 v{T+3}, 0
    buffer_store_dword v{T+2}, v{T+3}, {srd(SRD_WS)}, 0 offen sc1
    """)
    if o.get("amp"):
        g(f"""
        s_memrealtime s[92:93]
        s_waitcnt lgkmcnt(0)
        s_sub_u32 s94, s92, s90
        s_min_u32 s94, s94, 5000
        s_mul_i32 s94, s94, {o['amp']}
        L_ampspin:
        s_memrealtime s[90:91]
        s_waitcnt lgkmcnt(0)
        s_sub_u32 s95, s90, s92
        s_cmp_lt_u32 s95, s94
        s_cbranch_scc1 L_ampspin
        """)
    g(f"{Lend}:")
    g.finish()

def build(opt):
    g = G(opt)
    if opt.get("ts"):
        for i in range(16): g(f"s_mov_b32 s{TSB+i}, 0")
        g.ts(0)
    if opt.get("amp"): g("s_memrealtime s[90:91]")
    g(f"""
    s_cmp_ge_u32 s2, 256
    s_cbranch_scc1 L_exit
    s_load_dwordx16 s[64:79], s[0:1], 0
    s_load_dwordx8 s[80:87], s[0:1], 64
    s_load_dwordx2 s[88:89], s[0:1], 96
    v_readfirstlane_b32 {sW}, v0
    v_and_b32 v0, 63, v0
    s_nop 2
    s_lshr_b32 {sW}, {sW}, 6
    s_cmp_ge_u32 s2, 128
    s_cbranch_scc1 L_roleA
    """)
    role_w(g)
    g("L_exit:\ns_endpgm")
    g(".p2align 6\nL_roleA:")
    role_a(g)
    g("L_codeend:")
    K = NAME + "_kernel"
    s = header(["; @launch grid=(256,1,1) block=(256,1,1) lds=163840"])
    s += kernel_text(K, g.text())
    s += '.section .rodata,"a"\n' + descriptor(K, vgpr=256, sgpr=96)
    return s

if __name__ == "__main__":
    opt = {}
    out = sys.argv[1]
    for kv in sys.argv[2:]:
        k, v = kv.split("=")
        opt[k] = int(v) if v.lstrip("-").isdigit() else v
    open(out, "w").write(build(opt))
```

```python
import sys, math
from common import *

WS = dict(E=0, QP=0x10000, QA=0x20000, QC=0x30000, FX=0x38000, ST=0x40000, CL=0x80000, CS=0x100000,
          SP=0x110000, YP=0x160000, TS=0x1C0000, PO=0x200000)
WS_USED = 0x600000
XN, XNP = 0, 1344
QS, QO, CLB, CX, ZERO, IMG = 3072, 7168, 3072, 7680, 8064, 8192
UKIMG = IMG + 40960
QAI = 131072
MX, LS, PX = QAI, QAI + 512, QAI + 1024
MAXPOLL = 1 << 15
LOG2E = 1.4426950408889634

sW = "s3"
SRD_WS, SRD_A, SRD_B, SRD_C = 4, 8, 12, 16
sE, sTag, sMsk, sCnt, sT0, sT1, sT2, sT3 = "s20", "s21", "s22", "s23", "s24", "s25", "s26", "s27"
sH, sJ, sOff, sK, sDone, sXcc, sGrp, sP = "s28", "s29", "s30", "s31", "s32", "s33", "s34", "s35"
sEx = "s[36:37]"
sRec = "s38"; sOff2 = "s39"
TSB = 40
sTm = "s[56:57]"
sJ2m = "s[58:59]"
PTR = dict(x=64, ckv=66, wq=68, wuk=70, wuv=72, wo=74, bx=76, wg=78, wu=80, wd=82, out=84, dbg=86, ws=88)

def srd(n): return f"s[{n}:{n+3}]"
def vr(a, n=1): return f"v{a}" if n == 1 else f"v[{a}:{a+n-1}]"

class G(Asm):
    def __init__(self, opt):
        super().__init__(); self.o = opt; self.nl = 0
    def label(self, base):
        self.nl += 1; return f"L{self.nl}_{base}"
    def mksrd(self, d, name, size=None):
        p = PTR[name]
        self(f"s_mov_b64 s[{d}:{d+1}], s[{p}:{p+1}]\ns_mov_b32 s{d+2}, {size or SZ[name]}\ns_mov_b32 s{d+3}, 0x20000")
    def ts(self, i):
        if self.o.get("ts"):
            self(f"s_memrealtime {sTm}\ns_waitcnt lgkmcnt(0)\ns_mov_b32 s{TSB+i}, s56")
    def nop(self, n):
        while n > 0:
            k = min(n, 16); self(f"s_nop {k-1}"); n -= k
    def tag(self, regs):
        for r in regs: self(f"v_bfi_b32 v{r}, {sMsk}, v{self.vTag}, v{r}")
    def chk(self, acc, regs):
        self(f"v_xor_b32 v{acc}, {sTag}, v{regs[0]}")
        for r in regs[1:]: self(f"v_bitop3_b32 v{acc}, v{acc}, v{r}, {sTag} bitop3:0xf6")
        self(f"v_and_b32 v{acc}, {sMsk}, v{acc}\nv_cmp_ne_u32 vcc, 0, v{acc}")
    def poll_begin(self, name):
        L = self.label(name); self(f"s_mov_b32 {sCnt}, 0\n{L}:"); return L
    def poll_end(self, L):
        D = self.label("ok")
        self(f"s_cbranch_vccz {D}\ns_add_u32 {sCnt}, {sCnt}, 1\ns_cmp_lt_u32 {sCnt}, {MAXPOLL}\ns_cbranch_scc1 {L}\n{D}:")
    def allred16(self, op, v, steps=(8, 4, 2, 1)):
        for s in steps:
            self(f"s_nop 1\n{op}_dpp v{v}, v{v}, v{v} row_ror:{s} row_mask:0xf bank_mask:0xf")
    def swapred(self, op, v, t, which):
        self(f"v_mov_b32 v{t}, v{v}\ns_nop 1\nv_permlane{which}_swap_b32 v{v}, v{t}\ns_nop 1\n{op} v{v}, v{v}, v{t}")
    def finish(self):
        if self.o.get("ts"):
            self.ts(15)
            self(f"s_mov_b64 exec, -1\nv_mov_b32 v1, 0")
            for i in range(16): self(f"v_writelane_b32 v1, s{TSB+i}, {i}")
            self(f"""
            s_lshl_b32 {sT0}, s2, 2
            s_add_u32 {sT0}, {sT0}, {sW}
            s_lshl_b32 {sT0}, {sT0}, 6
            s_add_u32 {sT0}, {sT0}, {WS['TS']}
            v_lshlrev_b32 v2, 2, v0
            s_mov_b64 exec, 0xffff
            buffer_store_dword v1, v2, {srd(SRD_WS)}, {sT0} offen
            """)
        self("s_endpgm")

def dma(g, voff, s, soff, flags=""):
    g(f"buffer_load_dwordx4 v{voff}, {srd(s)}, {soff} offen {flags} lds")

def dma_loop(g, n, voff, s, step_src, step_lds=4096, flags=""):
    L = g.label("dma")
    g(f"s_mov_b32 {sK}, {n}\n{L}:")
    dma(g, voff, s, sOff, flags)
    g(f"""
    s_add_u32 {sOff}, {sOff}, {step_src}
    s_add_u32 m0, m0, {step_lds}
    s_sub_u32 {sK}, {sK}, 1
    s_cmp_lg_u32 {sK}, 0
    s_cbranch_scc1 {L}
    """)

def epoch_regs(g):
    g(f"s_add_u32 {sE}, {sE}, 1\ns_movk_i32 {sMsk}, 0xfff\ns_and_b32 {sTag}, {sE}, {sMsk}\nv_mov_b32 v{g.vTag}, {sTag}")

def role_w(g):
    o = g.o
    vLR, vCB, vTB, vXB, vTag = 1, 2, 3, 4, 5
    g.vTag = vTag
    T = 6
    g(f"""
    s_lshr_b32 {sT0}, s2, 5
    s_lshl_b32 {sT0}, {sT0}, 3
    s_and_b32 {sH}, s2, 7
    s_add_u32 {sH}, {sH}, {sT0}
    s_bfe_u32 {sJ}, s2, 0x20003
    s_lshr_b32 {sT0}, {sW}, 1
    s_lshl_b32 {sT0}, {sT0}, 4
    s_and_b32 {sT1}, {sW}, 1
    s_lshl_b32 {sT1}, {sT1}, 2
    s_add_u32 {sT0}, {sT0}, {sT1}
    v_lshrrev_b32 v{T}, 3, v0
    v_and_b32 v{T+1}, 3, v{T}
    v_lshrrev_b32 v{T+2}, 5, v0
    v_lshl_add_u32 v{vLR}, v{T+2}, 3, v{T+1}
    v_add_u32 v{vLR}, {sT0}, v{vLR}
    v_and_b32 v{T}, 6, v{T}
    v_and_b32 v{T+1}, 7, v0
    v_xor_b32 v{T}, v{T}, v{T+1}
    v_lshlrev_b32 v{vCB}, 4, v{T}
    v_lshl_add_u32 v{T+3}, v{vLR}, 13, v{vCB}
    v_lshlrev_b32 v{T+4}, 2, v0
    s_lshr_b32 {sT0}, {sJ}, 1
    s_mul_i32 {sT0}, {sT0}, {320*8192}
    s_and_b32 {sT1}, {sJ}, 1
    s_lshl_b32 {sT1}, {sT1}, 7
    s_lshl_b32 {sT2}, {sH}, 8
    s_add_u32 {sOff}, {sT0}, {sT1}
    s_add_u32 {sOff}, {sOff}, {sT2}
    s_lshl_b32 {sT3}, {sW}, 10
    s_add_u32 m0, {sT3}, {IMG}
    s_mul_i32 {sT0}, {sW}, 1280
    s_waitcnt lgkmcnt(0)
    """)
    g.mksrd(SRD_C, "x"); g.mksrd(SRD_A, "wq")
    X = 112
    for i in range(5):
        g(f"buffer_load_dword v{X+i}, v{T+4}, {srd(SRD_C)}, {sT0} offen offset:{i*256}")
    dma_loop(g, 10, T+3, SRD_A, 32*8192, flags=o.get("wq_flags", ""))
    g.mksrd(SRD_WS, "ws", WS_USED); g.mksrd(SRD_B, "wuk")
    g(f"s_load_dword {sE}, s[88:89], 0")
    g.ts(1)
    Lskip = g.label("noln")
    g(f"s_cmp_ge_u32 {sW}, 2\ns_cbranch_scc1 {Lskip}")
    V = 118
    g("s_waitcnt vmcnt(10)")
    for i in range(5):
        g(f"v_lshlrev_b32 v{V+2*i}, 16, v{X+i}\nv_and_b32 v{V+2*i+1}, 0xffff0000, v{X+i}")
    g(f"v_add_f32 v{T}, v{V}, v{V+1}")
    for i in range(2, 10): g(f"v_add_f32 v{T}, v{T}, v{V+i}")
    g.allred16("v_add_f32", T); g.swapred("v_add_f32", T, T+1, 16); g.swapred("v_add_f32", T, T+1, 32)
    g(f"v_mul_f32 v{T}, {1/640!r}, v{T}")
    for i in range(10): g(f"v_sub_f32 v{V+i}, v{V+i}, v{T}")
    g(f"v_mul_f32 v{T+2}, v{V}, v{V}")
    for i in range(1, 10): g(f"v_fmac_f32 v{T+2}, v{V+i}, v{V+i}")
    g.allred16("v_add_f32", T+2); g.swapred("v_add_f32", T+2, T+1, 16); g.swapred("v_add_f32", T+2, T+1, 32)
    g(f"""
    v_mul_f32 v{T+2}, {1/640!r}, v{T+2}
    v_cvt_pk_bf16_f32 v{T+1}, v{T}, v{T+2}
    v_and_b32 v{T+2}, 0xffff0000, v{T+1}
    v_lshlrev_b32 v{T+1}, 16, v{T+1}
    v_add_f32 v{T+2}, 1e-5, v{T+2}
    v_cvt_pk_bf16_f32 v{T+2}, v{T+2}, v{T+2}
    v_and_b32 v{T+2}, 0xffff0000, v{T+2}
    v_sqrt_f32 v{T+2}, v{T+2}
    v_sub_f32 v{T}, v{T}, v{T+1}
    v_cvt_pk_bf16_f32 v{T+2}, v{T+2}, v{T+2}
    v_and_b32 v{T+2}, 0xffff0000, v{T+2}
    v_rcp_f32 v{T+2}, v{T+2}
    s_mul_i32 {sT0}, {sW}, {XNP}
    v_add_u32 v{T+5}, {sT0}, v{T+4}
    v_mul_f32 v{T}, v{T}, v{T+2}
    """)
    for i in range(10): g(f"v_fma_f32 v{V+i}, v{V+i}, v{T+2}, v{T}")
    for i in range(5):
        g(f"v_cvt_pk_bf16_f32 v{X+i}, v{V+2*i}, v{V+2*i+1}\nds_write_b32 v{T+5}, v{X+i} offset:{XN+i*256}")
    g(f"{Lskip}:")
    U = 16
    g(f"""
    s_waitcnt lgkmcnt(0)
    v_lshrrev_b32 v{T}, 4, v0
    v_and_b32 v{T+1}, 15, v0
    v_xor_b32 v{T+2}, v{T}, v{T+1}
    v_lshlrev_b32 v{T+2}, 4, v{T+2}
    v_lshl_add_u32 v{U}, v{T}, 13, v{T+2}
    v_xor_b32 v{U+1}, 64, v{U}
    v_xor_b32 v{U+2}, 0x80, v{U}
    v_xor_b32 v{U+3}, 0xc0, v{U}
    s_lshl_b32 {sT0}, {sJ}, 2
    s_add_u32 {sT0}, {sT0}, {sW}
    s_lshl_b32 {sT0}, {sT0}, 18
    s_lshl_b32 {sT2}, {sH}, 8
    s_add_u32 {sOff}, {sT0}, {sT2}
    s_lshl_b32 {sT0}, {sW}, 13
    s_add_u32 m0, {sT0}, {UKIMG}
    """)
    for u in range(8):
        g(f"s_add_u32 {sOff2}, {sOff}, {(8*(u&3)+4*(u>>2))*8192}")
        dma(g, U+(u & 3), SRD_B, sOff2, o.get("wuk_flags", ""))
        if u < 7: g("s_add_u32 m0, m0, 1024")
    epoch_regs(g)
    vUA = 20
    g(f"""
    v_lshl_add_u32 v{vUA}, v{T+1}, 8, v{T+2}
    v_add_u32 v{vUA}, {sT0}, v{vUA}
    v_and_b32 v{T+3}, 1, v0
    v_mul_u32_u24 v{vXB}, {XNP}, v{T+3}
    v_lshl_add_u32 v{vXB}, v{T}, 4, v{vXB}
    v_bfe_u32 v{T+4}, v0, 2, 3
    v_lshrrev_b32 v{T+5}, 5, v0
    v_lshl_add_u32 v{T+5}, v{T+5}, 4, v{T+4}
    v_lshrrev_b32 v{T+4}, 1, v{T+4}
    v_xor_b32 v{T+4}, {sW}, v{T+4}
    v_lshlrev_b32 v{T+4}, 5, v{T+4}
    v_lshl_add_u32 v{vTB}, v{T+5}, 7, v{T+4}
    v_and_b32 v{T+4}, 3, v0
    v_lshl_add_u32 v{vTB}, v{T+4}, 3, v{vTB}
    v_cmp_gt_u32 {sJ2m}, 2, v{T+1}
    v_mov_b32 v{T+6}, 0
    v_lshlrev_b32 v{T+7}, 2, v0
    v_and_b32 v{T+7}, 0x7c, v{T+7}
    ds_write_b32 v{T+7}, v{T+6} offset:{ZERO}
    s_lshr_b32 {sT0}, {sJ}, 1
    s_mul_i32 {sT0}, {sT0}, 640
    v_add_u32 v{T+8}, {sT0}, v{vXB}
    """)
    g.ts(2)
    AF, BF, D = 32, 72, 24
    g("s_waitcnt vmcnt(8) lgkmcnt(0)\ns_barrier")
    g.ts(3)
    def rd(s):
        g(f"ds_read_b64_tr_b16 {vr(AF+4*s,2)}, v{vTB} offset:{IMG+s*4096}")
        g(f"ds_read_b64_tr_b16 {vr(AF+4*s+2,2)}, v{vTB} offset:{IMG+s*4096+1024}")
        g(f"ds_read_b128 {vr(BF+4*s,4)}, v{T+8} offset:{XN+s*64}")
    for s in range(5): rd(s)
    for s in range(10):
        rem = min(9, s+4) - s
        g(f"s_waitcnt lgkmcnt({3*rem})")
        g(f"v_mfma_f32_16x16x32_bf16 {vr(D,4)}, {vr(AF+4*s,4)}, {vr(BF+4*s,4)}, {vr(D,4) if s else 0}")
        if s+5 < 10: rd(s+5)
    g(f"""
    s_lshl_b32 {sOff}, {sH}, 11
    s_add_u32 {sOff}, {sOff}, {WS['QP']}
    s_lshl_b32 {sT0}, {sJ}, 9
    s_lshl_b32 {sT1}, {sW}, 7
    s_add_u32 {sT0}, {sT0}, {sT1}
    s_add_u32 {sOff2}, {sOff}, {sT0}
    v_lshlrev_b32 v{T+9}, 6, v{T+3}
    v_lshl_add_u32 v{T+9}, v{T}, 4, v{T+9}
    v_lshlrev_b32 v{T+4}, 4, v0
    """)
    g.tag(range(D, D+4))
    g(f"""
    s_mov_b64 exec, {sJ2m}
    buffer_store_dwordx4 {vr(D,4)}, v{T+9}, {srd(SRD_WS)}, {sOff2} offen sc1
    s_mov_b64 exec, -1
    v_bfe_u32 v{T+5}, v0, 2, 1
    v_mul_u32_u24 v{T+5}, 320, v{T+5}
    v_lshrrev_b32 v{T+6}, 3, v0
    v_lshl_add_u32 v{T+5}, v{T+6}, 5, v{T+5}
    v_and_b32 v{T+6}, 3, v0
    v_lshl_add_u32 v{T+5}, v{T+6}, 3, v{T+5}
    v_add_u32 v{T+5}, {sT3}, v{T+5}
    v_mul_u32_u24 v{T+6}, 320, v{T+3}
    v_lshl_add_u32 v{T+6}, v{T}, 4, v{T+6}
    v_add_u32 v{T+6}, {sT3}, v{T+6}
    v_xor_b32 v{vUA+1}, 64, v{vUA}
    v_xor_b32 v{vUA+2}, 0x80, v{vUA}
    v_xor_b32 v{vUA+3}, 0xc0, v{vUA}
    s_waitcnt vmcnt(1)
    """)
    g.ts(4)
    for tl in range(2):
        for s in range(4):
            g(f"ds_read_b128 {vr(AF+16*tl+4*s,4)}, v{vUA+s} offset:{UKIMG+tl*4096}")
    P0 = 72
    L = g.poll_begin("qp")
    g(f"""
    buffer_load_dwordx4 {vr(P0,4)}, v{T+4}, {srd(SRD_WS)}, {sOff} offen sc1
    buffer_load_dwordx4 {vr(P0+4,4)}, v{T+4}, {srd(SRD_WS)}, {sOff} offen offset:1024 sc1
    s_waitcnt vmcnt(0)
    """)
    g.chk(T+7, list(range(P0, P0+8))); g.poll_end(L)
    g.ts(5)
    for r in range(4): g(f"v_add_f32 v{P0+r}, v{P0+r}, v{P0+4+r}")
    g(f"""
    v_cvt_pk_bf16_f32 v{P0}, v{P0}, v{P0+1}
    v_cvt_pk_bf16_f32 v{P0+1}, v{P0+2}, v{P0+3}
    ds_write_b64 v{T+5}, {vr(P0,2)} offset:{QS}
    s_waitcnt lgkmcnt(0)
    """)
    QB = 80
    for s in range(4): g(f"ds_read_b128 {vr(QB+4*s,4)}, v{T+6} offset:{QS+s*64}")
    for s in range(4):
        g(f"s_waitcnt lgkmcnt({3-s})")
        for tl in range(2):
            g(f"v_mfma_f32_16x16x32_bf16 {vr(D+4*tl,4)}, {vr(AF+16*tl+4*s,4)}, {vr(QB+4*s,4)}, {vr(D+4*tl,4) if s else 0}")
    g(f"""
    v_lshlrev_b32 v{T+5}, 8, v{T+3}
    v_lshl_add_u32 v{T+5}, v{T}, 4, v{T+5}
    s_lshl_b32 {sT0}, {sW}, 6
    v_add_u32 v{T+5}, {sT0}, v{T+5}
    s_mov_b32 {sT1}, {128**-0.5*LOG2E!r}
    v_lshlrev_b32 v{T+6}, 4, v{T+1}
    v_lshl_add_u32 v{T+6}, v{T}, 15, v{T+6}
    s_lshl_b32 {sT0}, {sJ}, 5
    s_add_u32 {sT0}, {sT0}, {sH}
    s_lshl_b32 {sOff}, {sT0}, 8
    s_add_u32 {sOff}, {sOff}, {WS['QA']}
    s_lshl_b32 {sOff2}, {sT0}, 7
    s_add_u32 {sOff2}, {sOff2}, {WS['QC']}
    """)
    for r in range(8): g(f"v_mul_f32 v{D+r}, {sT1}, v{D+r}")
    for r in range(4): g(f"v_cvt_pk_bf16_f32 v{P0+r}, v{D+2*r}, v{D+2*r+1}")
    Lp = g.label("nopub")
    g(f"""
    s_mov_b64 exec, {sJ2m}
    ds_write_b128 v{T+5}, {vr(P0,4)} offset:{QO}
    s_mov_b64 exec, -1
    s_waitcnt lgkmcnt(0)
    s_barrier
    s_cmp_lg_u32 {sW}, 0
    s_cbranch_scc1 {Lp}
    s_mov_b32 exec_hi, 0
    ds_read_b128 {vr(P0,4)}, v{T+4} offset:{QO}
    v_lshlrev_b32 v{T+8}, 2, v{T}
    s_waitcnt lgkmcnt(0)
    buffer_store_dwordx4 {vr(P0,4)}, v{T+6}, {srd(SRD_WS)}, {sOff} offen sc1
    v_add3_u32 v{T+7}, v{P0}, v{P0+1}, v{P0+2}
    v_add_u32 v{T+7}, v{T+7}, v{P0+3}
    """)
    g.allred16("v_add_u32", T+7)
    g(f"""
    v_add_u32 v{T+7}, {sE}, v{T+7}
    s_mov_b64 exec, 0x10001
    buffer_store_dword v{T+7}, v{T+8}, {srd(SRD_WS)}, {sOff2} offen sc1
    s_mov_b64 exec, -1
    """)
    g.ts(6)
    g(f"s_waitcnt vmcnt(0)\n{Lp}:\ns_barrier")
    g.ts(7)
    Lf, Lend = g.label("F"), g.label("Wend")
    AM = 16
    g(f"""
    s_cmp_ge_u32 s2, 118
    s_cbranch_scc1 {Lend}
    s_cmp_ge_u32 s2, 64
    s_cbranch_scc1 {Lf}
    """)
    def gemm2_addrs():
        g(f"""
        v_mul_u32_u24 v{T+5}, 192, v{T+3}
        v_lshl_add_u32 v{T+5}, v{T}, 4, v{T+5}
        v_add_u32 v{T+5}, {CX}, v{T+5}
        v_mov_b32 v{T+6}, {ZERO}
        v_lshrrev_b32 v{T+7}, 1, v{T+1}
        """)
        for i in range(8):
            g(f"v_cmp_eq_u32 vcc, {i}, v{T+7}\ns_nop 1\nv_cndmask_b32 v{AM+i}, v{T+6}, v{T+5}, vcc")
        g(f"""
        v_lshrrev_b32 v{T+5}, 3, v0
        v_and_b32 v{T+6}, 7, v0
        v_lshlrev_b32 v{T+6}, 4, v{T+6}
        v_lshl_add_u32 v{T+9}, v{T+5}, 13, v{T+6}
        """)
    def gemm2(WF, nk, AR, region, slot_sub):
        for kk in range(nk):
            for i in range(8):
                g(f"ds_read_b128 {vr(AR+4*(8*kk+i),4)}, v{AM+i} offset:{kk*64}")
        g(f"""
        s_mul_i32 {sT0}, {sW}, {10*8192}
        s_sub_u32 {sT1}, s2, {slot_sub}
        s_lshl_b32 {sT1}, {sT1}, 7
        s_add_u32 {sOff}, {sT0}, {sT1}
        s_add_u32 {sOff}, {sOff}, {WS[region]}
        s_add_u32 {sOff2}, {sOff}, {8*8192}
        """)
        n = 8*nk; first0 = first1 = True
        for idx in range(n):
            kk, i = idx >> 3, idx & 7
            g(f"s_waitcnt lgkmcnt({min(15, n-1-idx)})")
            g(f"v_mfma_f32_16x16x32_bf16 {vr(D,4)}, {vr(AR+4*idx,4)}, {vr(WF+4*(nk*i+kk),4)}, {0 if first0 else vr(D,4)}"); first0 = False
            if i < 2:
                g(f"v_mfma_f32_16x16x32_bf16 {vr(D+4,4)}, {vr(AR+4*idx,4)}, {vr(WF+4*(nk*(8+i)+kk),4)}, {0 if first1 else vr(D+4,4)}"); first1 = False
        g.tag(range(D+4, D+8))
        g(f"""
        s_mov_b64 exec, 0xffff
        buffer_store_dwordx4 {vr(D+4,4)}, v{T+9}, {srd(SRD_WS)}, {sOff2} offen sc1
        s_mov_b64 exec, -1
        s_nop 0
        """)
        g.tag(range(D, D+4))
        g(f"buffer_store_dwordx4 {vr(D,4)}, v{T+9}, {srd(SRD_WS)}, {sOff} offen sc1")

    g(f"""
    s_and_b32 {sH}, s2, 31
    s_lshr_b32 {sJ}, s2, 5
    s_and_b32 {sT0}, {sW}, 1
    s_lshr_b32 {sT1}, {sW}, 1
    s_lshl_b32 {sT1}, {sT1}, 2
    s_add_u32 {sT0}, {sT0}, {sT1}
    v_lshrrev_b32 v{T+5}, 5, v0
    v_lshl_add_u32 v{T+5}, v{T+5}, 1, {sT0}
    v_bfe_u32 v{T+6}, v0, 3, 1
    v_lshl_add_u32 v{T+5}, v{T+6}, 5, v{T+5}
    v_bfe_u32 v{T+6}, v0, 4, 1
    v_lshl_add_u32 v{T+5}, v{T+6}, 4, v{T+5}
    v_lshl_add_u32 v{T+5}, v{T+5}, 13, v{vCB}
    s_lshl_b32 {sOff}, {sH}, 8
    s_lshl_b32 {sT0}, {sJ}, 7
    s_add_u32 {sOff}, {sOff}, {sT0}
    s_add_u32 m0, {sT3}, {IMG}
    """)
    g.mksrd(SRD_A, "wuv"); g.mksrd(SRD_B, "wo")
    L = g.label("uv")
    g(f"s_mov_b32 {sK}, 8\n{L}:")
    dma(g, T+5, SRD_A, sOff, o.get("late_flags", ""))
    g(f"s_add_u32 {sOff}, {sOff}, {8*8192}\ns_add_u32 m0, m0, 4096\ns_sub_u32 {sK}, {sK}, 1")
    dma(g, T+5, SRD_A, sOff, o.get("late_flags", ""))
    g(f"s_add_u32 {sOff}, {sOff}, {56*8192}\ns_add_u32 m0, m0, 4096\ns_cmp_lg_u32 {sK}, 0\ns_cbranch_scc1 {L}")
    g(f"""
    v_mul_u32_u24 v{T+6}, 1280, v{vLR}
    v_add_u32 v{T+6}, v{T+6}, v{vCB}
    s_lshl_b32 {sT0}, {sH}, 1
    s_add_u32 {sT0}, {sT0}, {sJ}
    s_mul_i32 {sOff}, {sT0}, {64*1280}
    """)
    L = g.label("wo")
    g(f"s_mov_b32 {sK}, 10\n{L}:")
    dma(g, T+6, SRD_B, sOff, o.get("late_flags", ""))
    g(f"s_add_u32 {sOff2}, {sOff}, {32*1280}\ns_add_u32 m0, m0, 4096\ns_sub_u32 {sK}, {sK}, 1")
    dma(g, T+6, SRD_B, sOff2, o.get("late_flags", ""))
    g(f"s_add_u32 {sOff}, {sOff}, 128\ns_add_u32 m0, m0, 4096\ns_cmp_lg_u32 {sK}, 0\ns_cbranch_scc1 {L}")
    g.ts(8)
    gemm2_addrs()
    UV, WO, BR = 32, 96, 176
    vTB1, vTB2, vTB3 = 240, 241, 242
    vCLo, vCSo, vCLw, vCLr, vCXw = 243, 244, 245, 246, 247
    g(f"""
    v_add_u32 v{vTB1}, {IMG}, v{vTB}
    v_add_u32 v{vTB2}, {IMG+65536}, v{vTB}
    v_add_u32 v{vTB3}, {IMG+131072}, v{vTB}
    s_lshl_b32 {sOff}, {sH}, 14
    s_lshr_b32 {sT0}, {sW}, 1
    s_lshl_b32 {sT1}, {sT0}, 13
    s_add_u32 {sOff}, {sOff}, {sT1}
    s_and_b32 {sT1}, {sW}, 1
    s_lshl_b32 {sT2}, {sT1}, 10
    s_add_u32 {sOff}, {sOff}, {sT2}
    s_add_u32 {sOff}, {sOff}, {WS['CL']}
    s_add_u32 {sRec}, {sOff}, 4096
    v_lshlrev_b32 v{vCLo}, 4, v0
    s_lshl_b32 {sOff2}, {sT0}, 12
    s_lshr_b32 {sT2}, {sH}, 2
    s_lshl_b32 {sT2}, {sT2}, 7
    s_add_u32 {sOff2}, {sOff2}, {sT2}
    s_and_b32 {sT2}, {sH}, 3
    s_lshl_b32 {sT2}, {sT2}, 4
    s_add_u32 {sOff2}, {sOff2}, {sT2}
    s_add_u32 {sOff2}, {sOff2}, {WS['CS']}
    v_and_b32 v{vCSo}, 3, v0
    v_lshlrev_b32 v{vCSo}, 10, v{vCSo}
    s_mul_i32 {sT0}, {sT0}, 1088
    s_lshl_b32 {sT1}, {sT1}, 9
    s_add_u32 {sT0}, {sT0}, {sT1}
    v_lshl_add_u32 v{vCLw}, v0, 3, {sT0}
    v_mul_u32_u24 v{vCLr}, 1088, v{T+3}
    v_lshl_add_u32 v{vCLr}, v{T}, 4, v{vCLr}
    v_mul_u32_u24 v{vCXw}, 192, v{T+3}
    v_lshl_add_u32 v{vCXw}, v{T}, 3, v{vCXw}
    s_lshl_b32 {sT0}, {sW}, 5
    v_add_u32 v{vCXw}, {sT0}, v{vCXw}
    s_waitcnt vmcnt(20)
    s_barrier
    """)
    for s in range(16):
        for t in range(2):
            g(f"ds_read_b64_tr_b16 {vr(UV+4*s+2*t,2)}, v{vTB1} offset:{s*4096+t*1024}")
    g("s_waitcnt vmcnt(0)\ns_barrier")
    g.ts(9)
    for idx in range(20):
        for t in range(2):
            off = idx*4096 + t*1024
            b = vTB2 if off < 65536 else vTB3
            g(f"ds_read_b64_tr_b16 {vr(WO+4*idx+2*t,2)}, v{b} offset:{off & 0xffff}")
    C0, S0 = BR, BR+16
    L = g.poll_begin("cl")
    g(f"""
    buffer_load_dwordx4 {vr(S0,4)}, v{vCSo}, {srd(SRD_WS)}, {sOff2} offen sc1
    buffer_load_dwordx4 {vr(C0,4)}, v{vCLo}, {srd(SRD_WS)}, {sOff} offen sc1
    buffer_load_dwordx4 {vr(C0+4,4)}, v{vCLo}, {srd(SRD_WS)}, {sOff} offen offset:2048 sc1
    buffer_load_dwordx4 {vr(C0+8,4)}, v{vCLo}, {srd(SRD_WS)}, {sRec} offen sc1
    buffer_load_dwordx4 {vr(C0+12,4)}, v{vCLo}, {srd(SRD_WS)}, {sRec} offen offset:2048 sc1
    s_waitcnt vmcnt(4)
    v_max_f32_dpp v{T+5}, v{S0}, v{S0} quad_perm:[1,0,3,2] row_mask:0xf bank_mask:0xf
    s_nop 1
    v_max_f32_dpp v{T+5}, v{T+5}, v{T+5} quad_perm:[2,3,0,1] row_mask:0xf bank_mask:0xf
    v_sub_f32 v{T+5}, v{S0}, v{T+5}
    v_exp_f32 v{T+5}, v{T+5}
    s_nop 1
    v_add_f32_dpp v{T+6}, v{T+5}, v{T+5} quad_perm:[1,0,3,2] row_mask:0xf bank_mask:0xf
    s_nop 1
    v_add_f32_dpp v{T+6}, v{T+6}, v{T+6} quad_perm:[2,3,0,1] row_mask:0xf bank_mask:0xf
    v_rcp_f32 v{T+6}, v{T+6}
    s_nop 0
    v_mul_f32 v{T+5}, v{T+5}, v{T+6}
    s_waitcnt vmcnt(0)
    """)
    g.chk(T+7, [S0+1, S0+2, S0+3] + list(range(C0, C0+16))); g.poll_end(L)
    g.ts(10)
    for r in range(4):
        g(f"v_mul_f32_dpp v{S0+r}, v{T+5}, v{C0+r} quad_perm:[0,0,0,0] row_mask:0xf bank_mask:0xf")
    for i in range(1, 4):
        for r in range(4):
            g(f"v_fmac_f32_dpp v{S0+r}, v{T+5}, v{C0+4*i+r} quad_perm:[{i},{i},{i},{i}] row_mask:0xf bank_mask:0xf")
    g(f"""
    v_cvt_pk_bf16_f32 v{S0}, v{S0}, v{S0+1}
    v_cvt_pk_bf16_f32 v{S0+1}, v{S0+2}, v{S0+3}
    ds_write_b64 v{vCLw}, {vr(S0,2)} offset:{CLB}
    s_waitcnt lgkmcnt(0)
    s_barrier
    """)
    for s in range(16): g(f"ds_read_b128 {vr(BR+4*s,4)}, v{vCLr} offset:{CLB+s*64}")
    for s in range(16):
        g(f"s_waitcnt lgkmcnt({15-s})")
        g(f"v_mfma_f32_16x16x32_bf16 {vr(D,4)}, {vr(UV+4*s,4)}, {vr(BR+4*s,4)}, {vr(D,4) if s else 0}")
    g.nop(8)
    g(f"""
    v_cvt_pk_bf16_f32 v{D}, v{D}, v{D+1}
    v_cvt_pk_bf16_f32 v{D+1}, v{D+2}, v{D+3}
    s_mov_b64 exec, {sJ2m}
    ds_write_b64 v{vCXw}, {vr(D,2)} offset:{CX}
    s_mov_b64 exec, -1
    s_waitcnt lgkmcnt(0)
    s_barrier
    """)
    g.ts(11)
    gemm2(WO, 2, BR, "SP", 0)
    g.ts(12)
    g(f"s_branch {Lend}")

    g(f"""
    {Lf}:
    s_sub_u32 {sH}, s2, 64
    s_and_b32 {sJ}, {sH}, 1
    v_mul_u32_u24 v{T+6}, 1280, v{vLR}
    v_add_u32 v{T+6}, v{T+6}, v{vCB}
    s_mul_i32 {sOff}, {sH}, {32*1280}
    s_add_u32 m0, {sT3}, {IMG}
    """)
    g.mksrd(SRD_B, "wd")
    dma_loop(g, 10, T+6, SRD_B, 128, flags=o.get("late_flags", ""))
    g(f"""
    s_cmp_eq_u32 {sJ}, 0
    s_cselect_b64 s[{SRD_A}:{SRD_A+1}], s[{PTR['wg']}:{PTR['wg']+1}], s[{PTR['wu']}:{PTR['wu']+1}]
    s_mov_b32 s{SRD_A+2}, {SZ['wg']}
    s_mov_b32 s{SRD_A+3}, 0x20000
    v_mul_u32_u24 v{T+5}, 3456, v{vLR}
    v_add_u32 v{T+5}, v{T+5}, v{vCB}
    s_lshr_b32 {sOff}, {sH}, 1
    s_lshl_b32 {sOff}, {sOff}, 7
    """)
    dma_loop(g, 20, T+5, SRD_A, 32*3456, flags=o.get("late_flags", ""))
    g.ts(8)
    gemm2_addrs()
    WD, XF, GF = 32, 72, 152
    g(f"""
    v_add_u32 v{vTB1}, {IMG}, v{vTB}
    v_add_u32 v{vTB2}, {IMG+40960}, v{vTB}
    v_add_u32 v{vTB3}, {IMG+40960+65536}, v{vTB}
    v_lshlrev_b32 v{vCLo}, 6, v{T+3}
    v_lshl_add_u32 v{vCLo}, v{T}, 4, v{vCLo}
    s_lshl_b32 {sOff}, {sH}, 8
    s_and_b32 {sT1}, {sW}, 1
    s_lshl_b32 {sT0}, {sT1}, 7
    s_add_u32 {sOff}, {sOff}, {sT0}
    s_add_u32 {sOff}, {sOff}, {WS['FX']}
    s_xor_b32 {sOff2}, {sOff}, 256
    v_mul_u32_u24 v{vCXw}, 192, v{T+3}
    v_lshl_add_u32 v{vCXw}, v{T}, 3, v{vCXw}
    s_lshl_b32 {sT0}, {sT1}, 5
    v_add_u32 v{vCXw}, {sT0}, v{vCXw}
    """)
    for s in range(20): g(f"ds_read_b128 {vr(XF+4*s,4)}, v{vXB} offset:{XN+s*64}")
    g("s_waitcnt vmcnt(20)\ns_barrier")
    for blk in range(10):
        for t in range(2):
            g(f"ds_read_b64_tr_b16 {vr(WD+4*blk+2*t,2)}, v{vTB1} offset:{blk*4096+t*1024}")
    g("s_waitcnt vmcnt(0)\ns_barrier")
    g.ts(9)
    def rdg(s):
        for t in range(2):
            off = s*4096 + t*1024
            b = vTB2 if off < 65536 else vTB3
            g(f"ds_read_b64_tr_b16 {vr(GF+4*s+2*t,2)}, v{b} offset:{off & 0xffff}")
    for s in range(7): rdg(s)
    for s in range(20):
        rem = min(19, s+6) - s
        g(f"s_waitcnt lgkmcnt({2*rem})")
        g(f"v_mfma_f32_16x16x32_bf16 {vr(D,4)}, {vr(GF+4*s,4)}, {vr(XF+4*s,4)}, {vr(D,4) if s else 0}")
        if s+7 < 20: rdg(s+7)
    Lk, Lj = g.label("keep"), g.label("fjoin")
    g(f"""
    s_lshr_b32 {sT0}, {sW}, 1
    s_cmp_eq_u32 {sT0}, {sJ}
    s_cbranch_scc1 {Lk}
    s_nop 4
    """)
    g.tag(range(D, D+4))
    g(f"""
    s_mov_b64 exec, {sJ2m}
    buffer_store_dwordx4 {vr(D,4)}, v{vCLo}, {srd(SRD_WS)}, {sOff} offen sc1
    s_mov_b64 exec, -1
    s_branch {Lj}
    {Lk}:
    """)
    L = g.poll_begin("fx")
    g(f"buffer_load_dwordx4 {vr(D+4,4)}, v{vCLo}, {srd(SRD_WS)}, {sOff2} offen sc1\ns_waitcnt vmcnt(0)")
    g.chk(T+7, list(range(D+4, D+8))); g.poll_end(L)
    g.ts(10)
    g(f"s_cmp_eq_u32 {sJ}, 0\ns_cselect_b64 vcc, -1, 0\ns_nop 1")
    c1 = -2*0.7978845608028654*LOG2E
    for r in range(4):
        g(f"v_cndmask_b32 v{XF+r}, v{D+4+r}, v{D+r}, vcc\nv_cndmask_b32 v{XF+4+r}, v{D+r}, v{D+4+r}, vcc")
    g(f"s_mov_b32 {sT0}, {c1*0.044715!r}\nv_mov_b32 v{T+5}, {c1!r}")
    for r in range(4): g(f"v_mul_f32 v{XF+8+r}, v{XF+r}, v{XF+r}")
    for r in range(4): g(f"v_fma_f32 v{XF+8+r}, v{XF+8+r}, {sT0}, v{T+5}")
    for r in range(4): g(f"v_mul_f32 v{XF+8+r}, v{XF+8+r}, v{XF+r}")
    for r in range(4): g(f"v_exp_f32 v{XF+8+r}, v{XF+8+r}")
    for r in range(4): g(f"v_add_f32 v{XF+8+r}, 1.0, v{XF+8+r}")
    for r in range(4): g(f"v_rcp_f32 v{XF+8+r}, v{XF+8+r}")
    for r in range(4): g(f"v_mul_f32 v{XF+r}, v{XF+r}, v{XF+8+r}")
    for r in range(4): g(f"v_mul_f32 v{XF+r}, v{XF+r}, v{XF+4+r}")
    g(f"""
    v_cvt_pk_bf16_f32 v{XF}, v{XF}, v{XF+1}
    v_cvt_pk_bf16_f32 v{XF+1}, v{XF+2}, v{XF+3}
    s_mov_b64 exec, {sJ2m}
    ds_write_b64 v{vCXw}, {vr(XF,2)} offset:{CX}
    s_mov_b64 exec, -1
    {Lj}:
    s_waitcnt lgkmcnt(0)
    s_barrier
    """)
    g.ts(11)
    gemm2(WD, 1, GF, "YP", 64)
    g.ts(12)
    g(f"{Lend}:")
    g.finish()

def role_a(g):
    o = g.o
    T = 6
    vTag = 5; g.vTag = vTag
    vDo, vQo, vL16 = 1, 2, 3
    g(f"""
    s_and_b32 {sGrp}, s2, 7
    s_bfe_u32 {sP}, s2, 0x40003
    v_lshrrev_b32 v{T}, 4, v0
    v_and_b32 v{T+1}, 15, v0
    v_lshl_or_b32 v{T+2}, v{T}, 2, {sW}
    v_xor_b32 v{T+2}, v{T+2}, v{T+1}
    v_lshlrev_b32 v{T+2}, 4, v{T+2}
    s_lshl_b32 {sT0}, {sW}, 2
    v_add_u32 v{T+3}, {sT0}, v{T}
    v_lshl_add_u32 v{vDo}, v{T+3}, 10, v{T+2}
    v_lshl_add_u32 v{vQo}, v{T+3}, 8, v{T+2}
    s_lshl_b32 {sT0}, {sGrp}, 4
    s_add_u32 {sT0}, {sT0}, {sP}
    s_lshl_b32 {sOff}, {sT0}, 17
    s_lshl_b32 {sT3}, {sW}, 10
    s_mov_b32 m0, {sT3}
    s_waitcnt lgkmcnt(0)
    """)
    g.mksrd(SRD_A, "ckv"); g.mksrd(SRD_WS, "ws", WS_USED)
    if o.get("codepf", 1):
        g(f"""
        s_getpc_b64 s[60:61]
        L_pc:
        s_sub_u32 s60, s60, L_pc-{NAME}_kernel
        s_subb_u32 s61, s61, 0
        s_lshl_b32 {sT0}, {sP}, 2
        s_add_u32 {sT0}, {sT0}, {sW}
        s_lshl_b32 {sT0}, {sT0}, 8
        v_lshl_add_u32 v{T+4}, v0, 7, {sT0}
        v_min_u32 v{T+4}, L_codeend-{NAME}_kernel-4, v{T+4}
        s_mov_b64 exec, 3
        global_load_dword v230, v{T+4}, s[60:61]
        s_mov_b64 exec, -1
        """)
    thr, nr = o.get("thr", 2), o.get("nr", 2)
    fl = o.get("ckv_flags", "nt")
    for i in range(32):
        dma(g, vDo, SRD_A, sOff, fl)
        if i == 0: g(f"s_load_dword {sE}, s[88:89], 0\ns_getreg_b32 {sXcc}, hwreg(HW_REG_XCC_ID, 0, 4)\ns_movk_i32 {sK}, 0x4000\ns_movk_i32 {sT2}, 0x1000")
        if i < 31:
            if (i & 7) == 7: g(f"s_sub_u32 {sOff}, {sOff}, {7*16384-256}")
            else: g(f"s_add_u32 {sOff}, {sOff}, {sK}")
            g(f"s_add_u32 m0, m0, {sT2}")
            if thr and (i+1) % thr == 0 and (i+1)//thr <= nr: g("s_waitcnt vmcnt(0)")
            else: g("s_nop 0")
    g("s_waitcnt lgkmcnt(0)")
    g.ts(1)
    epoch_regs(g)
    vCk = 4
    CK = 16
    g(f"""
    v_lshrrev_b32 v{T+4}, 2, v0
    v_lshlrev_b32 v{T+4}, 4, v{T+4}
    v_and_b32 v{T+5}, 3, v0
    s_lshl_b32 {sT0}, {sW}, 2
    v_add3_u32 v{T+4}, v{T+4}, v{T+5}, {sT0}
    v_lshlrev_b32 v{vCk}, 7, v{T+4}
    s_lshr_b32 {sT0}, {sGrp}, 2
    s_lshl_b32 {sOff2}, {sT0}, 2
    s_add_u32 {sOff2}, {sOff2}, {WS['QC']}
    s_lshl_b32 {sRec}, {sT0}, 15
    s_add_u32 {sRec}, {sRec}, {WS['QA']}
    v_lshlrev_b32 v{vL16}, 4, v0
    v_add_u32 v{T+8}, {sT3}, v{vL16}
    v_add_u32 v{T+8}, {QAI}, v{T+8}
    v_mov_b32 v{CK}, 0
    s_mov_b32 {sDone}, 0
    """)
    Lq = g.poll_begin("qa")
    g(f"s_mov_b32 {sOff}, {sRec}\ns_add_u32 m0, {sT3}, {QAI}")
    dma_loop(g, 8, vQo, SRD_WS, 4096, flags="sc1")
    Lnp, Lw = g.label("nopf"), g.label("qw")
    g(f"""
    s_mov_b32 exec_hi, 0
    buffer_load_dword v{CK}, v{vCk}, {srd(SRD_WS)}, {sOff2} offen sc1
    s_mov_b64 exec, -1
    s_cmp_lg_u32 {sCnt}, 0
    s_cbranch_scc1 {Lnp}
    s_lshl_b32 {sT0}, {sGrp}, 4
    s_add_u32 {sT0}, {sT0}, {sP}
    s_lshl_b32 {sT0}, {sT0}, 2
    s_add_u32 {sT0}, {sT0}, {sW}
    s_lshl_b32 {sH}, {sT0}, 13
    s_add_u32 {sH}, {sH}, {WS['PO']}
    s_lshl_b32 {sJ}, {sT0}, 9
    s_add_u32 {sJ}, {sJ}, {WS['ST']}
    v_lshlrev_b32 v{T+4}, 7, v0
    {'s_mov_b64 exec, 1' if o.get('nopf') else ''}
    buffer_load_dword v228, v{T+4}, {srd(SRD_WS)}, {sH} offen sc1
    s_mov_b64 exec, 15
    buffer_load_dword v229, v{T+4}, {srd(SRD_WS)}, {sJ} offen sc1
    s_mov_b64 exec, -1
    """)
    KA_, KB_, VB = 18, 26, 34
    g(f"""
    v_and_b32 v{T+7}, 3, v0
    v_bfe_u32 v{T+9}, v0, 2, 2
    v_lshl_or_b32 v{KB_}, v{T+7}, 2, v{T+9}
    v_lshrrev_b32 v{KB_+1}, 5, v0
    v_xor_b32 v{KB_}, v{KB_}, v{KB_+1}
    v_lshlrev_b32 v{KB_}, 4, v{KB_}
    v_and_b32 v{KB_+2}, 31, v0
    v_lshl_add_u32 v{KB_}, v{KB_+2}, 8, v{KB_}
    s_lshl_b32 {sT0}, {sW}, 13
    v_add_u32 v{KA_}, {sT0}, v{KB_}
    v_add_u32 v{KB_}, {QAI}, v{KB_}
    v_bfe_u32 v{VB}, v0, 4, 1
    v_lshrrev_b32 v{VB+1}, 1, v{T+7}
    v_lshl_or_b32 v{VB}, v{VB}, 1, v{VB+1}
    v_xor_b32 v{VB}, v{VB}, v{KB_+1}
    v_lshl_or_b32 v{VB}, v{T+9}, 2, v{VB}
    v_lshlrev_b32 v{VB}, 4, v{VB}
    v_and_b32 v{VB+1}, 1, v0
    v_lshl_add_u32 v{VB}, v{VB+1}, 3, v{VB}
    v_lshl_add_u32 v{VB+1}, v{KB_+1}, 2, v{T+9}
    v_lshl_add_u32 v{VB}, v{VB+1}, 8, v{VB}
    s_lshl_b32 {sT0}, {sW}, 15
    v_add_u32 v{VB}, {sT0}, v{VB}
    """)
    for s in range(1, 8):
        g(f"v_xor_b32 v{KA_+s}, {s<<5}, v{KA_}\nv_xor_b32 v{KB_+s}, {s<<5}, v{KB_}\nv_xor_b32 v{VB+s}, {s<<5}, v{VB}")
    g(f"""
    s_waitcnt vmcnt(2)
    s_branch {Lw}
    {Lnp}:
    s_waitcnt vmcnt(0)
    {Lw}:
    """)
    FB = 44
    for i in range(8): g(f"ds_read_b128 {vr(FB+4*i,4)}, v{T+8} offset:{i*4096}")
    g(f"v_sub_u32 v{T+4}, 0, v{CK}")
    for i in range(8):
        g(f"s_waitcnt lgkmcnt({7-i})")
        g(f"v_add3_u32 v{T+4}, v{T+4}, v{FB+4*i}, v{FB+4*i+1}\nv_add3_u32 v{T+4}, v{T+4}, v{FB+4*i+2}, v{FB+4*i+3}")
    g.allred16("v_add_u32", T+4); g.swapred("v_add_u32", T+4, T+7, 16); g.swapred("v_add_u32", T+4, T+7, 32)
    g(f"s_lshl_b32 {sT0}, {sE}, 5\nv_add_u32 v{T+4}, {sT0}, v{T+4}\nv_cmp_ne_u32 vcc, 0, v{T+4}")
    g.poll_end(Lq)
    g.ts(2)
    if o.get("ts"): g(f"s_mov_b32 s{TSB+13}, {sCnt}")
    g("s_barrier")
    g.ts(3)
    S = 76
    PD = 4
    def rdqk(s):
        b = FB + 8*(s % PD); ch = s >> 3
        g(f"ds_read_b128 {vr(b,4)}, v{KA_+(s&7)} offset:{(ch&1)*32768}")
        g(f"ds_read_b128 {vr(b+4,4)}, v{KB_+(s&7)} offset:{ch*8192}")
        if ch == 1: g(f"v_add_u32 v{KA_+(s&7)}, 0x10000, v{KA_+(s&7)}")
    for s in range(PD-1): rdqk(s)
    for s in range(32):
        if s+PD-1 < 32: rdqk(s+PD-1)
        rem = min(31, s+PD-1) - s
        g(f"s_waitcnt lgkmcnt({2*rem})")
        b = FB + 8*(s % PD)
        g(f"v_mfma_f32_32x32x16_bf16 {vr(S,16)}, {vr(b,4)}, {vr(b+4,4)}, {vr(S,16) if s else 0}")
        if s == 16: g("s_barrier")
    vX = T+8
    g(f"""
    v_and_b32 v{vX}, 31, v0
    v_lshlrev_b32 v{vX}, 2, v{vX}
    v_add_u32 v{vX}, {QAI}, v{vX}
    s_lshl_b32 {sT0}, {sW}, 7
    v_add_u32 v{T+9}, {sT0}, v{vX}
    v_add_u32 v{KA_}, {QAI}, v{vL16}
    s_lshl_b32 {sT0}, {sW}, 11
    v_add_u32 v{KA_+1}, {sT0}, v{KA_}
    """)
    VF = FB
    def rdpv(n):
        e2, ks, e = n >> 4, (n >> 1) & 7, n & 1
        tt = 2*e2 + e; b = VF + 4*(n % 8)
        for t in range(2):
            g(f"ds_read_b64_tr_b16 {vr(b+2*t,2)}, v{VB+2*tt+t} offset:{ks*4096+t*2048}")
    g.nop(4)
    g.ts(4)
    vM, vLs = T+4, T+5
    g(f"v_max3_f32 v{vM}, v{S}, v{S+1}, v{S+2}")
    for r in range(3, 15, 2): g(f"v_max3_f32 v{vM}, v{vM}, v{S+r}, v{S+r+1}")
    g(f"v_max_f32 v{vM}, v{vM}, v{S+15}")
    g.swapred("v_max_f32", vM, T+7, 32)
    g(f"""
    ds_write_b32 v{T+9}, v{vM}
    s_waitcnt lgkmcnt(0)
    s_barrier
    ds_read2_b32 {vr(KB_,2)}, v{vX} offset0:0 offset1:32
    ds_read2_b32 {vr(KB_+2,2)}, v{vX} offset0:64 offset1:96
    """)
    for n in range(6): rdpv(n)
    g(f"""
    s_waitcnt lgkmcnt(12)
    v_max3_f32 v{vM}, v{KB_}, v{KB_+1}, v{KB_+2}
    v_max_f32 v{vM}, v{vM}, v{KB_+3}
    """)
    PF = 92
    for r in range(16): g(f"v_sub_f32 v{S+r}, v{S+r}, v{vM}")
    for r in range(16): g(f"v_exp_f32 v{S+r}, v{S+r}")
    OWN = 124
    for r in range(8): g(f"v_cvt_pk_bf16_f32 v{OWN+r}, v{S+2*r}, v{S+2*r+1}")
    g(f"ds_write_b128 v{KA_+1}, {vr(OWN,4)} offset:{PX-QAI}\nds_write_b128 v{KA_+1}, {vr(OWN+4,4)} offset:{PX-QAI+1024}")
    g(f"v_add_f32 v{vLs}, v{S}, v{S+1}")
    for r in range(2, 16): g(f"v_add_f32 v{vLs}, v{vLs}, v{S+r}")
    g.swapred("v_add_f32", vLs, T+7, 32)
    g(f"""
    ds_write_b32 v{T+9}, v{vLs} offset:{LS-QAI}
    s_waitcnt lgkmcnt(0)
    s_barrier
    """)
    g.ts(5)
    for ks in range(8): g(f"ds_read_b128 {vr(PF+4*ks,4)}, v{KA_} offset:{PX-QAI+ks*1024}")
    g(f"""
    ds_read2_b32 {vr(KB_,2)}, v{vX} offset0:128 offset1:160
    ds_read2_b32 {vr(KB_+2,2)}, v{vX} offset0:192 offset1:224
    """)
    O = 132
    PK = 196
    def pack_store(e2, gq):
        b = PK + 16*e2 + 4*gq
        for d in range(4):
            g(f"v_cvt_pk_bf16_f32 v{b+d}, v{O+32*e2+4*gq+d}, v{O+32*e2+16+4*gq+d}")
        off = e2*4096 + gq*1024
        g(f"buffer_store_dwordx4 {vr(b,4)}, v{vL16 if off < 4096 else KB_+4}, {srd(SRD_WS)}, {sH} offen offset:{off & 4095} {o.get('po_flags','')}")
    g(f"v_add_u32 v{KB_+4}, 4096, v{vL16}")
    issued = 6
    for n in range(32):
        e2, ks, e = n >> 4, (n >> 1) & 7, n & 1
        tt = 2*e2 + e
        if issued < 32: rdpv(issued); issued += 1
        nV = 2*(issued-6)
        needP = (7-ks) + 2 + nV if e2 == 0 else 99
        needV = 2*(issued-1-n) if n >= 6 else 99
        w = min(needP, needV)
        g(f"s_waitcnt lgkmcnt({min(w, 13)})")
        acc = vr(O+16*tt, 16)
        g(f"v_mfma_f32_32x32x16_bf16 {acc}, {vr(PF+4*ks,4)}, {vr(VF+4*(n%8),4)}, {acc if ks else 0}")
        if n >= 20 and n % 2 == 0 and n <= 26: pack_store(0, (n-20)//2)
    STG = KB_+4
    FG = 76
    g(f"""
    v_mov_b32 v{FG}, v{vM}
    v_add_f32 v{FG+1}, v{KB_}, v{KB_+1}
    v_add_f32 v{FG+2}, v{KB_+2}, v{KB_+3}
    v_add_f32 v{FG+1}, v{FG+1}, v{FG+2}
    v_mov_b32 v{FG+2}, {sE}
    v_mov_b32 v{FG+3}, {sXcc}
    s_lshl_b32 {sRec}, {sP}, 2
    s_add_u32 {sRec}, {sRec}, {sW}
    s_lshl_b32 {sOff}, {sGrp}, 15
    s_lshr_b32 {sT0}, {sRec}, 4
    s_lshl_b32 {sT0}, {sT0}, 9
    s_add_u32 {sOff}, {sOff}, {sT0}
    """)
    for gq in range(4): pack_store(1, gq)
    g.ts(6)
    vFo, vDl, vBp, MK = 80, 81, 82, 84
    g(f"""
    s_and_b32 {sT0}, {sRec}, 7
    s_lshl_b32 {sT0}, {sT0}, 6
    s_add_u32 {sOff}, {sOff}, {sT0}
    s_add_u32 {sOff}, {sOff}, {WS['ST']}
    v_lshrrev_b32 v{vFo}, 2, v0
    v_lshlrev_b32 v{vFo}, 11, v{vFo}
    v_and_b32 v{T+7}, 3, v0
    v_lshl_add_u32 v{vFo}, v{T+7}, 4, v{vFo}
    v_lshrrev_b32 v{T+8}, 5, v0
    v_and_b32 v{vDl}, 31, v0
    v_lshlrev_b32 v{vDl}, 4, v{vDl}
    v_lshl_add_u32 v{vDl}, v{T+8}, 15, v{vDl}
    s_lshl_b32 {sOff2}, {sGrp}, 19
    s_lshl_b32 {sT0}, {sRec}, 9
    s_add_u32 {sOff2}, {sOff2}, {sT0}
    s_add_u32 {sOff2}, {sOff2}, {WS['PO']}
    v_bfe_u32 v{T+9}, v0, 2, 2
    v_lshl_add_u32 v{vBp}, v{T+8}, 2, v{T+9}
    v_lshlrev_b32 v{vBp}, 2, v{vBp}
    v_and_b32 v{T+7}, 1, v0
    v_lshlrev_b32 v{T+7}, 4, v{T+7}
    v_mov_b32 v{T+8}, 0xffff
    v_lshlrev_b32 v{T+7}, v{T+7}, v{T+8}
    v_lshrrev_b32 v{T+8}, 3, v0
    v_xor_b32 v{T+8}, v{T+8}, v0
    v_and_b32 v{T+8}, 2, v{T+8}
    v_cmp_eq_u32 vcc, 0, v{T+8}
    s_nop 1
    v_cndmask_b32 v{T+7}, 0, v{T+7}, vcc
    """)
    for d in range(4):
        g(f"v_cmp_eq_u32 vcc, {d}, v{T+9}\ns_nop 1\nv_cndmask_b32 v{MK+d}, 0, v{T+7}, vcc")
    g(f"""
    s_waitcnt vmcnt(0)
    s_mov_b32 exec_hi, 0
    buffer_store_dwordx4 {vr(FG,4)}, v{vL16}, {srd(SRD_WS)}, {sJ} offen
    s_mov_b64 exec, -1
    """)
    g.ts(7)
    def restore():
        for e2 in range(2):
            for gq in range(4):
                off = e2*4096 + gq*1024
                g(f"buffer_store_dwordx4 {vr(PK+16*e2+4*gq,4)}, v{vL16 if off < 4096 else KB_+4}, {srd(SRD_WS)}, {sH} offen offset:{off & 4095} sc1")
        g(f"""
        s_waitcnt vmcnt(0)
        v_or_b32 v{FG+3}, 0x100, v{FG+3}
        s_mov_b32 exec_hi, 0
        buffer_store_dwordx4 {vr(FG,4)}, v{vL16}, {srd(SRD_WS)}, {sJ} offen sc1
        s_mov_b64 exec, -1
        s_mov_b32 {sDone}, 1
        """)
    FR = 88
    L = g.poll_begin("st"); Lok, Lnr = g.label("stok"), g.label("norest")
    g(f"""
    buffer_load_dwordx4 {vr(FR,4)}, v{vFo}, {srd(SRD_WS)}, {sOff} offen sc1
    s_waitcnt vmcnt(0)
    v_and_b32 v{T+7}, 15, v{FR+3}
    v_cmp_ne_u32 s[62:63], {sXcc}, v{T+7}
    v_cmp_gt_u32 {sEx}, 16, v{FR+3}
    v_cmp_ne_u32 vcc, {sE}, v{FR+2}
    s_and_b64 {sEx}, {sEx}, s[62:63]
    s_or_b64 vcc, vcc, {sEx}
    s_cbranch_vccz {Lok}
    s_add_u32 {sCnt}, {sCnt}, 1
    s_cmp_lg_u32 {sCnt}, {o.get('nfall', 24)}
    s_cbranch_scc1 {Lnr}
    """)
    restore()
    g(f"""
    {Lnr}:
    s_cmp_lt_u32 {sCnt}, {MAXPOLL}
    s_cbranch_scc1 {L}
    {Lok}:
    """)
    DT = 92
    for u in range(8):
        g(f"buffer_load_dwordx4 {vr(DT+4*u,4)}, v{vDl}, {srd(SRD_WS)}, {sOff2} offen sc1")
        if u < 7: g(f"s_add_u32 {sOff2}, {sOff2}, 0x10000")
    g.ts(8)
    if o.get("ts"): g(f"s_mov_b32 s{TSB+14}, {sCnt}")
    vW = T+6
    g(f"v_mov_b32 v{vM}, v{FR}")
    g.allred16("v_max_f32", vM, (4, 8)); g.swapred("v_max_f32", vM, T+7, 16); g.swapred("v_max_f32", vM, T+7, 32)
    g(f"""
    v_sub_f32 v{vW}, v{FR}, v{vM}
    v_exp_f32 v{vW}, v{vW}
    s_nop 0
    v_cvt_pk_bf16_f32 v{vW}, v{vW}, v{vW}
    v_and_b32 v{vLs}, 0xffff0000, v{vW}
    v_mul_f32 v{vLs}, v{vLs}, v{FR+1}
    """)
    WV = 124
    for u in range(8): g(f"ds_bpermute_b32 v{WV+u}, v{vBp}, v{vW} offset:{32*u}")
    g.allred16("v_add_f32", vLs, (4, 8)); g.swapred("v_add_f32", vLs, T+7, 16); g.swapred("v_add_f32", vLs, T+7, 32)
    AFr = 132
    g(f"""
    v_rcp_f32 v{T+8}, v{vLs}
    v_log_f32 v{T+9}, v{vLs}
    v_lshrrev_b32 v{T+7}, 4, v0
    v_lshlrev_b32 v{T+3}, 2, v{T+7}
    ds_bpermute_b32 v{T+8}, v{T+3}, v{T+8}
    v_add_f32 v{FR}, v{vM}, v{T+9}
    v_mov_b32 v{FR+1}, {sE}
    v_mov_b32 v{FR+2}, {sE}
    v_mov_b32 v{FR+3}, {sE}
    v_and_b32 v{T+2}, 15, v0
    v_lshlrev_b32 v{T+2}, 4, v{T+2}
    v_lshl_add_u32 v{T+2}, v{T+7}, 14, v{T+2}
    s_and_b32 {sT0}, {sRec}, 7
    s_lshl_b32 {sOff}, {sT0}, 16
    s_lshl_b32 {sT1}, {sGrp}, 11
    s_add_u32 {sOff}, {sOff}, {sT1}
    s_lshr_b32 {sT1}, {sRec}, 3
    s_lshl_b32 {sT1}, {sT1}, 8
    s_add_u32 {sOff}, {sOff}, {sT1}
    s_add_u32 {sOff}, {sOff}, {WS['CL']}
    s_lshl_b32 {sT0}, {sT0}, 7
    s_lshl_b32 {sT1}, {sGrp}, 10
    s_add_u32 {sT0}, {sT0}, {sT1}
    s_add_u32 {sT0}, {sT0}, {WS['CS']}
    s_waitcnt lgkmcnt(0)
    """)
    for u in range(8):
        for d in range(4): g(f"v_and_b32 v{AFr+4*u+d}, v{MK+d}, v{WV+u}")
    D = 164
    g("s_nop 0")
    for u in range(8):
        g(f"s_waitcnt vmcnt({7-u})")
        g(f"v_mfma_f32_16x16x32_bf16 {vr(D,4)}, {vr(AFr+4*u,4)}, {vr(DT+4*u,4)}, {vr(D,4) if u else 0}")
    Lns = g.label("nocs")
    g(f"""
    s_cmp_ge_u32 {sRec}, 8
    s_cbranch_scc1 {Lns}
    s_mov_b64 exec, 15
    buffer_store_dwordx4 {vr(FR,4)}, v{vL16}, {srd(SRD_WS)}, {sT0} offen sc1
    s_mov_b64 exec, -1
    {Lns}:
    """)
    g.nop(6)
    for r in range(4): g(f"v_mul_f32 v{D+r}, v{D+r}, v{T+8}")
    g.tag(range(D, D+4))
    g(f"buffer_store_dwordx4 {vr(D,4)}, v{T+2}, {srd(SRD_WS)}, {sOff} offen sc1")
    g.ts(9)
    Lz, Lend = g.label("z"), g.label("Aend")
    g(f"s_cmp_lg_u32 {sDone}, 0\ns_cbranch_scc1 {Lz}\ns_cmp_eq_u64 s[62:63], 0\ns_cbranch_scc1 {Lz}")
    restore()
    g(f"{Lz}:")
    g.ts(10)
    g(f"""
    s_cmp_lg_u32 {sW}, 0
    s_cbranch_scc1 {Lend}
    s_sub_u32 {sH}, s2, 128
    s_cmp_ge_u32 {sH}, 40
    s_cbranch_scc1 {Lend}
    s_lshr_b32 {sT0}, {sH}, 1
    s_mul_i32 {sT1}, {sT0}, 52
    s_lshr_b32 {sT1}, {sT1}, 8
    s_mul_i32 {sT2}, {sT1}, 5
    s_sub_u32 {sT0}, {sT0}, {sT2}
    s_lshl_b32 {sT0}, {sT0}, 8
    s_lshl_b32 {sT1}, {sT1}, 5
    s_add_u32 {sT0}, {sT0}, {sT1}
    s_and_b32 {sT1}, {sH}, 1
    s_lshl_b32 {sT1}, {sT1}, 4
    s_add_u32 {sT0}, {sT0}, {sT1}
    v_lshrrev_b32 v{T}, 5, v0
    v_lshlrev_b32 v{T}, 7, v{T}
    v_bfe_u32 v{T+1}, v0, 4, 1
    v_mul_u32_u24 v{T+1}, 1280, v{T+1}
    v_and_b32 v{T+2}, 7, v0
    v_lshlrev_b32 v{T+2}, 1, v{T+2}
    v_add3_u32 v{T}, v{T}, v{T+1}, v{T+2}
    v_add_u32 v{T}, {sT0}, v{T}
    s_lshl_b32 {sT0}, {sH}, 13
    s_add_u32 {sOff}, {sT0}, {WS['YP']}
    s_add_u32 {sOff2}, {sT0}, {WS['SP']}
    """)
    g.mksrd(SRD_B, "x"); g.mksrd(SRD_C, "out")
    g(f"buffer_load_ushort v{T+1}, v{T}, {srd(SRD_B)}, 0 offen")
    Z = 92
    def zsum(n, dst):
        for i in range(1, n):
            g(f"v_pk_add_f32 {vr(Z,2)}, {vr(Z,2)}, {vr(Z+4*i,2)}\nv_pk_add_f32 {vr(Z+2,2)}, {vr(Z+2,2)}, {vr(Z+4*i+2,2)}")
        g(f"""
        s_nop 1
        v_permlane32_swap_b32 v{Z}, v{Z+2}
        v_permlane32_swap_b32 v{Z+1}, v{Z+3}
        s_nop 1
        v_add_f32 v{Z}, v{Z}, v{Z+2}
        v_add_f32 v{Z+1}, v{Z+1}, v{Z+3}
        s_nop 1
        v_permlane16_swap_b32 v{Z}, v{Z+1}
        s_nop 1
        v_add_f32 v{Z}, v{Z}, v{Z+1}
        s_nop 1
        v_add_f32_dpp v{dst}, v{Z}, v{Z} row_ror:8 row_mask:0xf bank_mask:0xf
        """)
    for r in range(4): g(f"v_mov_b32 v{Z+24+r}, {sTag}")
    L = g.poll_begin("yp")
    for i in range(7):
        if i == 6: g("s_mov_b32 exec_hi, 0xffff")
        g(f"buffer_load_dwordx4 {vr(Z+4*i,4)}, v{vL16 if i < 4 else KB_+4}, {srd(SRD_WS)}, {sOff} offen offset:{(i&3)*1024} sc1")
    g("s_mov_b64 exec, -1\ns_waitcnt vmcnt(0)")
    g.chk(T+7, list(range(Z, Z+28))); g.poll_end(L)
    g.ts(11)
    zsum(7, T+2)
    g(f"""
    v_mul_f32 v{T+3}, {-LOG2E!r}, v{T+2}
    v_exp_f32 v{T+3}, v{T+3}
    v_lshlrev_b32 v{T+1}, 16, v{T+1}
    v_add_f32 v{T+3}, 1.0, v{T+3}
    v_rcp_f32 v{T+3}, v{T+3}
    s_nop 0
    v_mul_f32 v{T+2}, v{T+2}, v{T+3}
    """)
    L = g.poll_begin("sp")
    for i in range(8):
        g(f"buffer_load_dwordx4 {vr(Z+4*i,4)}, v{vL16 if i < 4 else KB_+4}, {srd(SRD_WS)}, {sOff2} offen offset:{(i&3)*1024} sc1")
    g("s_waitcnt vmcnt(0)")
    g.chk(T+7, list(range(Z, Z+32))); g.poll_end(L)
    g.ts(12)
    zsum(8, T+3)
    g(f"""
    v_fmac_f32 v{T+1}, v{T+2}, v{T+3}
    v_cvt_pk_bf16_f32 v{T+1}, v{T+1}, v{T+1}
    s_mov_b32 {sT0}, 0x00ff00ff
    s_mov_b32 {sT1}, 0x00ff00ff
    s_mov_b64 exec, s[24:25]
    buffer_store_short v{T+1}, v{T}, {srd(SRD_C)}, 0 offen
    s_cmp_lg_u32 {sH}, 0
    s_cbranch_scc1 {Lend}
    s_mov_b64 exec, 1
    v_mov_b32 v{T+2}, {sE}
    v_mov_b32 v{T+3}, 0
    buffer_store_dword v{T+2}, v{T+3}, {srd(SRD_WS)}, 0 offen sc1
    """)
    if o.get("amp"):
        g(f"""
        s_memrealtime s[92:93]
        s_waitcnt lgkmcnt(0)
        s_sub_u32 s94, s92, s90
        s_min_u32 s94, s94, 5000
        s_mul_i32 s94, s94, {o['amp']}
        {'s_mov_b32 s94, %d' % o['fix'] if o.get('fix') else ''}
        {'s_mov_b32 s92, s90' if o.get('fix') else ''}
        L_ampspin:
        s_memrealtime s[90:91]
        s_waitcnt lgkmcnt(0)
        s_sub_u32 s95, s90, s92
        s_cmp_lt_u32 s95, s94
        s_cbranch_scc1 L_ampspin
        """)
    g(f"{Lend}:")
    g.finish()

def build(opt):
    g = G(opt)
    if opt.get("ts"):
        for i in range(16): g(f"s_mov_b32 s{TSB+i}, 0")
        g.ts(0)
    if opt.get("amp"): g("s_memrealtime s[90:91]")
    g(f"""
    s_cmp_ge_u32 s2, 256
    s_cbranch_scc1 L_exit
    s_load_dwordx16 s[64:79], s[0:1], 0
    s_load_dwordx8 s[80:87], s[0:1], 64
    s_load_dwordx2 s[88:89], s[0:1], 96
    v_readfirstlane_b32 {sW}, v0
    v_and_b32 v0, 63, v0
    s_nop 2
    s_lshr_b32 {sW}, {sW}, 6
    s_cmp_ge_u32 s2, 128
    s_cbranch_scc1 L_roleA
    """)
    role_w(g)
    g("L_exit:\ns_endpgm")
    g(".p2align 6\nL_roleA:")
    role_a(g)
    g("L_codeend:")
    K = NAME + "_kernel"
    s = header(["; @launch grid=(256,1,1) block=(256,1,1) lds=163840"])
    s += kernel_text(K, g.text())
    s += '.section .rodata,"a"\n' + descriptor(K, vgpr=256, sgpr=96)
    return s

if __name__ == "__main__":
    opt = {}
    out = sys.argv[1]
    for kv in sys.argv[2:]:
        k, v = kv.split("=")
        opt[k] = int(v) if v.lstrip("-").isdigit() else v
    open(out, "w").write(build(opt))
```

```python
from common import *
import v1
K = NAME + "_kernel"
def mk(path, first=None, last=None):
    opt = dict(po_flags="sc1", nopf=1)
    s = v1.build(opt)
    body = s[s.index(f".globl {K}"):s.index('.section .rodata')]
    launch = []
    txt = ""; desc = ""
    def stamp(grid, blk, lds, vg):
        a = Asm()
        a(f"""
        s_memrealtime s[20:21]
        s_cmp_ge_u32 s2, 1
        s_cbranch_scc1 st_end
        s_load_dwordx2 s[8:9], s[0:1], 96
        s_waitcnt lgkmcnt(0)
        s_mov_b32 s10, 0x600000
        s_mov_b32 s11, 0x20000
        v_mov_b32 v1, s20
        v_mov_b32 v2, 0x1F0000
        buffer_store_dword v1, v2, s[8:11], 0 offen sc1
        s_waitcnt vmcnt(0)
        st_end:
        s_endpgm
        """)
        return f"; @launch kernel=st_kernel grid=({grid},1,1) block=({blk},1,1) lds={lds}", kernel_text("st_kernel", a.text()), descriptor("st_kernel", vgpr=vg, sgpr=32)
    def waitk(grid, blk, lds, vg):
        a = Asm()
        a(f"""
        s_cmp_ge_u32 s2, 1
        s_cbranch_scc1 wt_end
        s_load_dwordx2 s[8:9], s[0:1], 96
        s_waitcnt lgkmcnt(0)
        s_add_u32 s8, s8, 0x1F0000
        s_addc_u32 s9, s9, 0
        s_load_dword s12, s[8:9], 0
        s_waitcnt lgkmcnt(0)
        s_mov_b32 s14, 0
        wt_spin:
        s_memrealtime s[20:21]
        s_waitcnt lgkmcnt(0)
        s_add_u32 s14, s14, 1
        s_cmp_gt_u32 s14, 100000
        s_cbranch_scc1 wt_end
        s_sub_u32 s13, s20, s12
        s_cmp_lt_u32 s13, 5000
        s_cbranch_scc1 wt_spin
        wt_end:
        s_endpgm
        """)
        return f"; @launch kernel=wt_kernel grid=({grid},1,1) block=({blk},1,1) lds={lds}", kernel_text("wt_kernel", a.text()), descriptor("wt_kernel", vgpr=vg, sgpr=32)
    l1, t1, d1 = stamp(*first); l2, t2, d2 = waitk(*last)
    out = header([l1, f"; @launch kernel={K} grid=(256,1,1) block=(256,1,1) lds=163840", l2])
    out += t1 + body + t2 + '.section .rodata,"a"\n' + d1 + descriptor(K, vgpr=256, sgpr=96) + d2
    open(path, "w").write(out)
mk("../ka.s", (1, 64, 0, 8), (1, 64, 0, 8))
mk("../kb.s", (256, 256, 163840, 256), (1, 64, 0, 8))
mk("../kc.s", (1, 64, 0, 8), (256, 256, 163840, 256))
mk("../kd.s", (256, 256, 0, 8), (256, 256, 0, 8))
```

```python
import sys, math
from common import *

WS = dict(E=0, QA=0x20000, QC=0x30000, FX=0x38000, ST=0x40000, PC=0x60000, CL=0x80000, CS=0x100000,
          SH=0x100000, SP=0x110000, YP=0x160000, TS=0x1C0000, QP=0x1D0000, PO=0x200000)
WS_USED = 0xA00000
ALT = 0x800000
XN, XNP = 0, 1344
QS, QO, CLB, CX, ZERO, IMG = 3072, 7168, 3072, 7680, 8064, 8192
UKIMG = IMG + 40960
QAI = 131072
XCH = QAI + 16384
CORD = (0, 2, 3, 1)
MAXPOLL = 1 << 15
LOG2E = 1.4426950408889634
DPP = "row_mask:0xf bank_mask:0xf"

sW = "s3"
SRD_WS, SRD_A, SRD_B, SRD_C = 4, 8, 12, 16
sE, sTag, sMsk, sCnt, sT0, sT1, sT2, sT3 = "s20", "s21", "s22", "s23", "s24", "s25", "s26", "s27"
sH, sJ, sOff, sK, sDone, sXcc, sGrp, sP = "s28", "s29", "s30", "s31", "s32", "s33", "s34", "s35"
sEx = "s[36:37]"
sRec = "s38"; sOff2 = "s39"
TSB = 40
sTm = "s[56:57]"
sJ2m = "s[58:59]"
sRem = "s[62:63]"
sA, sB, sC, sD = "s90", "s91", "s92", "s93"
PTR = dict(x=64, ckv=66, wq=68, wuk=70, wuv=72, wo=74, bx=76, wg=78, wu=80, wd=82, out=84, dbg=86, ws=88)
vTag = 5
T = 6

def srd(n): return f"s[{n}:{n+3}]"
def vr(a, n=1): return f"v{a}" if n == 1 else f"v[{a}:{a+n-1}]"
WSR = srd(SRD_WS)

class G(Asm):
    def __init__(self, opt):
        super().__init__(); self.o = opt; self.nl = 0
    def label(self, base):
        self.nl += 1; return f"L{self.nl}_{base}"
    def mksrd(self, d, name, size=None):
        p = PTR[name]
        self(f"s_mov_b64 s[{d}:{d+1}], s[{p}:{p+1}]\ns_mov_b32 s{d+2}, {size or SZ[name]}\ns_mov_b32 s{d+3}, 0x20000")
    def ts(self, i):
        m = self.o.get("ts", 0)
        if m == 1 or (m and i in (0, 15)):
            self(f"s_memrealtime {sTm}\ns_waitcnt lgkmcnt(0)\ns_mov_b32 s{TSB+i}, s56")
    def nop(self, n):
        while n > 0:
            k = min(n, 16); self(f"s_nop {k-1}"); n -= k
    def tag(self, regs):
        for r in regs: self(f"v_bfi_b32 v{r}, {sMsk}, v{vTag}, v{r}")
    def chk_acc(self, acc, regs, first):
        for r in regs:
            if first: self(f"v_xor_b32 v{acc}, {sTag}, v{r}"); first = False
            else: self(f"v_bitop3_b32 v{acc}, v{acc}, v{r}, {sTag} bitop3:0xf6")
    def chk_fin(self, acc, tmp=None):
        t = acc if tmp is None else tmp
        self(f"v_and_b32 v{t}, 0x1ff, v{acc}\nv_cmp_ne_u32 vcc, 0, v{t}")
    def poll_begin(self, name):
        L = self.label(name); self(f"s_mov_b32 {sCnt}, 0\n{L}:"); return L
    def poll_end(self, L, fallback=None):
        D = self.label("ok")
        self(f"s_cbranch_vccz {D}\ns_add_u32 {sCnt}, {sCnt}, 1")
        if fallback:
            N = self.label("nofb")
            self(f"s_cmp_lg_u32 {sCnt}, {self.o.get('nfall', 24)}\ns_cbranch_scc1 {N}")
            fallback()
            self(f"{N}:")
        self(f"s_cmp_lt_u32 {sCnt}, {MAXPOLL}\ns_cbranch_scc1 {L}\n{D}:")
    def allred16(self, op, v, steps=(8, 4, 2, 1)):
        for s in steps:
            self(f"s_nop 1\n{op}_dpp v{v}, v{v}, v{v} row_ror:{s} {DPP}")
    def swapred(self, op, v, t, which):
        self(f"v_mov_b32 v{t}, v{v}\ns_nop 1\nv_permlane{which}_swap_b32 v{v}, v{t}\ns_nop 0\n{op} v{v}, v{v}, v{t}")
    def finish(self):
        if self.o.get("ts"):
            self.ts(15)
            self(f"s_mov_b64 exec, -1\nv_mov_b32 v1, 0")
            for i in range(16): self(f"v_writelane_b32 v1, s{TSB+i}, {i}")
            self(f"""
            s_lshl_b32 {sT0}, s2, 2
            s_add_u32 {sT0}, {sT0}, {sW}
            s_lshl_b32 {sT0}, {sT0}, 6
            s_add_u32 {sT0}, {sT0}, {WS['TS']}
            v_lshlrev_b32 v2, 2, v0
            s_mov_b64 exec, 0xffff
            buffer_store_dword v1, v2, {WSR}, {sT0} offen
            """)
        self("s_endpgm")

class LQ:
    def __init__(self, g): self.g = g; self.q = []
    def add(self, name, n=1): self.q += [name]*n
    def wait(self, *names):
        idx = [i for i, x in enumerate(self.q) if x in names]
        if not idx: return
        n = len(self.q) - 1 - max(idx)
        if n > 14: n = 14
        self.g(f"s_waitcnt lgkmcnt({n})"); self.q = self.q[len(self.q)-n:] if n else []
    def clear(self): self.q = []

def ar(a, n): return f"a[{a}:{a+n-1}]"

def dma(g, voff, s, soff, flags=""):
    g(f"buffer_load_dwordx4 v{voff}, {srd(s)}, {soff} offen {flags} lds")

def dma_loop(g, n, voff, s, step_src, step_lds=4096, flags="", hold=0, win=None):
    for i in range(hold):
        dma(g, voff, s, sOff, flags)
        g(f"s_add_u32 {sOff}, {sOff}, {step_src}\ns_add_u32 m0, m0, {step_lds}\ns_waitcnt vmcnt(0)")
    L = g.label("dma")
    g(f"s_mov_b32 {sK}, {n-hold}\n{L}:")
    dma(g, voff, s, sOff, flags)
    g(f"s_add_u32 {sOff}, {sOff}, {step_src}\ns_add_u32 m0, m0, {step_lds}")
    if win is not None: g(f"s_waitcnt vmcnt({win})")
    g(f"s_sub_u32 {sK}, {sK}, 1\ns_cmp_lg_u32 {sK}, 0\ns_cbranch_scc1 {L}")

def epoch_regs(g):
    g(f"""
    s_getreg_b32 {sXcc}, hwreg(HW_REG_XCC_ID, 0, 3)
    s_add_u32 {sE}, {sE}, 1
    s_movk_i32 {sMsk}, 0xfff
    s_and_b32 {sTag}, {sE}, 0x1ff
    s_lshl_b32 {sT2}, {sXcc}, 9
    s_or_b32 {sTag}, {sTag}, {sT2}
    v_mov_b32 v{vTag}, {sTag}
    """)

def role_w(g):
    o = g.o
    vLR, vCB, vTB, vXB = 1, 2, 3, 4
    lfl = o.get("late_flags", "")
    lwin = o.get("lwin")
    X, V = 112, 118
    g(f"""
    s_lshr_b32 {sT0}, s2, 5
    s_lshl_b32 {sT0}, {sT0}, 3
    s_and_b32 {sH}, s2, 7
    s_add_u32 {sH}, {sH}, {sT0}
    s_bfe_u32 {sJ}, s2, 0x20003
    s_and_b32 {sT1}, {sW}, 1
    s_lshl_b32 {sT1}, {sT1}, 3
    v_lshrrev_b32 v{T}, 4, v0
    v_lshl_add_u32 v{T+1}, v{T}, 1, {sT1}
    v_xor_b32 v{T+1}, v{T+1}, v0
    v_and_b32 v{T+1}, 15, v{T+1}
    v_lshlrev_b32 v{T+1}, 4, v{T+1}
    v_lshl_add_u32 v{T+3}, v{T}, 13, v{T+1}
    v_lshlrev_b32 v{T+4}, 2, v0
    s_lshr_b32 {sT0}, {sW}, 1
    s_lshl_b32 {sT0}, {sT0}, 2
    s_add_u32 {sT0}, {sT0}, {sT1}
    s_mul_i32 {sT1}, {sJ}, 160
    s_add_u32 {sT0}, {sT0}, {sT1}
    s_lshl_b32 {sT0}, {sT0}, 13
    s_lshl_b32 {sT2}, {sH}, 8
    s_add_u32 {sOff}, {sT0}, {sT2}
    s_lshl_b32 {sT3}, {sW}, 10
    s_add_u32 m0, {sT3}, {IMG}
    s_mul_i32 {sT0}, {sW}, 1280
    s_mov_b32 s{SRD_C+2}, {SZ['x']}
    s_mov_b32 s{SRD_C+3}, 0x20000
    s_mov_b32 s{SRD_A+2}, {SZ['wq']}
    s_mov_b32 s{SRD_A+3}, 0x20000
    s_cmp_ge_u32 {sW}, 2
    s_waitcnt lgkmcnt(0)
    s_mov_b64 s[{SRD_C}:{SRD_C+1}], s[64:65]
    s_mov_b64 s[{SRD_A}:{SRD_A+1}], s[68:69]
    s_cbranch_scc1 L_nox
    """)
    for i in range(5):
        g(f"buffer_load_dword v{X+i}, v{T+4}, {srd(SRD_C)}, {sT0} offen offset:{i*256}")
    g("L_nox:")
    dma_loop(g, 10, T+3, SRD_A, 16*8192, flags=o.get("wq_flags", ""))
    g(f"s_load_dword {sE}, s[88:89], 0")
    g.mksrd(SRD_WS, "ws", WS_USED); g.mksrd(SRD_B, "wuk")
    g(f"""
    s_lshl_b32 {sRec}, {sH}, 12
    s_add_u32 {sRec}, {sRec}, {WS['QP']}
    s_lshl_b32 {sT0}, {sJ}, 10
    s_lshl_b32 {sT1}, {sW}, 7
    s_add_u32 {sT0}, {sT0}, {sT1}
    s_add_u32 {sDone}, {sRec}, {sT0}
    v_lshlrev_b32 v{T+5}, 9, v0
    s_mov_b64 exec, 3
    buffer_load_dword v128, v{T+5}, {WSR}, {sDone} offen sc1
    s_mov_b64 exec, -1
    """)
    g.ts(1)
    Lskip = g.label("noln")
    g(f"s_cmp_ge_u32 {sW}, 2\ns_cbranch_scc1 {Lskip}")
    g("s_waitcnt vmcnt(11)")
    for i in range(5):
        g(f"v_lshlrev_b32 v{V+2*i}, 16, v{X+i}\nv_and_b32 v{V+2*i+1}, 0xffff0000, v{X+i}")
    g(f"v_pk_add_f32 {vr(T,2)}, {vr(V,2)}, {vr(V+2,2)}\nv_pk_add_f32 {vr(T+2,2)}, {vr(V+4,2)}, {vr(V+6,2)}")
    g(f"v_pk_add_f32 {vr(T,2)}, {vr(T,2)}, {vr(V+8,2)}\nv_pk_add_f32 {vr(T,2)}, {vr(T,2)}, {vr(T+2,2)}\nv_add_f32 v{T}, v{T}, v{T+1}")
    g.allred16("v_add_f32", T); g.swapred("v_add_f32", T, T+1, 16); g.swapred("v_add_f32", T, T+1, 32)
    g(f"v_mul_f32 v{T}, {-1/640!r}, v{T}")
    for i in range(5): g(f"v_pk_add_f32 {vr(V+2*i,2)}, {vr(V+2*i,2)}, {vr(T,2)} op_sel_hi:[1,0]")
    g(f"v_pk_mul_f32 {vr(T+2,2)}, {vr(V,2)}, {vr(V,2)}")
    for i in range(1, 5): g(f"v_pk_fma_f32 {vr(T+2,2)}, {vr(V+2*i,2)}, {vr(V+2*i,2)}, {vr(T+2,2)}")
    g(f"v_add_f32 v{T+2}, v{T+2}, v{T+3}")
    g.allred16("v_add_f32", T+2); g.swapred("v_add_f32", T+2, T+1, 16); g.swapred("v_add_f32", T+2, T+1, 32)
    g(f"""
    v_mul_f32 v{T+2}, {1/640!r}, v{T+2}
    v_cvt_pk_bf16_f32 v{T+1}, v{T}, v{T+2}
    v_and_b32 v{T+2}, 0xffff0000, v{T+1}
    v_lshlrev_b32 v{T+1}, 16, v{T+1}
    v_add_f32 v{T+2}, 1e-5, v{T+2}
    v_cvt_pk_bf16_f32 v{T+2}, v{T+2}, v{T+2}
    v_and_b32 v{T+2}, 0xffff0000, v{T+2}
    v_sqrt_f32 v{T+2}, v{T+2}
    v_sub_f32 v{T}, v{T+1}, v{T}
    v_cvt_pk_bf16_f32 v{T+2}, v{T+2}, v{T+2}
    v_and_b32 v{T+2}, 0xffff0000, v{T+2}
    v_rcp_f32 v{T+2}, v{T+2}
    s_mul_i32 {sT0}, {sW}, {XNP}
    v_add_u32 v{T+5}, {sT0}, v{T+4}
    v_mul_f32 v{T}, v{T}, v{T+2}
    """)
    for i in range(5): g(f"v_pk_fma_f32 {vr(V+2*i,2)}, {vr(V+2*i,2)}, {vr(T+2,2)}, {vr(T,2)} op_sel_hi:[1,0,0]")
    for i in range(5):
        g(f"v_cvt_pk_bf16_f32 v{X+i}, v{V+2*i}, v{V+2*i+1}\nds_write_b32 v{T+5}, v{X+i} offset:{XN+i*256}")
    g(f"{Lskip}:")
    U = 16
    g(f"""
    v_lshrrev_b32 v{T}, 4, v0
    v_and_b32 v{T+1}, 15, v0
    v_xor_b32 v{T+2}, v{T}, v{T+1}
    v_lshlrev_b32 v{T+2}, 4, v{T+2}
    v_lshl_add_u32 v{U}, v{T}, 13, v{T+2}
    v_xor_b32 v{U+1}, 64, v{U}
    v_xor_b32 v{U+2}, 0x80, v{U}
    v_xor_b32 v{U+3}, 0xc0, v{U}
    s_lshl_b32 {sT0}, {sJ}, 2
    s_add_u32 {sT0}, {sT0}, {sW}
    s_lshl_b32 {sT0}, {sT0}, 18
    s_lshl_b32 {sT2}, {sH}, 8
    s_add_u32 {sOff}, {sT0}, {sT2}
    s_lshl_b32 {sT0}, {sW}, 13
    s_add_u32 m0, {sT0}, {UKIMG}
    """)
    for u in range(8):
        g(f"s_add_u32 {sOff2}, {sOff}, {(8*(u&3)+4*(u>>2))*8192}")
        dma(g, U+(u & 3), SRD_B, sOff2, o.get("wuk_flags", ""))
        if u < 7: g("s_add_u32 m0, m0, 0x400")
    vUA, vQT, vQPs, vQSw, vQSr, vQOw, vQAs, vL16 = 20, 130, 136, 137, 138, 139, 140, 141
    g("s_waitcnt lgkmcnt(0)")
    epoch_regs(g)
    g(f"""
    ; v{T}=q  v{T+1}=j  v{T+2}=(q^j)*16  v{T+3}=j&1
    v_lshl_add_u32 v{vUA}, v{T+1}, 8, v{T+2}
    v_add_u32 v{vUA}, {sT0}, v{vUA}
    v_xor_b32 v{vUA+1}, 64, v{vUA}
    v_xor_b32 v{vUA+2}, 0x80, v{vUA}
    v_xor_b32 v{vUA+3}, 0xc0, v{vUA}
    v_and_b32 v{T+3}, 1, v0
    v_mul_u32_u24 v{vXB}, {XNP}, v{T+3}
    v_lshl_add_u32 v{vXB}, v{T}, 4, v{vXB}
    ; r8=(l>>2)&7 c4=l&3 row=16*(l>>5)+r8
    v_bfe_u32 v{T+4}, v0, 2, 3
    v_lshrrev_b32 v{T+5}, 5, v0
    v_lshl_add_u32 v{T+5}, v{T+5}, 4, v{T+4}
    v_and_b32 v{T+7}, 3, v0
    v_xor_b32 v{T+6}, {sW}, v{T+4}
    v_lshlrev_b32 v{T+6}, 5, v{T+6}
    v_lshl_add_u32 v{T+6}, v{T+5}, 8, v{T+6}
    v_lshl_add_u32 v{vQT}, v{T+7}, 3, v{T+6}
    v_xor_b32 v{vQT+1}, 0x80, v{vQT}
    v_lshrrev_b32 v{T+4}, 1, v{T+4}
    v_xor_b32 v{T+4}, {sW}, v{T+4}
    v_lshlrev_b32 v{T+4}, 5, v{T+4}
    v_lshl_add_u32 v{vTB}, v{T+5}, 7, v{T+4}
    v_lshl_add_u32 v{vTB}, v{T+7}, 3, v{vTB}
    v_cmp_gt_u32 {sJ2m}, 2, v{T+1}
    s_mul_i32 {sT0}, {sJ}, 320
    v_add_u32 v{T+8}, {sT0}, v{vXB}
    v_lshlrev_b32 v{T+9}, 6, v{T+3}
    v_lshl_add_u32 v{T+9}, v{T}, 4, v{T+9}
    v_bfe_u32 v{T+5}, v0, 1, 1
    v_lshl_add_u32 v{vQPs}, v{T+5}, 9, v{T+9}
    v_cmp_eq_u32 {sEx}, 1, v{T+5}
    v_lshlrev_b32 v{vL16}, 4, v0
    v_bfe_u32 v{T+5}, v0, 2, 1
    v_mul_u32_u24 v{T+5}, 320, v{T+5}
    v_lshrrev_b32 v{T+6}, 3, v0
    v_lshl_add_u32 v{T+5}, v{T+6}, 5, v{T+5}
    v_lshl_add_u32 v{T+5}, v{T+7}, 3, v{T+5}
    v_add_u32 v{vQSw}, {sT3}, v{T+5}
    v_mul_u32_u24 v{T+5}, 320, v{T+3}
    v_lshl_add_u32 v{T+5}, v{T}, 4, v{T+5}
    v_add_u32 v{vQSr}, {sT3}, v{T+5}
    v_lshlrev_b32 v{T+5}, 8, v{T+3}
    v_lshl_add_u32 v{T+5}, v{T}, 4, v{T+5}
    s_lshl_b32 {sT0}, {sW}, 6
    v_add_u32 v{vQOw}, {sT0}, v{T+5}
    v_lshlrev_b32 v{T+5}, 4, v{T+1}
    v_lshl_add_u32 v{vQAs}, v{T}, 15, v{T+5}
    s_lshl_b32 {sT0}, {sJ}, 5
    s_add_u32 {sT0}, {sT0}, {sH}
    s_lshl_b32 {sOff}, {sT0}, 8
    s_add_u32 {sOff}, {sOff}, {WS['QA']}
    s_lshl_b32 {sOff2}, {sT0}, 7
    s_add_u32 {sOff2}, {sOff2}, {WS['QC']}
    s_lshr_b32 {sT0}, {sW}, 1
    s_lshl_b32 {sT0}, {sT0}, 4
    s_and_b32 {sT1}, {sW}, 1
    s_lshl_b32 {sT1}, {sT1}, 2
    s_add_u32 {sT0}, {sT0}, {sT1}
    v_and_b32 v{T+5}, 3, v{T+6}
    v_lshrrev_b32 v{T+4}, 5, v0
    v_lshl_add_u32 v{vLR}, v{T+4}, 3, v{T+5}
    v_add_u32 v{vLR}, {sT0}, v{vLR}
    v_and_b32 v{T+6}, 6, v{T+6}
    v_xor_b32 v{T+6}, v{T+6}, v0
    v_and_b32 v{T+6}, 7, v{T+6}
    v_lshlrev_b32 v{vCB}, 4, v{T+6}
    v_mov_b32 v{T+6}, 0
    v_lshlrev_b32 v{T+4}, 2, v0
    v_and_b32 v{T+5}, 0x7c, v{T+4}
    ds_write_b32 v{T+5}, v{T+6} offset:{ZERO}
    s_mov_b32 s60, 0x000f000f
    s_mov_b32 s61, 0x000f000f
    s_mov_b32 {sA}, {128**-0.5*LOG2E!r}
    """)
    g.ts(2)
    AF, BF, D = 32, 72, 24
    g("s_waitcnt vmcnt(8) lgkmcnt(0)\ns_barrier")
    g.ts(3)
    def rd(s):
        for tl in range(2):
            for t in range(2):
                g(f"ds_read_b64_tr_b16 {vr(AF+8*s+4*tl+2*t,2)}, v{vQT+tl} offset:{IMG+s*8192+t*2048}")
        g(f"ds_read_b128 {vr(BF+4*s,4)}, v{T+8} offset:{XN+s*64}")
    for s in range(3): rd(s)
    for s in range(5):
        rem = min(4, s+2) - s
        g(f"s_waitcnt lgkmcnt({5*rem})")
        for tl in range(2):
            g(f"v_mfma_f32_16x16x32_bf16 {vr(D+4*tl,4)}, {vr(AF+8*s+4*tl,4)}, {vr(BF+4*s,4)}, {vr(D+4*tl,4) if s else 0}")
        if s+3 < 5: rd(s+3)
    QK_ = 132
    g.nop(8)
    for r in range(4): g(f"v_cndmask_b32 v{QK_+r}, v{D+r}, v{D+4+r}, {sEx}")
    g.tag(range(QK_, QK_+4))
    def qp_store(fl):
        g(f"""
        s_mov_b64 exec, s[60:61]
        buffer_store_dwordx4 {vr(QK_,4)}, v{vQPs}, {WSR}, {sDone} offen {fl}
        s_mov_b64 exec, -1
        """)
    qp_store("")
    P0, QB = 96, 80
    L = g.poll_begin("qp")
    for i in range(4):
        g(f"buffer_load_dwordx4 {vr(P0+4*i,4)}, v{vL16}, {WSR}, {sRec} offen offset:{i*1024} sc1")
    g("s_waitcnt vmcnt(4)")
    g.ts(4)
    for tl in range(2):
        for s in range(4):
            g(f"ds_read_b128 {vr(AF+16*tl+4*s,4)}, v{vUA+s} offset:{UKIMG+tl*4096}")
    S4 = 112
    g(f"""
    s_waitcnt vmcnt(2)
    v_pk_add_f32 {vr(S4,2)}, {vr(P0,2)}, {vr(P0+4,2)}
    v_pk_add_f32 {vr(S4+2,2)}, {vr(P0+2,2)}, {vr(P0+6,2)}
    s_waitcnt vmcnt(0)
    v_pk_add_f32 {vr(S4+4,2)}, {vr(P0+8,2)}, {vr(P0+12,2)}
    v_pk_add_f32 {vr(S4+6,2)}, {vr(P0+10,2)}, {vr(P0+14,2)}
    v_pk_add_f32 {vr(S4,2)}, {vr(S4,2)}, {vr(S4+4,2)}
    v_pk_add_f32 {vr(S4+2,2)}, {vr(S4+2,2)}, {vr(S4+6,2)}
    v_cvt_pk_bf16_f32 v{S4}, v{S4}, v{S4+1}
    v_cvt_pk_bf16_f32 v{S4+1}, v{S4+2}, v{S4+3}
    ds_write_b64 v{vQSw}, {vr(S4,2)} offset:{QS}
    """)
    for s in range(4): g(f"ds_read_b128 {vr(QB+4*s,4)}, v{vQSr} offset:{QS+s*64}")
    g.chk_acc(T+7, range(P0, P0+16), True); g.chk_fin(T+7, T+6)
    g.poll_end(L, lambda: qp_store("sc1"))
    g.ts(5)
    for s in range(4):
        g(f"s_waitcnt lgkmcnt({3-s})")
        for tl in range(2):
            g(f"v_mfma_f32_16x16x32_bf16 {vr(D+4*tl,4)}, {vr(AF+16*tl+4*s,4)}, {vr(QB+4*s,4)}, {vr(D+4*tl,4) if s else 0}")
    g(f"v_and_b32 v{T+7}, 0xe00, v{T+7}\nv_cmp_ne_u32 {sRem}, 0, v{T+7}")
    g.nop(5)
    for r in range(4): g(f"v_pk_mul_f32 {vr(D+2*r,2)}, {vr(D+2*r,2)}, s[90:91] op_sel_hi:[1,0]")
    for r in range(4): g(f"v_cvt_pk_bf16_f32 v{P0+r}, v{D+2*r}, v{D+2*r+1}")
    Lp = g.label("nopub")
    g(f"""
    s_mov_b64 exec, {sJ2m}
    ds_write_b128 v{vQOw}, {vr(P0,4)} offset:{QO}
    s_mov_b64 exec, -1
    s_cmp_lg_u32 {sW}, 0
    s_waitcnt lgkmcnt(0)
    s_barrier
    s_cbranch_scc1 {Lp}
    s_mov_b32 exec_hi, 0
    ds_read_b128 {vr(P0,4)}, v{vL16} offset:{QO}
    s_waitcnt lgkmcnt(0)
    buffer_store_dwordx4 {vr(P0,4)}, v{vQAs}, {WSR}, {sOff} offen sc1
    v_add3_u32 v{T+7}, v{P0}, v{P0+1}, v{P0+2}
    v_add_u32 v{T+7}, v{T+7}, v{P0+3}
    """)
    g.allred16("v_add_u32", T+7)
    g(f"""
    v_add_u32 v{T+7}, {sE}, v{T+7}
    buffer_store_dword v{T+7}, v{T+4}, {WSR}, {sOff2} offen sc1
    s_mov_b64 exec, -1
    """)
    g.ts(6)
    if o.get("ackhold", 0): g("s_waitcnt vmcnt(0)")
    Lnw = g.label("noqpwt")
    g(f"{Lp}:\ns_barrier")
    hp = o.get("hp", 1)
    if hp:
        g.mksrd(SRD_C, "ckv")
        g(f"""
        s_and_b32 {sT0}, s2, 7
        s_lshl_b32 {sT0}, {sT0}, 21
        s_lshr_b32 {sT1}, s2, 3
        s_lshl_b32 {sT1}, {sT1}, 14
        s_add_u32 {sT0}, {sT0}, {sT1}
        s_lshl_b32 {sT1}, {sW}, 19
        s_add_u32 {sT0}, {sT0}, {sT1}
        v_lshrrev_b32 v{T+5}, 5, v0
        v_bfe_u32 v{T+6}, v0, 1, 4
        v_lshlrev_b32 v{T+6}, 10, v{T+6}
        v_lshl_add_u32 v{T+5}, v{T+5}, 18, v{T+6}
        v_lshl_add_u32 v{T+5}, v{T+3}, 7, v{T+5}
        """)
        for i in range(hp):
            g(f"buffer_load_dword v{142+i}, v{T+5}, {srd(SRD_C)}, {sT0} offen offset:{CORD[4-hp+i]*256}")
    if o.get("wpo"):
        g(f"""
        s_and_b32 {sT0}, s2, 7
        s_lshl_b32 {sT0}, {sT0}, 19
        s_lshr_b32 {sT1}, s2, 3
        s_lshl_b32 {sT1}, {sT1}, 15
        s_add_u32 {sT0}, {sT0}, {sT1}
        s_lshl_b32 {sT1}, {sW}, 13
        s_add_u32 {sT0}, {sT0}, {sT1}
        s_add_u32 {sT0}, {sT0}, {WS['PO']}
        v_lshlrev_b32 v{T+5}, 7, v0
        buffer_load_dword v145, v{T+5}, {WSR}, {sT0} offen sc1
        """)
    if (hp or o.get("wpo")) and o.get("hpwait", 1): g("s_waitcnt vmcnt(0)")
    g(f"s_cmp_eq_u64 {sRem}, 0\ns_cbranch_scc1 {Lnw}")
    qp_store("sc1")
    g(f"{Lnw}:")
    g.ts(7)
    if o.get("diag"): g.finish()
    Lf, Lend, Lsp = g.label("F"), g.label("Wend"), g.label("spare")
    AM = 16
    vSP = T+9
    g(f"""
    v_mul_u32_u24 v{T+8}, 1280, v{vLR}
    v_add_u32 v{T+8}, v{T+8}, v{vCB}
    s_add_u32 m0, {sT3}, {IMG}
    v_lshrrev_b32 v{T+5}, 3, v0
    v_and_b32 v{T+6}, 7, v0
    v_lshlrev_b32 v{T+6}, 4, v{T+6}
    v_lshl_add_u32 v{vSP}, v{T+5}, 13, v{T+6}
    s_mul_i32 {sT0}, {sW}, {10*8192}
    s_and_b32 {sT1}, s2, 63
    s_lshl_b32 {sT1}, {sT1}, 7
    s_add_u32 {sC}, {sT0}, {sT1}
    s_cmp_ge_u32 s2, 64
    s_cbranch_scc1 {Lf}
    """)
    def gemm2_addrs():
        g(f"""
        v_mul_u32_u24 v{T+5}, 192, v{T+3}
        v_lshl_add_u32 v{T+5}, v{T}, 4, v{T+5}
        v_add_u32 v{T+5}, {CX}, v{T+5}
        v_mov_b32 v{T+6}, {ZERO}
        v_lshrrev_b32 v{T+7}, 1, v{T+1}
        """)
        for i in range(8):
            g(f"v_cmp_eq_u32 vcc, {i}, v{T+7}\ns_nop 1\nv_cndmask_b32 v{AM+i}, v{T+6}, v{T+5}, vcc")
    def gemm2_store():
        g.tag(range(D+4, D+8))
        g(f"""
        s_mov_b64 exec, 0xffff
        buffer_store_dwordx4 {vr(D+4,4)}, v{vSP}, {WSR}, {sD} offen sc1
        s_mov_b64 exec, -1
        s_nop 0
        """)
        g.tag(range(D, D+4))
        g(f"buffer_store_dwordx4 {vr(D,4)}, v{vSP}, {WSR}, {sC} offen sc1")
    def gemm2(wf, nk, AR):
        n = 8*nk
        for idx in range(n):
            g(f"ds_read_b128 {vr(AR+4*idx,4)}, v{AM+(idx&7)} offset:{(idx>>3)*64}")
        for idx in range(n):
            kk, i = idx >> 3, idx & 7
            g(f"s_waitcnt lgkmcnt({min(14, n-1-idx)})")
            g(f"v_mfma_f32_16x16x32_bf16 {vr(D,4)}, {vr(AR+4*idx,4)}, {vr(wf(i,kk),4)}, {vr(D,4) if idx else 0}")
            if i < 2:
                g(f"v_mfma_f32_16x16x32_bf16 {vr(D+4,4)}, {vr(AR+4*idx,4)}, {vr(wf(8+i,kk),4)}, {vr(D+4,4) if idx else 0}")
        gemm2_store()

    g(f"""
    s_and_b32 {sH}, s2, 7
    s_lshl_b32 {sH}, {sH}, 2
    s_add_u32 {sH}, {sH}, {sJ}
    s_lshr_b32 {sJ}, s2, 5
    s_lshl_b32 {sT0}, {sH}, 1
    s_add_u32 {sT0}, {sT0}, {sJ}
    s_mul_i32 {sOff}, {sT0}, {64*1280}
    s_lshl_b32 {sB}, {sT0}, 7
    s_add_u32 {sC}, {sC}, {WS['SP']}
    s_add_u32 {sD}, {sC}, {8*8192}
    """)
    g.mksrd(SRD_B, "wo"); g.mksrd(SRD_A, "wuv")
    dma_loop(g, 10, T+8, SRD_B, 128, flags=lfl, hold=o.get("lhold", 0), win=lwin)
    g(f"s_add_u32 {sOff}, {sOff}, {31*1280}")
    dma_loop(g, 10, T+8, SRD_B, 128, flags=lfl, win=lwin)
    g(f"""
    s_and_b32 {sT0}, {sW}, 1
    s_lshr_b32 {sT1}, {sW}, 1
    s_lshl_b32 {sT1}, {sT1}, 2
    s_add_u32 {sT0}, {sT0}, {sT1}
    v_lshrrev_b32 v{T+5}, 5, v0
    v_lshl_add_u32 v{T+5}, v{T+5}, 1, {sT0}
    v_bfe_u32 v{T+6}, v0, 3, 1
    v_lshl_add_u32 v{T+5}, v{T+6}, 5, v{T+5}
    v_bfe_u32 v{T+6}, v0, 4, 1
    v_lshl_add_u32 v{T+5}, v{T+6}, 4, v{T+5}
    v_lshl_add_u32 v{T+5}, v{T+5}, 13, v{vCB}
    """)
    L = g.label("uv")
    g(f"s_mov_b32 {sK}, 8\n{L}:")
    dma(g, T+5, SRD_A, sB)
    g(f"s_add_u32 {sB}, {sB}, {8*8192}\ns_add_u32 m0, m0, 0x1000\ns_sub_u32 {sK}, {sK}, 1")
    dma(g, T+5, SRD_A, sB)
    g(f"s_add_u32 {sB}, {sB}, {56*8192}\ns_add_u32 m0, m0, 0x1000")
    if lwin is not None: g(f"s_waitcnt vmcnt({lwin})")
    g(f"s_cmp_lg_u32 {sK}, 0\ns_cbranch_scc1 {L}")
    g.ts(8)
    gemm2_addrs()
    UV, WO, BR = 32, 96, 176
    vTB1, vTB2, vTB3 = 240, 241, 242
    vCLo, vCSo, vCLw, vCLr, vCXw = 243, 244, 245, 246, 247
    g(f"""
    v_add_u32 v{vTB1}, {IMG}, v{vTB}
    v_add_u32 v{vTB2}, {IMG+65536}, v{vTB}
    v_add_u32 v{vTB3}, {IMG+81920}, v{vTB}
    s_lshl_b32 {sOff}, {sH}, 12
    s_add_u32 {sOff}, {sOff}, {sT3}
    s_add_u32 {sOff}, {sOff}, {WS['CL']}
    s_lshr_b32 {sT0}, {sW}, 1
    s_and_b32 {sT1}, {sW}, 1
    v_lshlrev_b32 v{vCLo}, 4, v0
    v_mov_b32 v248, v{vTag}
    v_mov_b32 v249, v{vTag}
    v_mov_b32 v250, v{vTag}
    v_mov_b32 v251, v{vTag}
    s_mul_i32 {sT0}, {sT0}, 1088
    s_lshl_b32 {sT1}, {sT1}, 9
    s_add_u32 {sT0}, {sT0}, {sT1}
    v_lshl_add_u32 v{vCLw}, v0, 3, {sT0}
    v_mul_u32_u24 v{vCLr}, 1088, v{T+3}
    v_lshl_add_u32 v{vCLr}, v{T}, 4, v{vCLr}
    v_mul_u32_u24 v{vCXw}, 192, v{T+3}
    v_lshl_add_u32 v{vCXw}, v{T}, 3, v{vCXw}
    s_lshl_b32 {sT0}, {sW}, 5
    v_add_u32 v{vCXw}, {sT0}, v{vCXw}
    s_lshl_b32 {sB}, s2, 7
    s_add_u32 {sB}, {sB}, {WS['SH']}
    s_cmp_eq_u32 {sW}, 0
    s_cselect_b32 {sB}, {sB}, {WS_USED}
    s_waitcnt vmcnt(16)
    s_barrier
    """)
    for idx in range(20):
        for t in range(2):
            off = idx*4096 + t*1024
            g(f"ds_read_b64_tr_b16 {vr(WO+4*idx+2*t,2)}, v{vTB1 if off < 65536 else vTB2} offset:{off & 0xffff}")
    g("s_waitcnt vmcnt(0)\ns_barrier")
    g.ts(9)
    C0, S0, R0 = BR, BR+16, BR+20
    cl_load = f"buffer_load_dwordx4 {vr(C0,4)}, v{vCLo}, {WSR}, {sOff} offen sc1"
    Lin = g.label("clin")
    g(cl_load)
    for s in range(16):
        for t in range(2):
            g(f"ds_read_b64_tr_b16 {vr(UV+4*s+2*t,2)}, v{vTB3} offset:{s*4096+t*1024}")
    g(f"s_mov_b32 {sCnt}, 0\ns_branch {Lin}")
    L = g.label("cl")
    g(f"""
    {L}:
    s_cmp_ge_u32 {sCnt}, {o.get('nfallt', 64)}
    s_cselect_b32 {sT0}, {ALT}, 0
    s_xor_b32 {sOff}, {sOff}, {sT0}
    {cl_load}
    {Lin}:
    s_waitcnt vmcnt(0)
    v_cvt_pk_bf16_f32 v{R0}, v{C0}, v{C0+1}
    v_cvt_pk_bf16_f32 v{R0+1}, v{C0+2}, v{C0+3}
    ds_write_b64 v{vCLw}, {vr(R0,2)} offset:{CLB}
    """)
    g.chk_acc(T+7, range(C0, C0+4), True); g.chk_fin(T+7)
    g.poll_end(L)
    g.ts(10)
    if o.get("ts"): g(f"s_mov_b32 s{TSB+14}, {sCnt}")
    g("s_waitcnt lgkmcnt(0)\ns_barrier")
    for s in range(16): g(f"ds_read_b128 {vr(BR+4*s,4)}, v{vCLr} offset:{CLB+s*64}")
    def sp_hint():
        g(f"buffer_store_dwordx4 v[248:251], v{vSP}, {WSR}, {sB} offen sc1")
    for s in range(16):
        g(f"s_waitcnt lgkmcnt({min(14,15-s)})")
        g(f"v_mfma_f32_16x16x32_bf16 {vr(D,4)}, {vr(UV+4*s,4)}, {vr(BR+4*s,4)}, {vr(D,4) if s else 0}")
        if o.get("sph", 0) == s+1: sp_hint()
    g(f"s_mov_b64 exec, {sJ2m}")
    g.nop(7)
    g(f"""
    v_cvt_pk_bf16_f32 v{D}, v{D}, v{D+1}
    v_cvt_pk_bf16_f32 v{D+1}, v{D+2}, v{D+3}
    ds_write_b64 v{vCXw}, {vr(D,2)} offset:{CX}
    s_mov_b64 exec, -1
    s_waitcnt lgkmcnt(0)
    s_barrier
    """)
    g.ts(11)
    gemm2(lambda blk, kk: WO+4*(10*kk+blk), 2, BR)
    g.ts(12)
    Lst = g.label("ystore")
    g(f"s_branch {Lend}")

    g(f"""
    {Lf}:
    s_add_u32 {sC}, {sC}, {WS['YP']}
    s_add_u32 {sD}, {sC}, {8*8192}
    s_cmp_ge_u32 s2, 118
    s_cbranch_scc1 {Lsp}
    s_sub_u32 {sH}, s2, 64
    s_and_b32 {sJ}, {sH}, 1
    s_mul_i32 {sOff}, {sH}, {32*1280}
    """)
    g.mksrd(SRD_B, "wd")
    dma_loop(g, 10, T+8, SRD_B, 128, flags=lfl, hold=o.get("fhold", o.get("lhold", 0)), win=lwin)
    g(f"""
    s_cmp_eq_u32 {sJ}, 0
    s_cselect_b64 s[{SRD_A}:{SRD_A+1}], s[{PTR['wg']}:{PTR['wg']+1}], s[{PTR['wu']}:{PTR['wu']+1}]
    s_mov_b32 s{SRD_A+2}, {SZ['wg']}
    s_mov_b32 s{SRD_A+3}, 0x20000
    v_mul_u32_u24 v{T+5}, 3456, v{vLR}
    v_add_u32 v{T+5}, v{T+5}, v{vCB}
    s_lshr_b32 {sOff}, {sH}, 1
    s_lshl_b32 {sOff}, {sOff}, 7
    """)
    dma_loop(g, 20, T+5, SRD_A, 32*3456, flags=lfl, win=lwin)
    g.ts(8)
    gemm2_addrs()
    WD, XF, GF = 32, 72, 152
    g(f"""
    v_add_u32 v{vTB1}, {IMG}, v{vTB}
    v_add_u32 v{vTB2}, {IMG+40960}, v{vTB}
    v_add_u32 v{vTB3}, {IMG+40960+65536}, v{vTB}
    v_lshlrev_b32 v{vCLo}, 4, v{T+1}
    s_lshl_b32 {sOff}, {sH}, 9
    s_and_b32 {sT1}, {sW}, 1
    s_lshl_b32 {sT0}, {sT1}, 8
    s_add_u32 {sOff}, {sOff}, {sT0}
    s_add_u32 {sOff}, {sOff}, {WS['FX']}
    s_xor_b32 {sOff2}, {sOff}, 512
    s_lshl_b32 {sT0}, {sT1}, 5
    v_lshl_add_u32 v{vCXw}, v{T+1}, 1, {sT0}
    """)
    for s in range(20): g(f"ds_read_b128 {vr(XF+4*s,4)}, v{vXB} offset:{XN+s*64}")
    g("s_waitcnt vmcnt(20)\ns_barrier")
    for blk in range(10):
        for t in range(2):
            g(f"ds_read_b64_tr_b16 {vr(WD+4*blk+2*t,2)}, v{vTB1} offset:{blk*4096+t*1024}")
    def rdg(s):
        for t in range(2):
            off = s*4096 + t*1024
            g(f"ds_read_b64_tr_b16 {vr(GF+4*s+2*t,2)}, v{vTB2 if off < 65536 else vTB3} offset:{off & 0xffff}")
    def mm(s0, s1):
        for s in range(s0, min(s1, s0+7)): rdg(s)
        for s in range(s0, s1):
            rem = min(s1-1, s+6) - s
            g(f"s_waitcnt lgkmcnt({2*rem})")
            g(f"v_mfma_f32_16x16x32_bf16 {vr(D,4)}, {vr(XF+4*s,4)}, {vr(GF+4*s,4)}, {vr(D,4) if s else 0}")
            if s+7 < s1: rdg(s+7)
    g("s_waitcnt vmcnt(5)\ns_barrier")
    mm(0, 15)
    g("s_waitcnt vmcnt(0)\ns_barrier")
    g.ts(9)
    mm(15, 20)
    Lk, Lj = g.label("keep"), g.label("fjoin")
    g(f"""
    s_lshr_b32 {sT0}, {sW}, 1
    s_cmp_eq_u32 {sT0}, {sJ}
    s_cbranch_scc1 {Lk}
    s_nop 4
    """)
    g.tag(range(D, D+4))
    g(f"""
    s_mov_b64 exec, 0xffff
    buffer_store_dwordx4 {vr(D,4)}, v{vCLo}, {WSR}, {sOff} offen sc1
    s_mov_b64 exec, -1
    s_branch {Lj}
    {Lk}:
    """)
    L = g.poll_begin("fx")
    g(f"buffer_load_dwordx4 {vr(D+4,4)}, v{vCLo}, {WSR}, {sOff2} offen sc1\ns_waitcnt vmcnt(0)")
    g.chk_acc(T+7, range(D+4, D+8), True); g.chk_fin(T+7); g.poll_end(L)
    g.ts(10)
    c1 = -2*0.7978845608028654*LOG2E
    g(f"s_cmp_eq_u32 {sJ}, 0\ns_cselect_b64 vcc, -1, 0\ns_mov_b32 {sT0}, {c1*0.044715!r}\nv_mov_b32 v{T+5}, {c1!r}")
    for r in range(2):
        g(f"v_cndmask_b32 v{XF+r}, v{D+4+r}, v{D+r}, vcc\nv_cndmask_b32 v{XF+4+r}, v{D+r}, v{D+4+r}, vcc")
    for op in ("v_mul_f32 v{t}, v{x}, v{x}", "v_fma_f32 v{t}, v{t}, {c}, v{k}", "v_mul_f32 v{t}, v{t}, v{x}", "v_exp_f32 v{t}, v{t}",
               "v_add_f32 v{t}, 1.0, v{t}", "v_rcp_f32 v{t}, v{t}", "v_mul_f32 v{x}, v{x}, v{t}", "v_mul_f32 v{x}, v{x}, v{u}"):
        for r in range(2): g(op.format(t=XF+8+r, x=XF+r, u=XF+4+r, c=sT0, k=T+5))
        if "exp" in op or "rcp" in op: g("s_nop 0")
    g(f"""
    v_cvt_pk_bf16_f32 v{XF}, v{XF}, v{XF+1}
    ds_write_b16 v{vCXw}, v{XF} offset:{CX}
    ds_write_b16_d16_hi v{vCXw}, v{XF} offset:{CX+192}
    {Lj}:
    s_waitcnt lgkmcnt(0)
    s_barrier
    """)
    g.ts(11)
    gemm2(lambda blk, kk: WD+4*blk, 1, GF)
    g.ts(12)
    g(f"s_branch {Lend}\n{Lsp}:")
    for r in range(8): g(f"v_mov_b32 v{D+r}, 0")
    gemm2_store()
    g(f"{Lend}:")
    g.finish()

def role_a(g):
    o = g.o
    vQo, vL16, vCk = 2, 3, 4
    DO = 252
    g(f"""
    s_and_b32 {sGrp}, s2, 7
    s_bfe_u32 {sP}, s2, 0x40003
    v_lshrrev_b32 v{T}, 4, v0
    v_and_b32 v{T+1}, 15, v0
    v_lshlrev_b32 v{T+2}, 2, v{T}
    v_xor_b32 v{T+2}, v{T+2}, v{T+1}
    v_lshlrev_b32 v{T+2}, 4, v{T+2}
    v_lshl_add_u32 v{DO}, v{T}, 10, v{T+2}
    v_xor_b32 v{DO+1}, 0x1010, v{DO}
    v_xor_b32 v{DO+2}, 0x2020, v{DO}
    v_xor_b32 v{DO+3}, 0x3030, v{DO}
    s_lshl_b32 {sT0}, {sGrp}, 21
    s_lshl_b32 {sA}, {sP}, 14
    s_add_u32 {sA}, {sA}, {sT0}
    s_lshl_b32 {sT0}, {sW}, 19
    s_add_u32 {sA}, {sA}, {sT0}
    s_lshl_b32 {sT3}, {sW}, 10
    s_lshl_b32 {sD}, {sW}, 13
    s_mov_b32 m0, {sD}
    s_lshl_b32 {sRec}, {sP}, 2
    s_add_u32 {sRec}, {sRec}, {sW}
    s_waitcnt lgkmcnt(0)
    """)
    g.mksrd(SRD_A, "ckv")
    if o.get("codepf", 1):
        g(f"""
        s_getpc_b64 s[60:61]
        L_pc:
        s_sub_u32 s60, s60, L_pc-{NAME}_kernel
        s_subb_u32 s61, s61, 0
        s_mul_i32 {sT0}, {sRec}, 384
        v_lshl_add_u32 v{T+4}, v0, 7, {sT0}
        v_min_u32 v{T+4}, L_codeend-{NAME}_kernel-4, v{T+4}
        s_mov_b64 exec, 7
        global_load_dword v230, v{T+4}, s[60:61]
        s_mov_b64 exec, -1
        """)
    fl = o.get("ckv_flags", "nt")
    n1, k1, k2, qpos = o.get("n1", 3), o.get("k1", 0), o.get("k2", 7), o.get("qpos", 24)
    assert qpos >= 24
    CK = 16
    KA_, KB_, KH_, VB = 18, 26, 34, 92
    vFo, vDl, vBp, vH16, MK, vXr, vXw, vPw, vPr = 232, 233, 234, 235, 236, 240, 241, 242, 243
    vCLs, vB4, vVal, vPf, vUf = 246, 247, 248, 249, 250
    vMLw, vMLr = 42, 43
    def setup():
        g(f"s_load_dword {sE}, s[88:89], 0")
        g.mksrd(SRD_WS, "ws", WS_USED); g.mksrd(SRD_B, "wuv")
        g(f"""
        s_lshl_b32 {sT0}, {sW}, 4
        v_xor_b32 v{vQo}, {sT0}, v{T+2}
        v_lshl_add_u32 v{vQo}, v{T}, 8, v{vQo}
        v_add_u32 v{vQo}, {sT3}, v{vQo}
        v_lshrrev_b32 v{T+4}, 2, v0
        v_lshlrev_b32 v{vFo}, 9, v{T+4}
        v_lshlrev_b32 v{T+4}, 4, v{T+4}
        v_and_b32 v{T+7}, 3, v0
        v_lshl_add_u32 v{vFo}, v{T+7}, 4, v{vFo}
        s_lshl_b32 {sT0}, {sW}, 2
        v_add3_u32 v{T+4}, v{T+4}, v{T+7}, {sT0}
        v_lshlrev_b32 v{vCk}, 7, v{T+4}
        s_lshr_b32 {sT0}, {sGrp}, 2
        s_lshl_b32 {sOff2}, {sT0}, 6
        s_add_u32 {sOff2}, {sOff2}, {WS['QC']}
        s_lshl_b32 {sB}, {sT0}, 15
        s_add_u32 {sB}, {sB}, {WS['QA']}
        v_lshlrev_b32 v{vL16}, 4, v0
        v_add_u32 v{vH16}, 4096, v{vL16}
        v_add_u32 v{T+8}, {QAI}, v{vL16}
        v_add_u32 v{vVal}, {sT3}, v{T+8}
        v_mov_b32 v{CK}, 0
        v_lshlrev_b32 v{vPf}, 7, v0
        ; own outbox / flag record offsets
        s_lshl_b32 {sT0}, {sGrp}, 6
        s_add_u32 {sT0}, {sT0}, {sRec}
        s_lshl_b32 {sH}, {sT0}, 13
        s_add_u32 {sH}, {sH}, {WS['PO']}
        s_lshl_b32 {sDone}, {sT0}, 8
        s_add_u32 {sDone}, {sDone}, {WS['PC']}
        s_lshr_b32 {sJ}, {sT0}, 2
        s_lshl_b32 {sJ}, {sJ}, 9
        s_add_u32 {sJ}, {sJ}, {WS['ST']}
        s_cmp_eq_u32 {sW}, 0
        s_cselect_b32 {sJ}, {sJ}, {WS_USED}
        v_lshlrev_b32 v251, 2, v0
        v_lshlrev_b32 v229, 10, v0
        v_bfe_u32 v{T+9}, v0, 2, 2
        v_lshl_or_b32 v{KB_}, v{T+7}, 2, v{T+9}
        v_lshrrev_b32 v{T+5}, 5, v0
        v_xor_b32 v{KB_}, v{KB_}, v{T+5}
        v_lshlrev_b32 v{KB_}, 4, v{KB_}
        v_and_b32 v{T+6}, 31, v0
        v_lshl_add_u32 v{KB_}, v{T+6}, 8, v{KB_}
        v_add_u32 v{KA_}, {sD}, v{KB_}
        v_add_u32 v{KB_}, {QAI}, v{KB_}
        v_add_u32 v{KH_}, 0x10000, v{KA_}
        v_bfe_u32 v{VB}, v0, 4, 1
        v_lshrrev_b32 v{VB+1}, 1, v{T+7}
        v_lshl_or_b32 v{VB}, v{VB}, 1, v{VB+1}
        v_xor_b32 v{VB}, v{VB}, v{T+5}
        v_lshl_or_b32 v{VB}, v{T+9}, 2, v{VB}
        v_lshlrev_b32 v{VB}, 4, v{VB}
        v_and_b32 v{VB+1}, 1, v0
        v_lshl_add_u32 v{VB}, v{VB+1}, 3, v{VB}
        v_lshl_add_u32 v{vBp}, v{T+5}, 2, v{T+9}
        v_lshl_add_u32 v{VB}, v{vBp}, 8, v{VB}
        v_lshlrev_b32 v{vBp}, 2, v{vBp}
        s_mul_i32 {sT0}, {sW}, {32768+8192}
        v_add_u32 v{VB}, {sT0}, v{VB}
        v_lshlrev_b32 v{vXr}, 2, v{T+6}
        v_add_u32 v{vXr}, {XCH}, v{vXr}
        s_lshl_b32 {sT0}, {sW}, 7
        v_add_u32 v{vXw}, {sT0}, v{vXr}
        s_lshl_b32 {sT0}, {sW}, 11
        v_add_u32 v{vPw}, {sT0}, v{T+8}
        v_xor_b32 v{vPr}, 0x800, v{vPw}
        v_xor_b32 v{vPr+1}, 0x1000, v{vPw}
        v_xor_b32 v{vPr+2}, 0x1800, v{vPw}
        v_lshlrev_b32 v{vDl}, 4, v{T+6}
        v_lshl_add_u32 v{vDl}, v{T+5}, 15, v{vDl}
        v_lshlrev_b32 v{T+4}, 4, v{VB+1}
        v_mov_b32 v{T+8}, 0xffff
        v_lshlrev_b32 v{T+4}, v{T+4}, v{T+8}
        v_lshrrev_b32 v{T+6}, 3, v0
        v_xor_b32 v{T+8}, v{T+6}, v0
        v_and_b32 v{T+8}, 2, v{T+8}
        v_cmp_eq_u32 vcc, 0, v{T+8}
        v_lshlrev_b32 v{vB4}, 2, v{T}
        s_lshl_b32 {sT0}, {sW}, 8
        v_cndmask_b32 v{T+4}, 0, v{T+4}, vcc
        s_add_u32 {sT0}, {sT0}, {QAI}
        v_add_u32 v{vCLs}, {sT0}, v251
        s_lshl_b32 {sT0}, {sW}, 5
        s_add_u32 {sT0}, {sT0}, {QAI+4096}
        v_lshl_add_u32 v{vMLw}, v{T+7}, 3, {sT0}
        v_lshlrev_b32 v{vMLr}, 3, v{T}
        v_add_u32 v{vMLr}, {QAI+4096}, v{vMLr}
        v_and_b32 v{T+8}, 7, v0
        v_lshlrev_b32 v{T+8}, 7, v{T+8}
        v_lshl_add_u32 v{vUf}, v{T+6}, 13, v{T+8}
        """)
        for d in range(4):
            g(f"v_cmp_eq_u32 vcc, {d}, v{T+9}\ns_nop 1\nv_cndmask_b32 v{MK+d}, 0, v{T+4}, vcc")
        g("s_waitcnt lgkmcnt(0)")
        epoch_regs(g)
    def setup2():
        for s in range(1, 8):
            g(f"v_xor_b32 v{KA_+s}, {s<<5}, v{KA_}\nv_xor_b32 v{KB_+s}, {s<<5}, v{KB_}\nv_xor_b32 v{KH_+s}, {s<<5}, v{KH_}")
        for n in range(1, 32):
            g(f"v_xor_b32 v{VB+n}, {((n>>3)<<13) | ((n&7)<<5)}, v{VB}")
    def qa_loads():
        g(f"s_mov_b32 {sOff}, {sB}\ns_add_u32 m0, {sT3}, {QAI}")
        dma_loop(g, 8, vQo, SRD_WS, 4096, flags="sc1")
        g(f"s_mov_b32 exec_hi, 0\nbuffer_load_dword v{CK}, v{vCk}, {WSR}, {sOff2} offen sc1\ns_mov_b64 exec, -1")
    lq = LQ(g)
    def rdA(s):
        ch = CORD[s >> 3]
        g(f"ds_read_b128 {ar(4*s,4)}, v{(KA_ if ch < 2 else KH_)+(s&7)} offset:{(ch&1)*32768}"); lq.add(f"A{s}")
    nA = 0
    for i in range(32):
        ch, u = CORD[i >> 3], i & 7
        if i == qpos: qa_loads()
        if i:
            g(f"s_add_u32 m0, {sD}, {ch*32768+u*1024}")
            if (u & 3) == 0 or i == qpos: g(f"s_add_u32 {sOff}, {sA}, {(u>>2)*262144+ch*256}")
            else: g("s_nop 0")
        else:
            g(f"s_mov_b32 {sOff}, {sA}")
        dma(g, DO+(u & 3), SRD_A, sOff, fl)
        if i == k1: setup()
        if i == k1+1: setup2()
        k = k1 if i < n1 else k2
        if i < qpos or (i < 31 and o.get("k3") is not None):
            if i >= qpos: k = o["k3"]
            g(f"s_waitcnt vmcnt({k})")
            if nA < 16 and (i - k) >= 8*(nA >> 3) + 7 and i > k1+1: rdA(nA); nA += 1
    g.ts(1)
    Lv = g.label("val")
    if qpos < 32:
        g(f"s_mov_b32 {sCnt}, 0\ns_waitcnt vmcnt({32-qpos})\ns_branch {Lv}")
        Lq = g.label("qa"); g(f"{Lq}:")
    else:
        Lq = g.poll_begin("qa")
    qa_loads()
    g(f"s_waitcnt vmcnt(0)\n{Lv}:")
    g.ts(12)
    FB = 44
    for i in range(8): g(f"ds_read_b128 {vr(FB+4*i,4)}, v{vVal} offset:{i*4096}")
    g(f"v_sub_u32 v{T+4}, 0, v{CK}\ns_lshl_b32 {sT0}, {sE}, 5")
    for i in range(8):
        g(f"s_waitcnt lgkmcnt({7-i})")
        g(f"v_add3_u32 v{T+4}, v{T+4}, v{FB+4*i}, v{FB+4*i+1}\nv_add3_u32 v{T+4}, v{T+4}, v{FB+4*i+2}, v{FB+4*i+3}")
    lq.clear()
    g.allred16("v_add_u32", T+4); g.swapred("v_add_u32", T+4, T+7, 16); g.swapred("v_add_u32", T+4, T+7, 32)
    g(f"v_add_u32 v{T+4}, {sT0}, v{T+4}\nv_cmp_ne_u32 vcc, 0, v{T+4}")
    g.poll_end(Lq)
    g.ts(2)
    if o.get("ts"): g(f"s_mov_b32 s{TSB+13}, {sCnt}")
    g("s_barrier")
    g.ts(3)
    S = 76
    NB = 8
    def breg(s): return FB + 4*(s % NB) if s < 24 else 132 + 4*(s-24)
    def rdB(s):
        g(f"ds_read_b128 {vr(breg(s),4)}, v{KB_+(s&7)} offset:{CORD[s>>3]*8192}"); lq.add(f"B{s}")
    sched = [(0, s, tt) for s in range(2) for tt in range(4)]
    sched += [(tp, s, tt) for tp in (1, 2, 3) for s in range(2) for tt in (0, 1)]
    sched += [(tp, s, tt) for tp in (1, 2, 3) for s in range(2) for tt in (2, 3)]
    nV = [0]
    def rdV(cnt=1):
        for _ in range(cnt):
            n = nV[0]
            if n >= 32: return
            tp, s, tt = sched[n]
            for t in range(2):
                g(f"ds_read_b64_tr_b16 {ar(128+4*n+2*t,2)}, v{VB+8*tp+2*tt+t} offset:{s*4096+t*2048}")
            lq.add(f"V{n}", 2); nV[0] += 1
    nB = 0
    while nB < 5: rdB(nB); nB += 1
    for s in range(32):
        if s == 1 and o.get("uvpf", 1):
            g(f"""
            s_lshl_b32 {sT0}, {sRec}, 16
            s_lshl_b32 {sT1}, {sGrp}, 10
            s_add_u32 {sT0}, {sT0}, {sT1}
            buffer_load_dword v231, v{vUf}, {srd(SRD_B)}, {sT0} offen
            """)
        if s == 24:
            g(f"s_waitcnt vmcnt({1 if o.get('uvpf', 1) else 0})")
            while nA < 28: rdA(nA); nA += 1
            g("s_barrier")
            g.ts(11);
            if o.get("ts") == 1: lq.clear()
        if s < 24:
            if nB < 32: rdB(nB); nB += 1
            if nA < 24: rdA(nA); nA += 1
            elif nB < 32 and nB >= 24: rdB(nB); nB += 1
        else:
            if nA < 32: rdA(nA); nA += 1; rdV(1)
            else: rdV(2)
        lq.wait(f"A{s}", f"B{s}")
        g(f"v_mfma_f32_32x32x16_bf16 {vr(S,16)}, {ar(4*s,4)}, {vr(breg(s),4)}, {vr(S,16) if s else 0}")
    assert nB == 32 and nA == 32
    rdV(2)
    g(f"""
    s_lshr_b32 {sK}, {sP}, 3
    s_lshl_b32 {sK}, {sK}, 2
    s_add_u32 {sK}, {sK}, {sW}
    s_and_b32 {sT2}, {sP}, 7
    s_lshl_b32 {sOff}, {sK}, 13
    s_lshl_b32 {sT0}, {sGrp}, 6
    s_add_u32 {sOff}, {sOff}, {sT0}
    s_add_u32 {sOff}, {sOff}, {WS['ST']}
    """)
    g.ts(4)
    vM, vLs = T+4, T+6
    g(f"v_max3_f32 v{vM}, v{S}, v{S+1}, v{S+2}\nv_max3_f32 v{vM+1}, v{S+3}, v{S+4}, v{S+5}")
    for r in range(6, 14, 4): g(f"v_max3_f32 v{vM}, v{vM}, v{S+r}, v{S+r+1}\nv_max3_f32 v{vM+1}, v{vM+1}, v{S+r+2}, v{S+r+3}")
    g(f"v_max3_f32 v{vM}, v{vM}, v{S+14}, v{S+15}\nv_max_f32 v{vM}, v{vM}, v{vM+1}")
    g.swapred("v_max_f32", vM, vM+1, 32)
    g(f"ds_write_b32 v{vXw}, v{vM}"); lq.add("MW")
    rdV(3)
    lq.wait("MW")
    g(f"""
    s_barrier
    ds_read2_b32 {vr(KB_,2)}, v{vXr} offset0:0 offset1:32
    ds_read2_b32 {vr(KB_+2,2)}, v{vXr} offset0:64 offset1:96
    """); lq.add("MR", 2)
    rdV(3)
    lq.wait("MR")
    g(f"v_max3_f32 v{vM}, v{KB_}, v{KB_+1}, v{KB_+2}\nv_max_f32 v{vM}, v{vM}, v{KB_+3}")
    PF = 44
    O = 132; PK = 196
    PXo = XCH - QAI + 1024
    def mf(n):
        tp, s, tt = sched[n]
        acc = vr(O+16*tt, 16)
        lq.wait(f"V{n}", f"P{tp}{s}")
        g(f"v_mfma_f32_32x32x16_bf16 {acc}, {vr(PF+8*tp+4*s,4)}, {ar(128+4*n,4)}, {acc if n >= 4 else 0}")
    for r in range(8): g(f"v_pk_add_f32 {vr(S+2*r,2)}, {vr(S+2*r,2)}, {vr(vM,2)} op_sel_hi:[1,0] neg_lo:[0,1] neg_hi:[0,1]")
    for hf in range(2):
        for r in range(8):
            g(f"v_exp_f32 v{S+8*hf+r}, v{S+8*hf+r}")
            if hf and r in (0, 3, 6): mf(r//3)
        for r in range(4): g(f"v_cvt_pk_bf16_f32 v{PF+4*hf+r}, v{S+8*hf+2*r}, v{S+8*hf+2*r+1}")
        g(f"ds_write_b128 v{vPw}, {vr(PF+4*hf,4)} offset:{PXo+1024*hf}"); lq.add("PW")
    mf(3)
    lq.wait("PW")
    g("s_barrier")
    g.ts(5)
    if o.get("ts") == 1: lq.clear()
    def rdP(tp):
        for s in range(2):
            g(f"ds_read_b128 {vr(PF+8*tp+4*s,4)}, v{vPr+tp-1} offset:{PXo+1024*s}"); lq.add(f"P{tp}{s}")
    CS_ = 18
    def pack_store(e2, gq, ck=True):
        b = PK + 16*e2 + 4*gq
        for d in range(4):
            g(f"v_cvt_pk_bf16_f32 v{b+d}, v{O+32*e2+4*gq+d}, v{O+32*e2+16+4*gq+d}")
        g(f"buffer_store_dwordx4 {vr(b,4)}, v{vH16 if e2 else vL16}, {WSR}, {sH} offen offset:{gq*1024} sc1")
    def csum(e2, gq):
        b = PK + 16*e2 + 4*gq
        g(f"v_add3_u32 v{CS_+gq}, v{b}, v{b+1}, v{b+2}\nv_add_u32 v{CS_+gq}, v{CS_+gq}, v{b+3}")
    def cfold(e2):
        g(f"""
        v_permlane16_swap_b32 v{CS_}, v{CS_+1}
        v_permlane16_swap_b32 v{CS_+2}, v{CS_+3}
        v_add_u32 v{CS_}, v{CS_}, v{CS_+1}
        v_add_u32 v{CS_+2}, v{CS_+2}, v{CS_+3}
        s_nop 0
        v_add_u32_dpp v{CS_+4}, v{CS_}, v{CS_} row_ror:8 row_mask:0xf bank_mask:0x3
        v_add_u32_dpp v{CS_+4}, v{CS_+2}, v{CS_+2} row_ror:8 row_mask:0xf bank_mask:0xc
        s_nop 1
        v_add_u32_dpp v{CS_+5}, v{CS_+4}, v{CS_+4} row_half_mirror row_mask:0xf bank_mask:{0xa if e2 else 0x5:#x}
        """)
    fill = [f"v_add_f32 v{S+r}, v{S+r}, v{S+8+r}" for r in range(8)] + [f"v_add_f32 v{S+r}, v{S+r}, v{S+4+r}" for r in range(4)]
    fill += [f"v_add_f32 v{S}, v{S}, v{S+2}", f"v_add_f32 v{S+1}, v{S+1}, v{S+3}", f"v_add_f32 v{vLs}, v{S}, v{S+1}", f"v_mov_b32 v{vLs+1}, v{vLs}"]
    salu = f"""s_lshl_b32 {sB}, {sK}, 19
    s_lshl_b32 {sT0}, {sT2}, 12
    s_add_u32 {sB}, {sB}, {sT0}
    s_lshl_b32 {sT0}, {sGrp}, 9
    s_add_u32 {sB}, {sB}, {sT0}
    s_add_u32 {sB}, {sB}, {WS['PO']}
    s_lshl_b32 {sC}, {sGrp}, 2
    s_add_u32 {sC}, {sC}, {sW}
    s_lshl_b32 {sC}, {sC}, 12
    s_lshl_b32 {sT1}, {sP}, 8
    s_add_u32 {sC}, {sC}, {sT1}
    s_add_u32 {sC}, {sC}, {WS['CL']}
    s_lshl_b32 {sA}, {sK}, 14
    s_lshr_b32 {sT0}, {sT2}, 1
    s_lshl_b32 {sT0}, {sT0}, 8
    s_add_u32 {sA}, {sA}, {sT0}
    s_and_b32 {sT0}, {sT2}, 1
    s_lshl_b32 {sT0}, {sT0}, 4
    s_add_u32 {sA}, {sA}, {sT0}
    s_brev_b32 {sT0}, {sGrp}
    s_lshr_b32 {sT0}, {sT0}, 24
    s_add_u32 {sA}, {sA}, {sT0}
    s_add_u32 {sA}, {sA}, {WS['PC']}""".split("\n")
    FG = 76
    FR = 88
    st_load = f"buffer_load_dwordx4 {vr(FR,4)}, v{vFo}, {WSR}, {sOff} offen sc1"
    lb = o.get("lb", 13)
    for n in range(4, 32):
        if n in (4, 5, 6): rdP(n-3)
        else: rdV(1)
        mf(n)
        if 4 <= n <= 7:
            for x in fill[4*(n-4):4*(n-4)+4]: g(x)
        if n == 8: g(f"v_permlane32_swap_b32 v{vLs}, v{vLs+1}\nv_mov_b32 v{FG}, v{vM}\nv_add_f32 v{vLs}, v{vLs}, v{vLs+1}\nds_write_b32 v{vXw}, v{vLs} offset:512"); lq.add("L")
        if n == 11:
            lq.wait("L")
            g(f"s_barrier\nds_read2_b32 {vr(KB_,2)}, v{vXr} offset0:128 offset1:160\nds_read2_b32 {vr(KB_+2,2)}, v{vXr} offset0:192 offset1:224")
            lq.add("LR", 2)
        if n == lb:
            lq.wait("LR")
            g(f"v_add_f32 v{FG+1}, v{KB_}, v{KB_+1}\nv_add_f32 v{FG+3}, v{KB_+2}, v{KB_+3}\nv_mov_b32 v{FG+2}, {sE}\nv_add_f32 v{FG+1}, v{FG+1}, v{FG+3}")
        if n == lb+1:
            g(f"s_mov_b32 exec_hi, 0\nbuffer_store_dwordx4 {vr(FG,4)}, v{vL16}, {WSR}, {sJ} offen sc1\ns_mov_b64 exec, -1")
        if 15 <= n <= 22:
            for x in salu[4*(n-15):4*(n-15)+4]: g(x)
        if n == 22 and o.get("est", 1): g(st_load)
        if n in (23, 25, 27, 29): pack_store(0, (n-23)//2)
        if n in (24, 26, 28, 30): csum(0, (n-24)//2)
    assert nV[0] == 32
    g("s_nop 0")
    cfold(0)
    g("s_nop 0")
    for gq in range(4): pack_store(1, gq)
    FR = 88
    st_load = f"buffer_load_dwordx4 {vr(FR,4)}, v{vFo}, {WSR}, {sOff} offen sc1"
    g.ts(6)
    for gq in range(4): csum(1, gq)
    g("s_nop 1")
    cfold(1)
    g(f"""
    s_nop 1
    v_add_u32_dpp v{CS_+5}, v{CS_+5}, v{CS_+5} quad_perm:[2,3,0,1] {DPP}
    s_nop 1
    v_add_u32_dpp v{CS_+5}, v{CS_+5}, v{CS_+5} quad_perm:[1,0,3,2] {DPP}
    v_add_u32 v{CS_+5}, {sE}, v{CS_+5}
    buffer_store_dword v{CS_+5}, v251, {WSR}, {sDone} offen sc1
    """)
    g.ts(7)
    if o.get("est", 1):
        Li = g.label("stin")
        g(f"s_mov_b32 {sCnt}, 0\ns_waitcnt vmcnt({o.get('ackw', 1)})\ns_branch {Li}")
        L = g.label("st")
        g(f"{L}:\n{st_load}\ns_waitcnt vmcnt(0)\n{Li}:")
    else:
        L = g.poll_begin("st")
        g(f"{st_load}\ns_waitcnt vmcnt(0)")
    g(f"v_cmp_ne_u32 vcc, {sE}, v{FR+2}")
    g.poll_end(L)
    if o.get("ts"): g(f"s_mov_b32 s{TSB+14}, {sCnt}")
    DT = 92
    def dloads():
        g(f"s_mov_b32 {sOff2}, {sB}\ns_mov_b64 exec, 0xffff\nbuffer_load_dword v{CK}, v229, {WSR}, {sA} offen sc1\ns_mov_b64 exec, -1")
        for u in range(8):
            g(f"buffer_load_dwordx4 {vr(DT+4*u,4)}, v{vDl}, {WSR}, {sOff2} offen sc1")
            if u < 7: g(f"s_add_u32 {sOff2}, {sOff2}, 0x10000")
    g(f"v_mov_b32 v{CK}, 0")
    dloads()
    g.ts(8)
    vW = T+8
    g(f"v_max_f32_dpp v{vM}, v{FR}, v{FR} row_ror:4 {DPP}")
    g.allred16("v_max_f32", vM, (8,)); g.swapred("v_max_f32", vM, vM+1, 16); g.swapred("v_max_f32", vM, vM+1, 32)
    g(f"""
    v_sub_f32 v{vW}, v{FR}, v{vM}
    v_exp_f32 v{vW}, v{vW}
    s_nop 0
    v_cvt_pk_bf16_f32 v{vW}, v{vW}, v{vW}
    v_and_b32 v{vLs}, 0xffff0000, v{vW}
    v_mul_f32 v{vLs}, v{vLs}, v{FR+1}
    """)
    WV = 124
    for u in range(8): g(f"ds_bpermute_b32 v{WV+u}, v{vBp}, v{vW} offset:{32*u}")
    g.allred16("v_add_f32", vLs, (4, 8)); g.swapred("v_add_f32", vLs, vLs+1, 16); g.swapred("v_add_f32", vLs, vLs+1, 32)
    AFr = 132
    Lmm = g.label("mm")
    ML = 80
    g(f"""
    v_mov_b32 v{vM+1}, v{vLs}
    s_lshl_b32 {sT1}, {sE}, 4
    ds_write_b64 v{vMLw}, {vr(vM,2)}
    ds_bpermute_b32 v{T+2}, v{vB4}, v{vM}
    s_waitcnt lgkmcnt(2)
    """)
    for u in range(4):
        for d in range(4): g(f"v_and_b32 v{AFr+4*u+d}, v{MK+d}, v{WV+u}")
    g(f"""
    s_waitcnt lgkmcnt(0)
    s_barrier
    ds_read2_b64 {vr(ML,4)}, v{vMLr} offset0:0 offset1:4
    ds_read2_b64 {vr(ML+4,4)}, v{vMLr} offset0:8 offset1:12
    """)
    for u in range(4, 8):
        for d in range(4): g(f"v_and_b32 v{AFr+4*u+d}, v{MK+d}, v{WV+u}")
    g(f"""
    s_waitcnt lgkmcnt(0)
    v_max3_f32 v{T+3}, v{ML}, v{ML+2}, v{ML+4}
    v_max_f32 v{T+3}, v{T+3}, v{ML+6}
    v_sub_f32 v{ML}, v{ML}, v{T+3}
    v_sub_f32 v{ML+2}, v{ML+2}, v{T+3}
    v_sub_f32 v{ML+4}, v{ML+4}, v{T+3}
    v_sub_f32 v{ML+6}, v{ML+6}, v{T+3}
    v_sub_f32 v{T+2}, v{T+2}, v{T+3}
    v_exp_f32 v{ML}, v{ML}
    v_exp_f32 v{ML+2}, v{ML+2}
    v_exp_f32 v{ML+4}, v{ML+4}
    v_exp_f32 v{ML+6}, v{ML+6}
    v_exp_f32 v{T+2}, v{T+2}
    v_mul_f32 v{T+3}, v{ML}, v{ML+1}
    v_fmac_f32 v{T+3}, v{ML+2}, v{ML+3}
    v_fmac_f32 v{T+3}, v{ML+4}, v{ML+5}
    v_fmac_f32 v{T+3}, v{ML+6}, v{ML+7}
    v_rcp_f32 v{T+3}, v{T+3}
    s_nop 0
    v_mul_f32 v{T+2}, v{T+2}, v{T+3}
    """)
    g(f"s_mov_b32 {sCnt}, 0\ns_branch {Lmm}")
    L = g.label("dat"); g(f"{L}:")
    dloads()
    D = 164
    g(f"{Lmm}:\ns_waitcnt vmcnt(8) lgkmcnt(0)\nv_sub_u32 v{vM}, 0, v{CK}")
    for u in range(8):
        g(f"s_waitcnt vmcnt({7-u})")
        g(f"v_mfma_f32_16x16x32_bf16 {vr(D,4)}, {vr(AFr+4*u,4)}, {vr(DT+4*u,4)}, {vr(D,4) if u else 0}")
        g(f"v_add3_u32 v{vM}, v{vM}, v{DT+4*u}, v{DT+4*u+1}\nv_add3_u32 v{vM}, v{vM}, v{DT+4*u+2}, v{DT+4*u+3}")
    g.allred16("v_add_u32", vM, (8, 4))
    g(f"v_pk_mul_f32 {vr(D,2)}, {vr(D,2)}, {vr(T+2,2)} op_sel_hi:[1,0]\nv_pk_mul_f32 {vr(D+2,2)}, {vr(D+2,2)}, {vr(T+2,2)} op_sel_hi:[1,0]")
    g(f"""
    v_add_u32_dpp v{vM}, v{vM}, v{vM} row_ror:2 {DPP}
    ds_write_b128 v{vVal}, {vr(D,4)}
    s_nop 0
    v_add_u32_dpp v{vM}, v{vM}, v{vM} row_ror:1 {DPP}
    """)
    g.swapred("v_add_u32", vM, vM+1, 16); g.swapred("v_add_u32", vM, vM+1, 32)
    g(f"v_add_u32 v{vM}, {sT1}, v{vM}\nv_cmp_ne_u32 vcc, 0, v{vM}")
    g.poll_end(L)
    g(f"""
    s_waitcnt lgkmcnt(0)
    s_barrier
    ds_read2st64_b32 {vr(D,2)}, v{vCLs} offset0:0 offset1:4
    ds_read2st64_b32 {vr(D+2,2)}, v{vCLs} offset0:8 offset1:12
    s_xor_b32 {sD}, {sC}, {ALT}
    s_waitcnt lgkmcnt(0)
    v_pk_add_f32 {vr(D,2)}, {vr(D,2)}, {vr(D+2,2)}
    v_add_f32 v{D}, v{D}, v{D+1}
    """)
    g.tag((D,))
    g(f"""
    buffer_store_dword v{D}, v251, {WSR}, {sC} offen
    buffer_store_dword v{D}, v251, {WSR}, {sD} offen sc1
    """)
    g.ts(9)
    if o.get("ts"): g(f"s_lshl_b32 {sCnt}, {sCnt}, 8\ns_add_u32 s{TSB+13}, s{TSB+13}, {sCnt}")
    Lend = g.label("Aend")
    g(f"""
    s_sub_u32 {sH}, s2, 128
    s_cmp_ge_u32 {sH}, 40
    s_cbranch_scc1 {Lend}
    s_lshr_b32 {sT0}, {sH}, 1
    s_mul_i32 {sT1}, {sT0}, 52
    s_lshr_b32 {sT1}, {sT1}, 8
    s_mul_i32 {sT2}, {sT1}, 5
    s_sub_u32 {sT0}, {sT0}, {sT2}
    s_lshl_b32 {sT0}, {sT0}, 8
    s_lshl_b32 {sT1}, {sT1}, 5
    s_add_u32 {sT0}, {sT0}, {sT1}
    s_and_b32 {sT1}, {sH}, 1
    s_lshl_b32 {sT1}, {sT1}, 4
    s_add_u32 {sT0}, {sT0}, {sT1}
    v_lshrrev_b32 v{T}, 5, v0
    v_lshlrev_b32 v{T}, 7, v{T}
    v_bfe_u32 v{T+1}, v0, 4, 1
    v_mul_u32_u24 v{T+1}, 1280, v{T+1}
    v_and_b32 v{T+2}, 7, v0
    v_lshlrev_b32 v{T+2}, 1, v{T+2}
    v_add3_u32 v{T}, v{T}, v{T+1}, v{T+2}
    v_add_u32 v{T}, {sT0}, v{T}
    s_lshl_b32 {sT0}, {sH}, 13
    s_lshl_b32 {sT1}, {sW}, 11
    s_add_u32 {sT0}, {sT0}, {sT1}
    s_add_u32 {sOff}, {sT0}, {WS['YP']}
    s_add_u32 {sOff2}, {sT0}, {WS['SP']}
    v_lshlrev_b32 v{T+4}, 2, v0
    s_lshl_b32 {sT1}, {sW}, 8
    v_add_u32 v{T+5}, {sT1}, v{T+4}
    """)
    g.mksrd(SRD_B, "x"); g.mksrd(SRD_C, "out")
    g(f"buffer_load_ushort v{T+1}, v{T}, {srd(SRD_B)}, 0 offen")
    Z = 92
    def zgather(name, soff, ldsoff, tsi):
        L = g.poll_begin(name)
        g(f"""
        buffer_load_dwordx4 {vr(Z,4)}, v{vL16}, {WSR}, {soff} offen sc1
        buffer_load_dwordx4 {vr(Z+4,4)}, v{vL16}, {WSR}, {soff} offen offset:1024 sc1
        s_waitcnt vmcnt(1)
        """)
        g.chk_acc(T+7, range(Z, Z+4), True)
        g("s_waitcnt vmcnt(0)")
        g(f"v_pk_add_f32 {vr(Z,2)}, {vr(Z,2)}, {vr(Z+4,2)}\nv_pk_add_f32 {vr(Z+2,2)}, {vr(Z+2,2)}, {vr(Z+6,2)}")
        g.chk_acc(T+7, range(Z+4, Z+8), False); g.chk_fin(T+7)
        g.poll_end(L)
        g.ts(tsi)
        g(f"""
        v_permlane32_swap_b32 v{Z}, v{Z+2}
        v_permlane32_swap_b32 v{Z+1}, v{Z+3}
        s_nop 0
        v_pk_add_f32 {vr(Z,2)}, {vr(Z,2)}, {vr(Z+2,2)}
        s_nop 1
        v_permlane16_swap_b32 v{Z}, v{Z+1}
        s_nop 0
        v_add_f32 v{Z}, v{Z}, v{Z+1}
        s_nop 1
        v_add_f32_dpp v{Z}, v{Z}, v{Z} row_ror:8 {DPP}
        ds_write_b32 v{T+5}, v{Z} offset:{ldsoff}
        s_waitcnt lgkmcnt(0)
        s_barrier
        ds_read2st64_b32 {vr(Z,2)}, v{T+4} offset0:{ldsoff//256} offset1:{ldsoff//256+1}
        ds_read2st64_b32 {vr(Z+2,2)}, v{T+4} offset0:{ldsoff//256+2} offset1:{ldsoff//256+3}
        s_waitcnt lgkmcnt(0)
        v_pk_add_f32 {vr(Z,2)}, {vr(Z,2)}, {vr(Z+2,2)}
        """)
    zgather("yp", sOff, 0, 12)
    g(f"""
    v_add_f32 v{T+2}, v{Z}, v{Z+1}
    v_mul_f32 v{T+3}, {-LOG2E!r}, v{T+2}
    v_exp_f32 v{T+3}, v{T+3}
    v_lshlrev_b32 v{T+1}, 16, v{T+1}
    v_add_f32 v{T+3}, 1.0, v{T+3}
    v_rcp_f32 v{T+3}, v{T+3}
    s_mov_b32 s60, 0x00ff00ff
    s_mov_b32 s61, 0x00ff00ff
    v_mul_f32 v{T+2}, v{T+2}, v{T+3}
    """)
    if o.get("sph", 0):
        g(f"s_lshl_b32 {sT0}, {sW}, 11\ns_lshl_b32 {sT1}, {sGrp}, 13\ns_add_u32 {sT0}, {sT0}, {sT1}\ns_add_u32 {sT0}, {sT0}, {WS['SH']}\ns_mov_b64 exec, 0xffff")
        L = g.poll_begin("sh")
        g(f"buffer_load_dword v{T+8}, v{vPf}, {WSR}, {sT0} offen sc1\ns_waitcnt vmcnt(0)")
        g.chk_acc(T+7, [T+8], True); g.chk_fin(T+7); g.poll_end(L)
        g("s_mov_b64 exec, -1")
        g.ts(1)
    zgather("sp", sOff2, 1024, 10)
    g(f"""
    s_cmp_lg_u32 {sW}, 0
    s_cbranch_scc1 L_zother
    v_add_f32 v{T+3}, v{Z}, v{Z+1}
    v_fmac_f32 v{T+1}, v{T+2}, v{T+3}
    v_cvt_pk_bf16_f32 v{T+1}, v{T+1}, v{T+1}
    s_mov_b64 exec, s[60:61]
    buffer_store_short v{T+1}, v{T}, {srd(SRD_C)}, 0 offen {o.get('out_flags','')}
    s_branch {Lend}
    L_zother:
    s_add_u32 {sH}, {sH}, {sW}
    s_cmp_lg_u32 {sH}, 1
    s_cbranch_scc1 {Lend}
    s_mov_b32 exec_hi, 0
    v_mov_b32 v{T+2}, {sE}
    buffer_store_dword v{T+2}, v{T+4}, {WSR}, 0 offen sc1
    {Lend}:
    """)
    g.finish()

def build(opt):
    g = G(opt)
    if opt.get("ts"):
        g.ts(0)
        for i in range(1, 16): g(f"s_mov_b32 s{TSB+i}, 0")
    g(f"""
    s_cmp_ge_u32 s2, 256
    s_cbranch_scc1 L_exit
    s_load_dwordx16 s[64:79], s[0:1], 0
    s_load_dwordx8 s[80:87], s[0:1], 64
    s_load_dwordx2 s[88:89], s[0:1], 96
    v_readfirstlane_b32 {sW}, v0
    v_and_b32 v0, 63, v0
    s_nop 2
    s_lshr_b32 {sW}, {sW}, 6
    s_cmp_ge_u32 s2, 128
    s_cbranch_scc1 L_roleA
    """)
    role_w(g)
    g("L_exit:\ns_endpgm")
    g(".p2align 6\nL_roleA:")
    role_a(g)
    g("L_codeend:")
    K = NAME + "_kernel"
    s = header(["; @launch grid=(256,1,1) block=(256,1,1) lds=163840"])
    s += kernel_text(K, g.text())
    s += '.section .rodata,"a"\n' + descriptor(K, vgpr=512, sgpr=96, accum=256)
    return s

if __name__ == "__main__":
    opt = {}
    out = sys.argv[1]
    for kv in sys.argv[2:]:
        k, v = kv.split("=")
        opt[k] = int(v) if v.lstrip("-").isdigit() else v
    open(out, "w").write(build(opt))
```

```python
import sys, math
from common import *

WS = dict(E=0, QA=0x20000, QC=0x30000, GO=0x34000, FX=0x38000, ST=0x40000, PC=0x60000, CL=0x80000, CS=0x100000,
          SH=0x100000, SP=0x110000, YP=0x160000, TS=0x1C0000, QP=0x1D0000, PO=0x200000)
WS_USED = 0xA00000
ALT = 0x800000
XN, XNP = 0, 1344
QS, QO, CLB, CX, ZERO, IMG = 3072, 7168, 3072, 7680, 8064, 8192
UKIMG = IMG + 40960
QAI = 131072
XCH = QAI + 16384
CORD = (0, 2, 3, 1)
MAXPOLL = 1 << 15
LOG2E = 1.4426950408889634
DPP = "row_mask:0xf bank_mask:0xf"

sW = "s3"
SRD_WS, SRD_A, SRD_B, SRD_C = 4, 8, 12, 16
sE, sTag, sMsk, sCnt, sT0, sT1, sT2, sT3 = "s20", "s21", "s22", "s23", "s24", "s25", "s26", "s27"
sH, sJ, sOff, sK, sDone, sXcc, sGrp, sP = "s28", "s29", "s30", "s31", "s32", "s33", "s34", "s35"
sEx = "s[36:37]"
sRec = "s38"; sOff2 = "s39"
TSB = 40
sTm = "s[56:57]"
sJ2m = "s[58:59]"
sRem = "s[62:63]"
sA, sB, sC, sD = "s90", "s91", "s92", "s93"
PTR = dict(x=64, ckv=66, wq=68, wuk=70, wuv=72, wo=74, bx=76, wg=78, wu=80, wd=82, out=84, dbg=86, ws=88)
vTag = 5
T = 6

def srd(n): return f"s[{n}:{n+3}]"
def vr(a, n=1): return f"v{a}" if n == 1 else f"v[{a}:{a+n-1}]"
WSR = srd(SRD_WS)

class G(Asm):
    def __init__(self, opt):
        super().__init__(); self.o = opt; self.nl = 0
    def label(self, base):
        self.nl += 1; return f"L{self.nl}_{base}"
    def mksrd(self, d, name, size=None):
        p = PTR[name]
        self(f"s_mov_b64 s[{d}:{d+1}], s[{p}:{p+1}]\ns_mov_b32 s{d+2}, {size or SZ[name]}\ns_mov_b32 s{d+3}, 0x20000")
    def ts(self, i):
        m = self.o.get("ts", 0)
        if m == 1 or (m and i in (0, 15)):
            self(f"s_memrealtime {sTm}\ns_waitcnt lgkmcnt(0)\ns_mov_b32 s{TSB+i}, s56")
    def nop(self, n):
        while n > 0:
            k = min(n, 16); self(f"s_nop {k-1}"); n -= k
    def tag(self, regs):
        for r in regs: self(f"v_bfi_b32 v{r}, {sMsk}, v{vTag}, v{r}")
    def chk_acc(self, acc, regs, first):
        for r in regs:
            if first: self(f"v_xor_b32 v{acc}, {sTag}, v{r}"); first = False
            else: self(f"v_bitop3_b32 v{acc}, v{acc}, v{r}, {sTag} bitop3:0xf6")
    def chk_fin(self, acc, tmp=None):
        t = acc if tmp is None else tmp
        self(f"v_and_b32 v{t}, 0x1ff, v{acc}\nv_cmp_ne_u32 vcc, 0, v{t}")
    def poll_begin(self, name):
        L = self.label(name); self(f"s_mov_b32 {sCnt}, 0\n{L}:"); return L
    def poll_end(self, L, fallback=None):
        D = self.label("ok")
        self(f"s_cbranch_vccz {D}\ns_add_u32 {sCnt}, {sCnt}, 1")
        if fallback:
            N = self.label("nofb")
            self(f"s_cmp_lg_u32 {sCnt}, {self.o.get('nfall', 24)}\ns_cbranch_scc1 {N}")
            fallback()
            self(f"{N}:")
        self(f"s_cmp_lt_u32 {sCnt}, {MAXPOLL}\ns_cbranch_scc1 {L}\n{D}:")
    def allred16(self, op, v, steps=(8, 4, 2, 1)):
        for s in steps:
            self(f"s_nop 1\n{op}_dpp v{v}, v{v}, v{v} row_ror:{s} {DPP}")
    def swapred(self, op, v, t, which):
        self(f"v_mov_b32 v{t}, v{v}\ns_nop 1\nv_permlane{which}_swap_b32 v{v}, v{t}\ns_nop 0\n{op} v{v}, v{v}, v{t}")
    def finish(self):
        if self.o.get("ts"):
            self.ts(15)
            self(f"s_mov_b64 exec, -1\nv_mov_b32 v1, 0")
            for i in range(16): self(f"v_writelane_b32 v1, s{TSB+i}, {i}")
            self(f"""
            s_lshl_b32 {sT0}, s2, 2
            s_add_u32 {sT0}, {sT0}, {sW}
            s_lshl_b32 {sT0}, {sT0}, 6
            s_add_u32 {sT0}, {sT0}, {WS['TS']}
            v_lshlrev_b32 v2, 2, v0
            s_mov_b64 exec, 0xffff
            buffer_store_dword v1, v2, {WSR}, {sT0} offen
            """)
        self("s_endpgm")

class LQ:
    def __init__(self, g): self.g = g; self.q = []
    def add(self, name, n=1): self.q += [name]*n
    def wait(self, *names):
        idx = [i for i, x in enumerate(self.q) if x in names]
        if not idx: return
        n = len(self.q) - 1 - max(idx)
        if n > 14: n = 14
        self.g(f"s_waitcnt lgkmcnt({n})"); self.q = self.q[len(self.q)-n:] if n else []
    def clear(self): self.q = []

def ar(a, n): return f"a[{a}:{a+n-1}]"

def dma(g, voff, s, soff, flags=""):
    g(f"buffer_load_dwordx4 v{voff}, {srd(s)}, {soff} offen {flags} lds")

def dma_loop(g, n, voff, s, step_src, step_lds=4096, flags="", hold=0, win=None):
    for i in range(hold):
        dma(g, voff, s, sOff, flags)
        g(f"s_add_u32 {sOff}, {sOff}, {step_src}\ns_add_u32 m0, m0, {step_lds}\ns_waitcnt vmcnt(0)")
    L = g.label("dma")
    g(f"s_mov_b32 {sK}, {n-hold}\n{L}:")
    dma(g, voff, s, sOff, flags)
    g(f"s_add_u32 {sOff}, {sOff}, {step_src}\ns_add_u32 m0, m0, {step_lds}")
    if win is not None: g(f"s_waitcnt vmcnt({win})")
    g(f"s_sub_u32 {sK}, {sK}, 1\ns_cmp_lg_u32 {sK}, 0\ns_cbranch_scc1 {L}")

def epoch_regs(g):
    g(f"""
    s_getreg_b32 {sXcc}, hwreg(HW_REG_XCC_ID, 0, 3)
    s_add_u32 {sE}, {sE}, 1
    s_movk_i32 {sMsk}, 0xfff
    s_and_b32 {sTag}, {sE}, 0x1ff
    s_lshl_b32 {sT2}, {sXcc}, 9
    s_or_b32 {sTag}, {sTag}, {sT2}
    v_mov_b32 v{vTag}, {sTag}
    """)

def role_w(g):
    o = g.o
    vLR, vCB, vTB, vXB = 1, 2, 3, 4
    lfl = o.get("late_flags", "")
    lwin = o.get("lwin")
    X, V = 112, 118
    g(f"""
    s_lshr_b32 {sT0}, s2, 5
    s_lshl_b32 {sT0}, {sT0}, 3
    s_and_b32 {sH}, s2, 7
    s_add_u32 {sH}, {sH}, {sT0}
    s_bfe_u32 {sJ}, s2, 0x20003
    s_and_b32 {sT1}, {sW}, 1
    s_lshl_b32 {sT1}, {sT1}, 3
    v_lshrrev_b32 v{T}, 4, v0
    v_lshl_add_u32 v{T+1}, v{T}, 1, {sT1}
    v_xor_b32 v{T+1}, v{T+1}, v0
    v_and_b32 v{T+1}, 15, v{T+1}
    v_lshlrev_b32 v{T+1}, 4, v{T+1}
    v_lshl_add_u32 v{T+3}, v{T}, 13, v{T+1}
    v_lshlrev_b32 v{T+4}, 2, v0
    s_lshr_b32 {sT0}, {sW}, 1
    s_lshl_b32 {sT0}, {sT0}, 2
    s_add_u32 {sT0}, {sT0}, {sT1}
    s_mul_i32 {sT1}, {sJ}, 160
    s_add_u32 {sT0}, {sT0}, {sT1}
    s_lshl_b32 {sT0}, {sT0}, 13
    s_lshl_b32 {sT2}, {sH}, 8
    s_add_u32 {sOff}, {sT0}, {sT2}
    s_lshl_b32 {sT3}, {sW}, 10
    s_add_u32 m0, {sT3}, {IMG}
    s_mul_i32 {sT0}, {sW}, 1280
    s_mov_b32 s{SRD_C+2}, {SZ['x']}
    s_mov_b32 s{SRD_C+3}, 0x20000
    s_mov_b32 s{SRD_A+2}, {SZ['wq']}
    s_mov_b32 s{SRD_A+3}, 0x20000
    s_cmp_ge_u32 {sW}, 2
    s_waitcnt lgkmcnt(0)
    s_mov_b64 s[{SRD_C}:{SRD_C+1}], s[64:65]
    s_mov_b64 s[{SRD_A}:{SRD_A+1}], s[68:69]
    s_cbranch_scc1 L_nox
    """)
    for i in range(5):
        g(f"buffer_load_dword v{X+i}, v{T+4}, {srd(SRD_C)}, {sT0} offen offset:{i*256}")
    g("L_nox:")
    dma_loop(g, 10, T+3, SRD_A, 16*8192, flags=o.get("wq_flags", ""))
    g(f"s_load_dword {sE}, s[88:89], 0")
    g.mksrd(SRD_WS, "ws", WS_USED); g.mksrd(SRD_B, "wuk")
    g(f"""
    s_lshl_b32 {sRec}, {sH}, 12
    s_add_u32 {sRec}, {sRec}, {WS['QP']}
    s_lshl_b32 {sT0}, {sJ}, 10
    s_lshl_b32 {sT1}, {sW}, 7
    s_add_u32 {sT0}, {sT0}, {sT1}
    s_add_u32 {sDone}, {sRec}, {sT0}
    v_lshlrev_b32 v{T+5}, 9, v0
    s_mov_b64 exec, 3
    buffer_load_dword v128, v{T+5}, {WSR}, {sDone} offen sc1
    s_mov_b64 exec, -1
    """)
    g.ts(1)
    Lskip = g.label("noln")
    g(f"s_cmp_ge_u32 {sW}, 2\ns_cbranch_scc1 {Lskip}")
    g("s_waitcnt vmcnt(11)")
    for i in range(5):
        g(f"v_lshlrev_b32 v{V+2*i}, 16, v{X+i}\nv_and_b32 v{V+2*i+1}, 0xffff0000, v{X+i}")
    g(f"v_pk_add_f32 {vr(T,2)}, {vr(V,2)}, {vr(V+2,2)}\nv_pk_add_f32 {vr(T+2,2)}, {vr(V+4,2)}, {vr(V+6,2)}")
    g(f"v_pk_add_f32 {vr(T,2)}, {vr(T,2)}, {vr(V+8,2)}\nv_pk_add_f32 {vr(T,2)}, {vr(T,2)}, {vr(T+2,2)}\nv_add_f32 v{T}, v{T}, v{T+1}")
    g.allred16("v_add_f32", T); g.swapred("v_add_f32", T, T+1, 16); g.swapred("v_add_f32", T, T+1, 32)
    g(f"v_mul_f32 v{T}, {-1/640!r}, v{T}")
    for i in range(5): g(f"v_pk_add_f32 {vr(V+2*i,2)}, {vr(V+2*i,2)}, {vr(T,2)} op_sel_hi:[1,0]")
    g(f"v_pk_mul_f32 {vr(T+2,2)}, {vr(V,2)}, {vr(V,2)}")
    for i in range(1, 5): g(f"v_pk_fma_f32 {vr(T+2,2)}, {vr(V+2*i,2)}, {vr(V+2*i,2)}, {vr(T+2,2)}")
    g(f"v_add_f32 v{T+2}, v{T+2}, v{T+3}")
    g.allred16("v_add_f32", T+2); g.swapred("v_add_f32", T+2, T+1, 16); g.swapred("v_add_f32", T+2, T+1, 32)
    g(f"""
    v_mul_f32 v{T+2}, {1/640!r}, v{T+2}
    v_cvt_pk_bf16_f32 v{T+1}, v{T}, v{T+2}
    v_and_b32 v{T+2}, 0xffff0000, v{T+1}
    v_lshlrev_b32 v{T+1}, 16, v{T+1}
    v_add_f32 v{T+2}, 1e-5, v{T+2}
    v_cvt_pk_bf16_f32 v{T+2}, v{T+2}, v{T+2}
    v_and_b32 v{T+2}, 0xffff0000, v{T+2}
    v_sqrt_f32 v{T+2}, v{T+2}
    v_sub_f32 v{T}, v{T+1}, v{T}
    v_cvt_pk_bf16_f32 v{T+2}, v{T+2}, v{T+2}
    v_and_b32 v{T+2}, 0xffff0000, v{T+2}
    v_rcp_f32 v{T+2}, v{T+2}
    s_mul_i32 {sT0}, {sW}, {XNP}
    v_add_u32 v{T+5}, {sT0}, v{T+4}
    v_mul_f32 v{T}, v{T}, v{T+2}
    """)
    for i in range(5): g(f"v_pk_fma_f32 {vr(V+2*i,2)}, {vr(V+2*i,2)}, {vr(T+2,2)}, {vr(T,2)} op_sel_hi:[1,0,0]")
    for i in range(5):
        g(f"v_cvt_pk_bf16_f32 v{X+i}, v{V+2*i}, v{V+2*i+1}\nds_write_b32 v{T+5}, v{X+i} offset:{XN+i*256}")
    g(f"{Lskip}:")
    U = 16
    g(f"""
    v_lshrrev_b32 v{T}, 4, v0
    v_and_b32 v{T+1}, 15, v0
    v_xor_b32 v{T+2}, v{T}, v{T+1}
    v_lshlrev_b32 v{T+2}, 4, v{T+2}
    v_lshl_add_u32 v{U}, v{T}, 13, v{T+2}
    v_xor_b32 v{U+1}, 64, v{U}
    v_xor_b32 v{U+2}, 0x80, v{U}
    v_xor_b32 v{U+3}, 0xc0, v{U}
    s_lshl_b32 {sT0}, {sJ}, 2
    s_add_u32 {sT0}, {sT0}, {sW}
    s_lshl_b32 {sT0}, {sT0}, 18
    s_lshl_b32 {sT2}, {sH}, 8
    s_add_u32 {sOff}, {sT0}, {sT2}
    s_lshl_b32 {sT0}, {sW}, 13
    s_add_u32 m0, {sT0}, {UKIMG}
    """)
    for u in range(8):
        g(f"s_add_u32 {sOff2}, {sOff}, {(8*(u&3)+4*(u>>2))*8192}")
        dma(g, U+(u & 3), SRD_B, sOff2, o.get("wuk_flags", ""))
        if u < 7: g("s_add_u32 m0, m0, 0x400")
    vUA, vQT, vQPs, vQSw, vQSr, vQOw, vQAs, vL16 = 20, 130, 136, 137, 138, 139, 140, 141
    g("s_waitcnt lgkmcnt(0)")
    epoch_regs(g)
    g(f"""
    ; v{T}=q  v{T+1}=j  v{T+2}=(q^j)*16  v{T+3}=j&1
    v_lshl_add_u32 v{vUA}, v{T+1}, 8, v{T+2}
    v_add_u32 v{vUA}, {sT0}, v{vUA}
    v_xor_b32 v{vUA+1}, 64, v{vUA}
    v_xor_b32 v{vUA+2}, 0x80, v{vUA}
    v_xor_b32 v{vUA+3}, 0xc0, v{vUA}
    v_and_b32 v{T+3}, 1, v0
    v_mul_u32_u24 v{vXB}, {XNP}, v{T+3}
    v_lshl_add_u32 v{vXB}, v{T}, 4, v{vXB}
    ; r8=(l>>2)&7 c4=l&3 row=16*(l>>5)+r8
    v_bfe_u32 v{T+4}, v0, 2, 3
    v_lshrrev_b32 v{T+5}, 5, v0
    v_lshl_add_u32 v{T+5}, v{T+5}, 4, v{T+4}
    v_and_b32 v{T+7}, 3, v0
    v_xor_b32 v{T+6}, {sW}, v{T+4}
    v_lshlrev_b32 v{T+6}, 5, v{T+6}
    v_lshl_add_u32 v{T+6}, v{T+5}, 8, v{T+6}
    v_lshl_add_u32 v{vQT}, v{T+7}, 3, v{T+6}
    v_xor_b32 v{vQT+1}, 0x80, v{vQT}
    v_lshrrev_b32 v{T+4}, 1, v{T+4}
    v_xor_b32 v{T+4}, {sW}, v{T+4}
    v_lshlrev_b32 v{T+4}, 5, v{T+4}
    v_lshl_add_u32 v{vTB}, v{T+5}, 7, v{T+4}
    v_lshl_add_u32 v{vTB}, v{T+7}, 3, v{vTB}
    v_cmp_gt_u32 {sJ2m}, 2, v{T+1}
    s_mul_i32 {sT0}, {sJ}, 320
    v_add_u32 v{T+8}, {sT0}, v{vXB}
    v_lshlrev_b32 v{T+9}, 6, v{T+3}
    v_lshl_add_u32 v{T+9}, v{T}, 4, v{T+9}
    v_bfe_u32 v{T+5}, v0, 1, 1
    v_lshl_add_u32 v{vQPs}, v{T+5}, 9, v{T+9}
    v_cmp_eq_u32 {sEx}, 1, v{T+5}
    v_lshlrev_b32 v{vL16}, 4, v0
    v_bfe_u32 v{T+5}, v0, 2, 1
    v_mul_u32_u24 v{T+5}, 320, v{T+5}
    v_lshrrev_b32 v{T+6}, 3, v0
    v_lshl_add_u32 v{T+5}, v{T+6}, 5, v{T+5}
    v_lshl_add_u32 v{T+5}, v{T+7}, 3, v{T+5}
    v_add_u32 v{vQSw}, {sT3}, v{T+5}
    v_mul_u32_u24 v{T+5}, 320, v{T+3}
    v_lshl_add_u32 v{T+5}, v{T}, 4, v{T+5}
    v_add_u32 v{vQSr}, {sT3}, v{T+5}
    v_lshlrev_b32 v{T+5}, 8, v{T+3}
    v_lshl_add_u32 v{T+5}, v{T}, 4, v{T+5}
    s_lshl_b32 {sT0}, {sW}, 6
    v_add_u32 v{vQOw}, {sT0}, v{T+5}
    v_lshlrev_b32 v{T+5}, 4, v{T+1}
    v_lshl_add_u32 v{vQAs}, v{T}, 15, v{T+5}
    s_lshl_b32 {sT0}, {sJ}, 5
    s_add_u32 {sT0}, {sT0}, {sH}
    s_lshl_b32 {sOff}, {sT0}, 8
    s_add_u32 {sOff}, {sOff}, {WS['QA']}
    s_lshl_b32 {sOff2}, {sT0}, 7
    s_add_u32 {sOff2}, {sOff2}, {WS['QC']}
    s_lshr_b32 {sT0}, {sW}, 1
    s_lshl_b32 {sT0}, {sT0}, 4
    s_and_b32 {sT1}, {sW}, 1
    s_lshl_b32 {sT1}, {sT1}, 2
    s_add_u32 {sT0}, {sT0}, {sT1}
    v_and_b32 v{T+5}, 3, v{T+6}
    v_lshrrev_b32 v{T+4}, 5, v0
    v_lshl_add_u32 v{vLR}, v{T+4}, 3, v{T+5}
    v_add_u32 v{vLR}, {sT0}, v{vLR}
    v_and_b32 v{T+6}, 6, v{T+6}
    v_xor_b32 v{T+6}, v{T+6}, v0
    v_and_b32 v{T+6}, 7, v{T+6}
    v_lshlrev_b32 v{vCB}, 4, v{T+6}
    v_mov_b32 v{T+6}, 0
    v_lshlrev_b32 v{T+4}, 2, v0
    v_and_b32 v{T+5}, 0x7c, v{T+4}
    ds_write_b32 v{T+5}, v{T+6} offset:{ZERO}
    s_mov_b32 s60, 0x000f000f
    s_mov_b32 s61, 0x000f000f
    s_mov_b32 {sA}, {128**-0.5*LOG2E!r}
    """)
    g.ts(2)
    AF, BF, D = 32, 72, 24
    g("s_waitcnt vmcnt(8) lgkmcnt(0)\ns_barrier")
    g.ts(3)
    def rd(s):
        for tl in range(2):
            for t in range(2):
                g(f"ds_read_b64_tr_b16 {vr(AF+8*s+4*tl+2*t,2)}, v{vQT+tl} offset:{IMG+s*8192+t*2048}")
        g(f"ds_read_b128 {vr(BF+4*s,4)}, v{T+8} offset:{XN+s*64}")
    for s in range(3): rd(s)
    for s in range(5):
        rem = min(4, s+2) - s
        g(f"s_waitcnt lgkmcnt({5*rem})")
        for tl in range(2):
            g(f"v_mfma_f32_16x16x32_bf16 {vr(D+4*tl,4)}, {vr(AF+8*s+4*tl,4)}, {vr(BF+4*s,4)}, {vr(D+4*tl,4) if s else 0}")
        if s+3 < 5: rd(s+3)
    QK_ = 132
    g.nop(8)
    for r in range(4): g(f"v_cndmask_b32 v{QK_+r}, v{D+r}, v{D+4+r}, {sEx}")
    g.tag(range(QK_, QK_+4))
    def qp_store(fl):
        g(f"""
        s_mov_b64 exec, s[60:61]
        buffer_store_dwordx4 {vr(QK_,4)}, v{vQPs}, {WSR}, {sDone} offen {fl}
        s_mov_b64 exec, -1
        """)
    qp_store("")
    P0, QB = 96, 80
    L = g.poll_begin("qp")
    for i in range(4):
        g(f"buffer_load_dwordx4 {vr(P0+4*i,4)}, v{vL16}, {WSR}, {sRec} offen offset:{i*1024} sc1")
    g("s_waitcnt vmcnt(4)")
    g.ts(4)
    for tl in range(2):
        for s in range(4):
            g(f"ds_read_b128 {vr(AF+16*tl+4*s,4)}, v{vUA+s} offset:{UKIMG+tl*4096}")
    S4 = 112
    g(f"""
    s_waitcnt vmcnt(2)
    v_pk_add_f32 {vr(S4,2)}, {vr(P0,2)}, {vr(P0+4,2)}
    v_pk_add_f32 {vr(S4+2,2)}, {vr(P0+2,2)}, {vr(P0+6,2)}
    s_waitcnt vmcnt(0)
    v_pk_add_f32 {vr(S4+4,2)}, {vr(P0+8,2)}, {vr(P0+12,2)}
    v_pk_add_f32 {vr(S4+6,2)}, {vr(P0+10,2)}, {vr(P0+14,2)}
    v_pk_add_f32 {vr(S4,2)}, {vr(S4,2)}, {vr(S4+4,2)}
    v_pk_add_f32 {vr(S4+2,2)}, {vr(S4+2,2)}, {vr(S4+6,2)}
    v_cvt_pk_bf16_f32 v{S4}, v{S4}, v{S4+1}
    v_cvt_pk_bf16_f32 v{S4+1}, v{S4+2}, v{S4+3}
    ds_write_b64 v{vQSw}, {vr(S4,2)} offset:{QS}
    """)
    for s in range(4): g(f"ds_read_b128 {vr(QB+4*s,4)}, v{vQSr} offset:{QS+s*64}")
    g.chk_acc(T+7, range(P0, P0+16), True); g.chk_fin(T+7, T+6)
    g.poll_end(L, lambda: qp_store("sc1"))
    g.ts(5)
    for s in range(4):
        g(f"s_waitcnt lgkmcnt({3-s})")
        for tl in range(2):
            g(f"v_mfma_f32_16x16x32_bf16 {vr(D+4*tl,4)}, {vr(AF+16*tl+4*s,4)}, {vr(QB+4*s,4)}, {vr(D+4*tl,4) if s else 0}")
    g(f"v_and_b32 v{T+7}, 0xe00, v{T+7}\nv_cmp_ne_u32 {sRem}, 0, v{T+7}")
    g.nop(5)
    for r in range(4): g(f"v_pk_mul_f32 {vr(D+2*r,2)}, {vr(D+2*r,2)}, s[90:91] op_sel_hi:[1,0]")
    for r in range(4): g(f"v_cvt_pk_bf16_f32 v{P0+r}, v{D+2*r}, v{D+2*r+1}")
    Lp = g.label("nopub")
    g(f"""
    s_mov_b64 exec, {sJ2m}
    ds_write_b128 v{vQOw}, {vr(P0,4)} offset:{QO}
    s_mov_b64 exec, -1
    s_cmp_lg_u32 {sW}, 0
    s_waitcnt lgkmcnt(0)
    s_barrier
    s_cbranch_scc1 {Lp}
    s_mov_b32 exec_hi, 0
    ds_read_b128 {vr(P0,4)}, v{vL16} offset:{QO}
    s_waitcnt lgkmcnt(0)
    buffer_store_dwordx4 {vr(P0,4)}, v{vQAs}, {WSR}, {sOff} offen sc1
    v_add3_u32 v{T+7}, v{P0}, v{P0+1}, v{P0+2}
    v_add_u32 v{T+7}, v{T+7}, v{P0+3}
    """)
    g.allred16("v_add_u32", T+7)
    g(f"""
    v_add_u32 v{T+7}, {sE}, v{T+7}
    buffer_store_dword v{T+7}, v{T+4}, {WSR}, {sOff2} offen sc1
    s_mov_b64 exec, -1
    """)
    g.ts(6)
    if o.get("ackhold", 0): g("s_waitcnt vmcnt(0)")
    Lnw = g.label("noqpwt")
    g(f"{Lp}:\ns_barrier")
    hp = o.get("hp", 1)
    if hp:
        g.mksrd(SRD_C, "ckv")
        g(f"""
        s_and_b32 {sT0}, s2, 7
        s_lshl_b32 {sT0}, {sT0}, 21
        s_lshr_b32 {sT1}, s2, 3
        s_lshl_b32 {sT1}, {sT1}, 14
        s_add_u32 {sT0}, {sT0}, {sT1}
        s_lshl_b32 {sT1}, {sW}, 19
        s_add_u32 {sT0}, {sT0}, {sT1}
        v_lshrrev_b32 v{T+5}, 5, v0
        v_bfe_u32 v{T+6}, v0, 1, 4
        v_lshlrev_b32 v{T+6}, 10, v{T+6}
        v_lshl_add_u32 v{T+5}, v{T+5}, 18, v{T+6}
        v_lshl_add_u32 v{T+5}, v{T+3}, 7, v{T+5}
        """)
        for i in range(hp):
            g(f"buffer_load_dword v{142+i}, v{T+5}, {srd(SRD_C)}, {sT0} offen offset:{CORD[4-hp+i]*256}")
    if o.get("wpo"):
        g(f"""
        s_and_b32 {sT0}, s2, 7
        s_lshl_b32 {sT0}, {sT0}, 19
        s_lshr_b32 {sT1}, s2, 3
        s_lshl_b32 {sT1}, {sT1}, 15
        s_add_u32 {sT0}, {sT0}, {sT1}
        s_lshl_b32 {sT1}, {sW}, 13
        s_add_u32 {sT0}, {sT0}, {sT1}
        s_add_u32 {sT0}, {sT0}, {WS['PO']}
        v_lshlrev_b32 v{T+5}, 7, v0
        buffer_load_dword v145, v{T+5}, {WSR}, {sT0} offen sc1
        """)
    if (hp or o.get("wpo")) and o.get("hpwait", 0): g("s_waitcnt vmcnt(0)")
    g(f"s_cmp_eq_u64 {sRem}, 0\ns_cbranch_scc1 {Lnw}")
    qp_store("sc1")
    g(f"{Lnw}:")
    g.ts(7)
    if o.get("diag"): g.finish()
    Lf, Lend, Lsp = g.label("F"), g.label("Wend"), g.label("spare")
    AM = 16
    vSP = T+9
    g(f"""
    v_mul_u32_u24 v{T+8}, 1280, v{vLR}
    v_add_u32 v{T+8}, v{T+8}, v{vCB}
    s_add_u32 m0, {sT3}, {IMG}
    v_lshrrev_b32 v{T+5}, 3, v0
    v_and_b32 v{T+6}, 7, v0
    v_lshlrev_b32 v{T+6}, 4, v{T+6}
    v_lshl_add_u32 v{vSP}, v{T+5}, 13, v{T+6}
    s_mul_i32 {sT0}, {sW}, {10*8192}
    s_and_b32 {sT1}, s2, 63
    s_lshl_b32 {sT1}, {sT1}, 7
    s_add_u32 {sC}, {sT0}, {sT1}
    s_cmp_ge_u32 s2, 64
    s_cbranch_scc1 {Lf}
    """)
    def gate_wait(nmax):
        L, D_ = g.label("gate"), g.label("gateok")
        g(f"""
        s_lshl_b32 {sT0}, s2, 7
        s_add_u32 {sT0}, {sT0}, {WS['GO']}
        s_mov_b32 {sCnt}, 0
        v_mov_b32 v{T+6}, 0
        {L}:
        buffer_load_dword v{T+7}, v{T+6}, {WSR}, {sT0} offen sc1
        s_waitcnt vmcnt(0)
        v_cmp_ne_u32 vcc, {sE}, v{T+7}
        s_cbranch_vccz {D_}
        s_add_u32 {sCnt}, {sCnt}, 1
        s_cmp_lt_u32 {sCnt}, {nmax}
        s_cbranch_scc1 {L}
        {D_}:
        """)
        g.ts(13)
    def gemm2_addrs():
        g(f"""
        v_mul_u32_u24 v{T+5}, 192, v{T+3}
        v_lshl_add_u32 v{T+5}, v{T}, 4, v{T+5}
        v_add_u32 v{T+5}, {CX}, v{T+5}
        v_mov_b32 v{T+6}, {ZERO}
        v_lshrrev_b32 v{T+7}, 1, v{T+1}
        """)
        for i in range(8):
            g(f"v_cmp_eq_u32 vcc, {i}, v{T+7}\ns_nop 1\nv_cndmask_b32 v{AM+i}, v{T+6}, v{T+5}, vcc")
    def gemm2_store():
        g.tag(range(D+4, D+8))
        g(f"""
        s_mov_b64 exec, 0xffff
        buffer_store_dwordx4 {vr(D+4,4)}, v{vSP}, {WSR}, {sD} offen sc1
        s_mov_b64 exec, -1
        s_nop 0
        """)
        g.tag(range(D, D+4))
        g(f"buffer_store_dwordx4 {vr(D,4)}, v{vSP}, {WSR}, {sC} offen sc1")
    def gemm2(wf, nk, AR):
        n = 8*nk
        for idx in range(n):
            g(f"ds_read_b128 {vr(AR+4*idx,4)}, v{AM+(idx&7)} offset:{(idx>>3)*64}")
        for idx in range(n):
            kk, i = idx >> 3, idx & 7
            g(f"s_waitcnt lgkmcnt({min(14, n-1-idx)})")
            g(f"v_mfma_f32_16x16x32_bf16 {vr(D,4)}, {vr(AR+4*idx,4)}, {vr(wf(i,kk),4)}, {vr(D,4) if idx else 0}")
            if i < 2:
                g(f"v_mfma_f32_16x16x32_bf16 {vr(D+4,4)}, {vr(AR+4*idx,4)}, {vr(wf(8+i,kk),4)}, {vr(D+4,4) if idx else 0}")
        gemm2_store()

    g(f"""
    s_and_b32 {sH}, s2, 7
    s_lshl_b32 {sH}, {sH}, 2
    s_add_u32 {sH}, {sH}, {sJ}
    s_lshr_b32 {sJ}, s2, 5
    s_lshl_b32 {sT0}, {sH}, 1
    s_add_u32 {sT0}, {sT0}, {sJ}
    s_mul_i32 {sOff}, {sT0}, {64*1280}
    s_lshl_b32 {sB}, {sT0}, 7
    s_add_u32 {sC}, {sC}, {WS['SP']}
    s_add_u32 {sD}, {sC}, {8*8192}
    """)
    g.mksrd(SRD_B, "wo"); g.mksrd(SRD_A, "wuv")
    dma_loop(g, 10, T+8, SRD_B, 128, flags=lfl, hold=o.get("lhold", 0), win=lwin)
    g(f"s_add_u32 {sOff}, {sOff}, {31*1280}")
    dma_loop(g, 10, T+8, SRD_B, 128, flags=lfl, win=lwin)
    g(f"""
    s_and_b32 {sT0}, {sW}, 1
    s_lshr_b32 {sT1}, {sW}, 1
    s_lshl_b32 {sT1}, {sT1}, 2
    s_add_u32 {sT0}, {sT0}, {sT1}
    v_lshrrev_b32 v{T+5}, 5, v0
    v_lshl_add_u32 v{T+5}, v{T+5}, 1, {sT0}
    v_bfe_u32 v{T+6}, v0, 3, 1
    v_lshl_add_u32 v{T+5}, v{T+6}, 5, v{T+5}
    v_bfe_u32 v{T+6}, v0, 4, 1
    v_lshl_add_u32 v{T+5}, v{T+6}, 4, v{T+5}
    v_lshl_add_u32 v{T+5}, v{T+5}, 13, v{vCB}
    """)
    if o.get("tgate"): gate_wait(o.get("ngate", 40))
    L = g.label("uv")
    g(f"s_mov_b32 {sK}, 8\n{L}:")
    dma(g, T+5, SRD_A, sB)
    g(f"s_add_u32 {sB}, {sB}, {8*8192}\ns_add_u32 m0, m0, 0x1000\ns_sub_u32 {sK}, {sK}, 1")
    dma(g, T+5, SRD_A, sB)
    g(f"s_add_u32 {sB}, {sB}, {56*8192}\ns_add_u32 m0, m0, 0x1000")
    if lwin is not None: g(f"s_waitcnt vmcnt({lwin})")
    g(f"s_cmp_lg_u32 {sK}, 0\ns_cbranch_scc1 {L}")
    g.ts(8)
    gemm2_addrs()
    UV, WO, BR = 32, 96, 176
    vTB1, vTB2, vTB3 = 240, 241, 242
    vCLo, vCSo, vCLw, vCLr, vCXw = 243, 244, 245, 246, 247
    g(f"""
    v_add_u32 v{vTB1}, {IMG}, v{vTB}
    v_add_u32 v{vTB2}, {IMG+65536}, v{vTB}
    v_add_u32 v{vTB3}, {IMG+81920}, v{vTB}
    s_lshl_b32 {sOff}, {sH}, 12
    s_add_u32 {sOff}, {sOff}, {sT3}
    s_add_u32 {sOff}, {sOff}, {WS['CL']}
    s_lshr_b32 {sT0}, {sW}, 1
    s_and_b32 {sT1}, {sW}, 1
    v_lshlrev_b32 v{vCLo}, 4, v0
    v_mov_b32 v248, v{vTag}
    v_mov_b32 v249, v{vTag}
    v_mov_b32 v250, v{vTag}
    v_mov_b32 v251, v{vTag}
    s_mul_i32 {sT0}, {sT0}, 1088
    s_lshl_b32 {sT1}, {sT1}, 9
    s_add_u32 {sT0}, {sT0}, {sT1}
    v_lshl_add_u32 v{vCLw}, v0, 3, {sT0}
    v_mul_u32_u24 v{vCLr}, 1088, v{T+3}
    v_lshl_add_u32 v{vCLr}, v{T}, 4, v{vCLr}
    v_mul_u32_u24 v{vCXw}, 192, v{T+3}
    v_lshl_add_u32 v{vCXw}, v{T}, 3, v{vCXw}
    s_lshl_b32 {sT0}, {sW}, 5
    v_add_u32 v{vCXw}, {sT0}, v{vCXw}
    s_lshl_b32 {sB}, s2, 7
    s_add_u32 {sB}, {sB}, {WS['SH']}
    s_cmp_eq_u32 {sW}, 0
    s_cselect_b32 {sB}, {sB}, {WS_USED}
    s_waitcnt vmcnt(16)
    s_barrier
    """)
    for idx in range(20):
        for t in range(2):
            off = idx*4096 + t*1024
            g(f"ds_read_b64_tr_b16 {vr(WO+4*idx+2*t,2)}, v{vTB1 if off < 65536 else vTB2} offset:{off & 0xffff}")
    g("s_waitcnt vmcnt(0)\ns_barrier")
    g.ts(9)
    C0, S0, R0 = BR, BR+16, BR+20
    cl_load = f"buffer_load_dwordx4 {vr(C0,4)}, v{vCLo}, {WSR}, {sOff} offen sc1"
    Lin = g.label("clin")
    g(cl_load)
    for s in range(16):
        for t in range(2):
            g(f"ds_read_b64_tr_b16 {vr(UV+4*s+2*t,2)}, v{vTB3} offset:{s*4096+t*1024}")
    g(f"s_mov_b32 {sCnt}, 0\ns_branch {Lin}")
    L = g.label("cl")
    g(f"""
    {L}:
    s_cmp_ge_u32 {sCnt}, {o.get('nfallt', 64)}
    s_cselect_b32 {sT0}, {ALT}, 0
    s_xor_b32 {sOff}, {sOff}, {sT0}
    {cl_load}
    {Lin}:
    s_waitcnt vmcnt(0)
    v_cvt_pk_bf16_f32 v{R0}, v{C0}, v{C0+1}
    v_cvt_pk_bf16_f32 v{R0+1}, v{C0+2}, v{C0+3}
    ds_write_b64 v{vCLw}, {vr(R0,2)} offset:{CLB}
    """)
    g.chk_acc(T+7, range(C0, C0+4), True); g.chk_fin(T+7)
    g.poll_end(L)
    g.ts(10)
    if o.get("ts"): g(f"s_mov_b32 s{TSB+14}, {sCnt}")
    g("s_waitcnt lgkmcnt(0)\ns_barrier")
    for s in range(16): g(f"ds_read_b128 {vr(BR+4*s,4)}, v{vCLr} offset:{CLB+s*64}")
    def sp_hint():
        g(f"buffer_store_dwordx4 v[248:251], v{vSP}, {WSR}, {sB} offen sc1")
    for s in range(16):
        g(f"s_waitcnt lgkmcnt({min(14,15-s)})")
        g(f"v_mfma_f32_16x16x32_bf16 {vr(D,4)}, {vr(UV+4*s,4)}, {vr(BR+4*s,4)}, {vr(D,4) if s else 0}")
        if o.get("sph", 16) == s+1: sp_hint()
    g(f"s_mov_b64 exec, {sJ2m}")
    g.nop(7)
    g(f"""
    v_cvt_pk_bf16_f32 v{D}, v{D}, v{D+1}
    v_cvt_pk_bf16_f32 v{D+1}, v{D+2}, v{D+3}
    ds_write_b64 v{vCXw}, {vr(D,2)} offset:{CX}
    s_mov_b64 exec, -1
    s_waitcnt lgkmcnt(0)
    s_barrier
    """)
    g.ts(11)
    gemm2(lambda blk, kk: WO+4*(10*kk+blk), 2, BR)
    g.ts(12)
    Lst = g.label("ystore")
    g(f"s_branch {Lend}")

    g(f"""
    {Lf}:
    s_add_u32 {sC}, {sC}, {WS['YP']}
    s_add_u32 {sD}, {sC}, {8*8192}
    s_bfe_u32 {sT0}, s2, 0x20004
    s_lshl_b32 {sT0}, {sT0}, 3
    s_and_b32 {sH}, s2, 7
    s_add_u32 {sH}, {sH}, {sT0}
    s_cmp_ge_u32 {sH}, 27
    s_cbranch_scc1 {Lsp}
    s_bfe_u32 {sJ}, s2, 0x10003
    s_lshl_b32 {sH}, {sH}, 1
    s_add_u32 {sH}, {sH}, {sJ}
    s_mul_i32 {sOff}, {sH}, {32*1280}
    """)
    g.mksrd(SRD_B, "wd")
    fpre = o.get("fpre", 30)
    def gate():
        gate_wait(o.get("ngate", 40))
    if fpre == 0: gate()
    dma_loop(g, 10, T+8, SRD_B, 128, flags=lfl, hold=o.get("fhold", o.get("lhold", 0)), win=lwin)
    g(f"""
    s_cmp_eq_u32 {sJ}, 0
    s_cselect_b64 s[{SRD_A}:{SRD_A+1}], s[{PTR['wg']}:{PTR['wg']+1}], s[{PTR['wu']}:{PTR['wu']+1}]
    s_mov_b32 s{SRD_A+2}, {SZ['wg']}
    s_mov_b32 s{SRD_A+3}, 0x20000
    v_mul_u32_u24 v{T+5}, 3456, v{vLR}
    v_add_u32 v{T+5}, v{T+5}, v{vCB}
    s_lshr_b32 {sOff}, {sH}, 1
    s_lshl_b32 {sOff}, {sOff}, 7
    """)
    if 10 <= fpre < 30:
        if fpre > 10: dma_loop(g, fpre-10, T+5, SRD_A, 32*3456, flags=lfl, win=lwin)
        gate()
        dma_loop(g, 30-fpre, T+5, SRD_A, 32*3456, flags=lfl, win=lwin)
    else:
        dma_loop(g, 20, T+5, SRD_A, 32*3456, flags=lfl, win=lwin)
    g.ts(8)
    gemm2_addrs()
    WD, XF, GF = 32, 72, 152
    g(f"""
    v_add_u32 v{vTB1}, {IMG}, v{vTB}
    v_add_u32 v{vTB2}, {IMG+40960}, v{vTB}
    v_add_u32 v{vTB3}, {IMG+40960+65536}, v{vTB}
    v_lshlrev_b32 v{vCLo}, 4, v{T+1}
    s_lshl_b32 {sOff}, {sH}, 9
    s_and_b32 {sT1}, {sW}, 1
    s_lshl_b32 {sT0}, {sT1}, 8
    s_add_u32 {sOff}, {sOff}, {sT0}
    s_add_u32 {sOff}, {sOff}, {WS['FX']}
    s_xor_b32 {sOff2}, {sOff}, 512
    s_lshl_b32 {sT0}, {sT1}, 5
    v_lshl_add_u32 v{vCXw}, v{T+1}, 1, {sT0}
    buffer_load_dword v248, v{vCLo}, {WSR}, {sOff2} offen sc1
    """)
    for s in range(20): g(f"ds_read_b128 {vr(XF+4*s,4)}, v{vXB} offset:{XN+s*64}")
    g("s_waitcnt vmcnt(21)\ns_barrier")
    for blk in range(10):
        for t in range(2):
            g(f"ds_read_b64_tr_b16 {vr(WD+4*blk+2*t,2)}, v{vTB1} offset:{blk*4096+t*1024}")
    def rdg(s):
        for t in range(2):
            off = s*4096 + t*1024
            g(f"ds_read_b64_tr_b16 {vr(GF+4*s+2*t,2)}, v{vTB2 if off < 65536 else vTB3} offset:{off & 0xffff}")
    def mm(s0, s1):
        for s in range(s0, min(s1, s0+7)): rdg(s)
        for s in range(s0, s1):
            rem = min(s1-1, s+6) - s
            g(f"s_waitcnt lgkmcnt({2*rem})")
            g(f"v_mfma_f32_16x16x32_bf16 {vr(D,4)}, {vr(XF+4*s,4)}, {vr(GF+4*s,4)}, {vr(D,4) if s else 0}")
            if s+7 < s1: rdg(s+7)
    g("s_waitcnt vmcnt(6)\ns_barrier")
    mm(0, 15)
    g("s_waitcnt vmcnt(1)\ns_barrier")
    g.ts(9)
    mm(15, 20)
    Lk, Lj = g.label("keep"), g.label("fjoin")
    g(f"""
    s_lshr_b32 {sT0}, {sW}, 1
    s_cmp_eq_u32 {sT0}, {sJ}
    s_cbranch_scc1 {Lk}
    s_nop 4
    """)
    g.tag(range(D, D+4))
    g(f"""
    s_mov_b64 exec, 0xffff
    buffer_store_dwordx4 {vr(D,4)}, v{vCLo}, {WSR}, {sOff} offen
    s_xor_b32 {sOff}, {sOff}, {ALT}
    buffer_store_dwordx4 {vr(D,4)}, v{vCLo}, {WSR}, {sOff} offen sc1
    s_mov_b64 exec, -1
    s_branch {Lj}
    {Lk}:
    """)
    L = g.poll_begin("fx")
    g(f"s_cmp_ge_u32 {sCnt}, {o.get('nfall', 24)}\ns_cselect_b32 {sT0}, {ALT}, 0\ns_xor_b32 {sOff2}, {sOff2}, {sT0}")
    g(f"buffer_load_dwordx4 {vr(D+4,4)}, v{vCLo}, {WSR}, {sOff2} offen sc1\ns_waitcnt vmcnt(0)")
    g.chk_acc(T+7, range(D+4, D+8), True); g.chk_fin(T+7); g.poll_end(L)
    g.ts(10)
    c1 = -2*0.7978845608028654*LOG2E
    g(f"s_cmp_eq_u32 {sJ}, 0\ns_cselect_b64 vcc, -1, 0\ns_mov_b32 {sT0}, {c1*0.044715!r}\nv_mov_b32 v{T+5}, {c1!r}")
    for r in range(2):
        g(f"v_cndmask_b32 v{XF+r}, v{D+4+r}, v{D+r}, vcc\nv_cndmask_b32 v{XF+4+r}, v{D+r}, v{D+4+r}, vcc")
    for op in ("v_mul_f32 v{t}, v{x}, v{x}", "v_fma_f32 v{t}, v{t}, {c}, v{k}", "v_mul_f32 v{t}, v{t}, v{x}", "v_exp_f32 v{t}, v{t}",
               "v_add_f32 v{t}, 1.0, v{t}", "v_rcp_f32 v{t}, v{t}", "v_mul_f32 v{x}, v{x}, v{t}", "v_mul_f32 v{x}, v{x}, v{u}"):
        for r in range(2): g(op.format(t=XF+8+r, x=XF+r, u=XF+4+r, c=sT0, k=T+5))
        if "exp" in op or "rcp" in op: g("s_nop 0")
    g(f"""
    v_cvt_pk_bf16_f32 v{XF}, v{XF}, v{XF+1}
    ds_write_b16 v{vCXw}, v{XF} offset:{CX}
    ds_write_b16_d16_hi v{vCXw}, v{XF} offset:{CX+192}
    {Lj}:
    s_waitcnt lgkmcnt(0)
    s_barrier
    """)
    g.ts(11)
    gemm2(lambda blk, kk: WD+4*blk, 1, GF)
    g.ts(12)
    g(f"s_branch {Lend}\n{Lsp}:")
    for r in range(8): g(f"v_mov_b32 v{D+r}, 0")
    gemm2_store()
    g(f"{Lend}:")
    g.finish()

def role_a(g):
    o = g.o
    vQo, vL16, vCk = 2, 3, 4
    DO = 252
    g(f"""
    s_and_b32 {sGrp}, s2, 7
    s_bfe_u32 {sP}, s2, 0x40003
    v_lshrrev_b32 v{T}, 4, v0
    v_and_b32 v{T+1}, 15, v0
    v_lshlrev_b32 v{T+2}, 2, v{T}
    v_xor_b32 v{T+2}, v{T+2}, v{T+1}
    v_lshlrev_b32 v{T+2}, 4, v{T+2}
    v_lshl_add_u32 v{DO}, v{T}, 10, v{T+2}
    v_xor_b32 v{DO+1}, 0x1010, v{DO}
    v_xor_b32 v{DO+2}, 0x2020, v{DO}
    v_xor_b32 v{DO+3}, 0x3030, v{DO}
    s_lshl_b32 {sT0}, {sGrp}, 21
    s_lshl_b32 {sA}, {sP}, 14
    s_add_u32 {sA}, {sA}, {sT0}
    s_lshl_b32 {sT0}, {sW}, 19
    s_add_u32 {sA}, {sA}, {sT0}
    s_lshl_b32 {sT3}, {sW}, 10
    s_lshl_b32 {sD}, {sW}, 13
    s_mov_b32 m0, {sD}
    s_lshl_b32 {sRec}, {sP}, 2
    s_add_u32 {sRec}, {sRec}, {sW}
    s_waitcnt lgkmcnt(0)
    """)
    g.mksrd(SRD_A, "ckv")
    if o.get("codepf", 1):
        g(f"""
        s_getpc_b64 s[60:61]
        L_pc:
        s_sub_u32 s60, s60, L_pc-{NAME}_kernel
        s_subb_u32 s61, s61, 0
        s_mul_i32 {sT0}, {sRec}, 384
        v_lshl_add_u32 v{T+4}, v0, 7, {sT0}
        v_min_u32 v{T+4}, L_codeend-{NAME}_kernel-4, v{T+4}
        s_mov_b64 exec, 7
        global_load_dword v230, v{T+4}, s[60:61]
        s_mov_b64 exec, -1
        """)
    fl = o.get("ckv_flags", "nt")
    n1, k1, k2, qpos = o.get("n1", 4), o.get("k1", 1), o.get("k2", 7), o.get("qpos", 32)
    assert qpos >= 24
    CK = 16
    KA_, KB_, KH_, VB = 18, 26, 34, 92
    vFo, vDl, vBp, vH16, MK, vXr, vXw, vPw, vPr = 232, 233, 234, 235, 236, 240, 241, 242, 243
    vCLs, vB4, vVal, vPf, vUf = 246, 247, 248, 249, 250
    vMLw, vMLr = 42, 43
    def setup():
        g(f"s_load_dword {sE}, s[88:89], 0")
        g.mksrd(SRD_WS, "ws", WS_USED); g.mksrd(SRD_B, "wuv")
        g(f"""
        s_lshl_b32 {sT0}, {sW}, 4
        v_xor_b32 v{vQo}, {sT0}, v{T+2}
        v_lshl_add_u32 v{vQo}, v{T}, 8, v{vQo}
        v_add_u32 v{vQo}, {sT3}, v{vQo}
        v_lshrrev_b32 v{T+4}, 2, v0
        v_lshlrev_b32 v{vFo}, 9, v{T+4}
        v_lshlrev_b32 v{T+4}, 4, v{T+4}
        v_and_b32 v{T+7}, 3, v0
        v_lshl_add_u32 v{vFo}, v{T+7}, 4, v{vFo}
        s_lshl_b32 {sT0}, {sW}, 2
        v_add3_u32 v{T+4}, v{T+4}, v{T+7}, {sT0}
        v_lshlrev_b32 v{vCk}, 7, v{T+4}
        s_lshr_b32 {sT0}, {sGrp}, 2
        s_lshl_b32 {sOff2}, {sT0}, 6
        s_add_u32 {sOff2}, {sOff2}, {WS['QC']}
        s_lshl_b32 {sB}, {sT0}, 15
        s_add_u32 {sB}, {sB}, {WS['QA']}
        v_lshlrev_b32 v{vL16}, 4, v0
        v_add_u32 v{vH16}, 4096, v{vL16}
        v_add_u32 v{T+8}, {QAI}, v{vL16}
        v_add_u32 v{vVal}, {sT3}, v{T+8}
        v_mov_b32 v{CK}, 0
        v_lshlrev_b32 v{vPf}, 7, v0
        ; own outbox / flag record offsets
        s_lshl_b32 {sT0}, {sGrp}, 6
        s_add_u32 {sT0}, {sT0}, {sRec}
        s_lshl_b32 {sH}, {sT0}, 13
        s_add_u32 {sH}, {sH}, {WS['PO']}
        s_lshl_b32 {sDone}, {sT0}, 8
        s_add_u32 {sDone}, {sDone}, {WS['PC']}
        s_lshr_b32 {sJ}, {sT0}, 2
        s_lshl_b32 {sJ}, {sJ}, 9
        s_add_u32 {sJ}, {sJ}, {WS['ST']}
        s_cmp_eq_u32 {sW}, 0
        s_cselect_b32 {sJ}, {sJ}, {WS_USED}
        v_lshlrev_b32 v251, 2, v0
        v_lshlrev_b32 v229, 10, v0
        v_bfe_u32 v{T+9}, v0, 2, 2
        v_lshl_or_b32 v{KB_}, v{T+7}, 2, v{T+9}
        v_lshrrev_b32 v{T+5}, 5, v0
        v_xor_b32 v{KB_}, v{KB_}, v{T+5}
        v_lshlrev_b32 v{KB_}, 4, v{KB_}
        v_and_b32 v{T+6}, 31, v0
        v_lshl_add_u32 v{KB_}, v{T+6}, 8, v{KB_}
        v_add_u32 v{KA_}, {sD}, v{KB_}
        v_add_u32 v{KB_}, {QAI}, v{KB_}
        v_add_u32 v{KH_}, 0x10000, v{KA_}
        v_bfe_u32 v{VB}, v0, 4, 1
        v_lshrrev_b32 v{VB+1}, 1, v{T+7}
        v_lshl_or_b32 v{VB}, v{VB}, 1, v{VB+1}
        v_xor_b32 v{VB}, v{VB}, v{T+5}
        v_lshl_or_b32 v{VB}, v{T+9}, 2, v{VB}
        v_lshlrev_b32 v{VB}, 4, v{VB}
        v_and_b32 v{VB+1}, 1, v0
        v_lshl_add_u32 v{VB}, v{VB+1}, 3, v{VB}
        v_lshl_add_u32 v{vBp}, v{T+5}, 2, v{T+9}
        v_lshl_add_u32 v{VB}, v{vBp}, 8, v{VB}
        v_lshlrev_b32 v{vBp}, 2, v{vBp}
        s_mul_i32 {sT0}, {sW}, {32768+8192}
        v_add_u32 v{VB}, {sT0}, v{VB}
        v_lshlrev_b32 v{vXr}, 2, v{T+6}
        v_add_u32 v{vXr}, {XCH}, v{vXr}
        s_lshl_b32 {sT0}, {sW}, 7
        v_add_u32 v{vXw}, {sT0}, v{vXr}
        s_lshl_b32 {sT0}, {sW}, 11
        v_add_u32 v{vPw}, {sT0}, v{T+8}
        v_xor_b32 v{vPr}, 0x800, v{vPw}
        v_xor_b32 v{vPr+1}, 0x1000, v{vPw}
        v_xor_b32 v{vPr+2}, 0x1800, v{vPw}
        v_lshlrev_b32 v{vDl}, 4, v{T+6}
        v_lshl_add_u32 v{vDl}, v{T+5}, 15, v{vDl}
        v_lshlrev_b32 v{T+4}, 4, v{VB+1}
        v_mov_b32 v{T+8}, 0xffff
        v_lshlrev_b32 v{T+4}, v{T+4}, v{T+8}
        v_lshrrev_b32 v{T+6}, 3, v0
        v_xor_b32 v{T+8}, v{T+6}, v0
        v_and_b32 v{T+8}, 2, v{T+8}
        v_cmp_eq_u32 vcc, 0, v{T+8}
        v_lshlrev_b32 v{vB4}, 2, v{T}
        s_lshl_b32 {sT0}, {sW}, 8
        v_cndmask_b32 v{T+4}, 0, v{T+4}, vcc
        s_add_u32 {sT0}, {sT0}, {QAI}
        v_add_u32 v{vCLs}, {sT0}, v251
        s_lshl_b32 {sT0}, {sW}, 5
        s_add_u32 {sT0}, {sT0}, {QAI+4096}
        v_lshl_add_u32 v{vMLw}, v{T+7}, 3, {sT0}
        v_lshlrev_b32 v{vMLr}, 3, v{T}
        v_add_u32 v{vMLr}, {QAI+4096}, v{vMLr}
        v_and_b32 v{T+8}, 7, v0
        v_lshlrev_b32 v{T+8}, 7, v{T+8}
        v_lshl_add_u32 v{vUf}, v{T+6}, 13, v{T+8}
        """)
        for d in range(4):
            g(f"v_cmp_eq_u32 vcc, {d}, v{T+9}\ns_nop 1\nv_cndmask_b32 v{MK+d}, 0, v{T+4}, vcc")
        g("s_waitcnt lgkmcnt(0)")
        epoch_regs(g)
    def setup2():
        for s in range(1, 8):
            g(f"v_xor_b32 v{KA_+s}, {s<<5}, v{KA_}\nv_xor_b32 v{KB_+s}, {s<<5}, v{KB_}\nv_xor_b32 v{KH_+s}, {s<<5}, v{KH_}")
        for n in range(1, 32):
            g(f"v_xor_b32 v{VB+n}, {((n>>3)<<13) | ((n&7)<<5)}, v{VB}")
    def qa_loads():
        g(f"s_mov_b32 {sOff}, {sB}\ns_add_u32 m0, {sT3}, {QAI}")
        dma_loop(g, 8, vQo, SRD_WS, 4096, flags="sc1")
        g(f"s_mov_b32 exec_hi, 0\nbuffer_load_dword v{CK}, v{vCk}, {WSR}, {sOff2} offen sc1\ns_mov_b64 exec, -1")
    def go_store():
        g(f"""
        s_sub_u32 {sT0}, s2, 128
        s_lshl_b32 {sT0}, {sT0}, 7
        s_add_u32 {sT0}, {sT0}, {WS['GO']}
        s_cmp_eq_u32 {sW}, 0
        s_cselect_b32 {sT0}, {sT0}, {WS_USED}
        v_mov_b32 v17, {sE}
        s_mov_b32 exec_hi, 0
        buffer_store_dword v17, v251, {WSR}, {sT0} offen
        s_mov_b64 exec, -1
        """)
    lq = LQ(g)
    def rdA(s):
        ch = CORD[s >> 3]
        g(f"ds_read_b128 {ar(4*s,4)}, v{(KA_ if ch < 2 else KH_)+(s&7)} offset:{(ch&1)*32768}"); lq.add(f"A{s}")
    nA = 0
    for i in range(32):
        ch, u = CORD[i >> 3], i & 7
        if i == qpos: qa_loads()
        if i:
            g(f"s_add_u32 m0, {sD}, {ch*32768+u*1024}")
            if (u & 3) == 0 or i == qpos: g(f"s_add_u32 {sOff}, {sA}, {(u>>2)*262144+ch*256}")
            else: g("s_nop 0")
        else:
            g(f"s_mov_b32 {sOff}, {sA}")
        dma(g, DO+(u & 3), SRD_A, sOff, fl)
        if i and i == o.get("gopos", 0): go_store()
        if i == k1: setup()
        if i == k1+1: setup2()
        k = k1 if i < n1 else k2
        if i < qpos or (i < 31 and o.get("k3") is not None):
            if i >= qpos: k = o["k3"]
            g(f"s_waitcnt vmcnt({k})")
            if nA < 16 and (i - k) >= 8*(nA >> 3) + 7 and i > k1+1: rdA(nA); nA += 1
    g.ts(1)
    Lv = g.label("val")
    if qpos < 32:
        g(f"s_mov_b32 {sCnt}, 0\ns_waitcnt vmcnt({32-qpos})\ns_branch {Lv}")
        Lq = g.label("qa"); g(f"{Lq}:")
    else:
        Lq = g.poll_begin("qa")
    qa_loads()
    g(f"s_waitcnt vmcnt(0)\n{Lv}:")
    g.ts(12)
    FB = 44
    for i in range(8): g(f"ds_read_b128 {vr(FB+4*i,4)}, v{vVal} offset:{i*4096}")
    g(f"v_sub_u32 v{T+4}, 0, v{CK}\ns_lshl_b32 {sT0}, {sE}, 5")
    for i in range(8):
        g(f"s_waitcnt lgkmcnt({7-i})")
        g(f"v_add3_u32 v{T+4}, v{T+4}, v{FB+4*i}, v{FB+4*i+1}\nv_add3_u32 v{T+4}, v{T+4}, v{FB+4*i+2}, v{FB+4*i+3}")
    lq.clear()
    g.allred16("v_add_u32", T+4); g.swapred("v_add_u32", T+4, T+7, 16); g.swapred("v_add_u32", T+4, T+7, 32)
    g(f"v_add_u32 v{T+4}, {sT0}, v{T+4}\nv_cmp_ne_u32 vcc, 0, v{T+4}")
    g.poll_end(Lq)
    g.ts(2)
    if o.get("ts"): g(f"s_mov_b32 s{TSB+13}, {sCnt}")
    g("s_barrier")
    g.ts(3)
    S = 76
    NB = 8
    def breg(s): return FB + 4*(s % NB) if s < 24 else 132 + 4*(s-24)
    def rdB(s):
        g(f"ds_read_b128 {vr(breg(s),4)}, v{KB_+(s&7)} offset:{CORD[s>>3]*8192}"); lq.add(f"B{s}")
    sched = [(0, s, tt) for s in range(2) for tt in range(4)]
    sched += [(tp, s, tt) for tp in (1, 2, 3) for s in range(2) for tt in (0, 1)]
    sched += [(tp, s, tt) for tp in (1, 2, 3) for s in range(2) for tt in (2, 3)]
    nV = [0]
    def rdV(cnt=1):
        for _ in range(cnt):
            n = nV[0]
            if n >= 32: return
            tp, s, tt = sched[n]
            for t in range(2):
                g(f"ds_read_b64_tr_b16 {ar(128+4*n+2*t,2)}, v{VB+8*tp+2*tt+t} offset:{s*4096+t*2048}")
            lq.add(f"V{n}", 2); nV[0] += 1
    nB = 0
    while nB < 5: rdB(nB); nB += 1
    for s in range(32):
        if s == 1 and o.get("uvpf", 1):
            g(f"""
            s_lshl_b32 {sT0}, {sRec}, 16
            s_lshl_b32 {sT1}, {sGrp}, 10
            s_add_u32 {sT0}, {sT0}, {sT1}
            buffer_load_dword v231, v{vUf}, {srd(SRD_B)}, {sT0} offen
            """)
        if s == 0 and o.get("gopos", 0) == 0: go_store()
        if s == 0 and o.get("stpf", 1):
            g(f"""
            s_lshr_b32 {sT0}, {sP}, 3
            s_lshl_b32 {sT0}, {sT0}, 2
            s_add_u32 {sT0}, {sT0}, {sW}
            s_lshl_b32 {sT0}, {sT0}, 13
            s_lshl_b32 {sT1}, {sGrp}, 6
            s_add_u32 {sT0}, {sT0}, {sT1}
            s_add_u32 {sT0}, {sT0}, {WS['ST']}
            buffer_load_dword v228, v{vFo}, {WSR}, {sT0} offen sc1
            """)
        if s == 24:
            g(f"s_waitcnt vmcnt({o.get('uvpf', 1) + o.get('stpf', 1) + (o.get('gopos', 0) == 0)})")
            while nA < 28: rdA(nA); nA += 1
            g("s_barrier")
            g.ts(11);
            if o.get("ts") == 1: lq.clear()
        if s < 24:
            if nB < 32: rdB(nB); nB += 1
            if nA < 24: rdA(nA); nA += 1
            elif nB < 32 and nB >= 24: rdB(nB); nB += 1
        else:
            if nA < 32: rdA(nA); nA += 1; rdV(1)
            else: rdV(2)
        lq.wait(f"A{s}", f"B{s}")
        g(f"v_mfma_f32_32x32x16_bf16 {vr(S,16)}, {ar(4*s,4)}, {vr(breg(s),4)}, {vr(S,16) if s else 0}")
    assert nB == 32 and nA == 32
    rdV(2)
    g(f"""
    s_lshr_b32 {sK}, {sP}, 3
    s_lshl_b32 {sK}, {sK}, 2
    s_add_u32 {sK}, {sK}, {sW}
    s_and_b32 {sT2}, {sP}, 7
    s_lshl_b32 {sOff}, {sK}, 13
    s_lshl_b32 {sT0}, {sGrp}, 6
    s_add_u32 {sOff}, {sOff}, {sT0}
    s_add_u32 {sOff}, {sOff}, {WS['ST']}
    """)
    g.ts(4)
    vM, vLs = T+4, T+6
    g(f"v_max3_f32 v{vM}, v{S}, v{S+1}, v{S+2}\nv_max3_f32 v{vM+1}, v{S+3}, v{S+4}, v{S+5}")
    for r in range(6, 14, 4): g(f"v_max3_f32 v{vM}, v{vM}, v{S+r}, v{S+r+1}\nv_max3_f32 v{vM+1}, v{vM+1}, v{S+r+2}, v{S+r+3}")
    g(f"v_max3_f32 v{vM}, v{vM}, v{S+14}, v{S+15}\nv_max_f32 v{vM}, v{vM}, v{vM+1}")
    g.swapred("v_max_f32", vM, vM+1, 32)
    g(f"ds_write_b32 v{vXw}, v{vM}"); lq.add("MW")
    rdV(3)
    lq.wait("MW")
    g(f"""
    s_barrier
    ds_read2_b32 {vr(KB_,2)}, v{vXr} offset0:0 offset1:32
    ds_read2_b32 {vr(KB_+2,2)}, v{vXr} offset0:64 offset1:96
    """); lq.add("MR", 2)
    rdV(3)
    lq.wait("MR")
    g(f"v_max3_f32 v{vM}, v{KB_}, v{KB_+1}, v{KB_+2}\nv_max_f32 v{vM}, v{vM}, v{KB_+3}")
    PF = 44
    O = 132; PK = 196
    PXo = XCH - QAI + 1024
    def mf(n):
        tp, s, tt = sched[n]
        acc = vr(O+16*tt, 16)
        lq.wait(f"V{n}", f"P{tp}{s}")
        g(f"v_mfma_f32_32x32x16_bf16 {acc}, {vr(PF+8*tp+4*s,4)}, {ar(128+4*n,4)}, {acc if n >= 4 else 0}")
    for r in range(8): g(f"v_pk_add_f32 {vr(S+2*r,2)}, {vr(S+2*r,2)}, {vr(vM,2)} op_sel_hi:[1,0] neg_lo:[0,1] neg_hi:[0,1]")
    for hf in range(2):
        for r in range(8):
            g(f"v_exp_f32 v{S+8*hf+r}, v{S+8*hf+r}")
            if hf and r in (0, 3, 6): mf(r//3)
        for r in range(4): g(f"v_cvt_pk_bf16_f32 v{PF+4*hf+r}, v{S+8*hf+2*r}, v{S+8*hf+2*r+1}")
        g(f"ds_write_b128 v{vPw}, {vr(PF+4*hf,4)} offset:{PXo+1024*hf}"); lq.add("PW")
    mf(3)
    lq.wait("PW")
    g("s_barrier")
    g.ts(5)
    if o.get("ts") == 1: lq.clear()
    def rdP(tp):
        for s in range(2):
            g(f"ds_read_b128 {vr(PF+8*tp+4*s,4)}, v{vPr+tp-1} offset:{PXo+1024*s}"); lq.add(f"P{tp}{s}")
    CS_ = 18
    def pack_store(e2, gq, ck=True):
        b = PK + 16*e2 + 4*gq
        for d in range(4):
            g(f"v_cvt_pk_bf16_f32 v{b+d}, v{O+32*e2+4*gq+d}, v{O+32*e2+16+4*gq+d}")
        g(f"buffer_store_dwordx4 {vr(b,4)}, v{vH16 if e2 else vL16}, {WSR}, {sH} offen offset:{gq*1024} sc1")
    def csum(e2, gq):
        b = PK + 16*e2 + 4*gq
        g(f"v_add3_u32 v{CS_+gq}, v{b}, v{b+1}, v{b+2}\nv_add_u32 v{CS_+gq}, v{CS_+gq}, v{b+3}")
    def cfold(e2):
        g(f"""
        v_permlane16_swap_b32 v{CS_}, v{CS_+1}
        v_permlane16_swap_b32 v{CS_+2}, v{CS_+3}
        v_add_u32 v{CS_}, v{CS_}, v{CS_+1}
        v_add_u32 v{CS_+2}, v{CS_+2}, v{CS_+3}
        s_nop 0
        v_add_u32_dpp v{CS_+4}, v{CS_}, v{CS_} row_ror:8 row_mask:0xf bank_mask:0x3
        v_add_u32_dpp v{CS_+4}, v{CS_+2}, v{CS_+2} row_ror:8 row_mask:0xf bank_mask:0xc
        s_nop 1
        v_add_u32_dpp v{CS_+5}, v{CS_+4}, v{CS_+4} row_half_mirror row_mask:0xf bank_mask:{0xa if e2 else 0x5:#x}
        """)
    fill = [f"v_add_f32 v{S+r}, v{S+r}, v{S+8+r}" for r in range(8)] + [f"v_add_f32 v{S+r}, v{S+r}, v{S+4+r}" for r in range(4)]
    fill += [f"v_add_f32 v{S}, v{S}, v{S+2}", f"v_add_f32 v{S+1}, v{S+1}, v{S+3}", f"v_add_f32 v{vLs}, v{S}, v{S+1}", f"v_mov_b32 v{vLs+1}, v{vLs}"]
    salu = f"""s_lshl_b32 {sB}, {sK}, 19
    s_lshl_b32 {sT0}, {sT2}, 12
    s_add_u32 {sB}, {sB}, {sT0}
    s_lshl_b32 {sT0}, {sGrp}, 9
    s_add_u32 {sB}, {sB}, {sT0}
    s_add_u32 {sB}, {sB}, {WS['PO']}
    s_lshl_b32 {sC}, {sGrp}, 2
    s_add_u32 {sC}, {sC}, {sW}
    s_lshl_b32 {sC}, {sC}, 12
    s_lshl_b32 {sT1}, {sP}, 8
    s_add_u32 {sC}, {sC}, {sT1}
    s_add_u32 {sC}, {sC}, {WS['CL']}
    s_lshl_b32 {sA}, {sK}, 14
    s_lshr_b32 {sT0}, {sT2}, 1
    s_lshl_b32 {sT0}, {sT0}, 8
    s_add_u32 {sA}, {sA}, {sT0}
    s_and_b32 {sT0}, {sT2}, 1
    s_lshl_b32 {sT0}, {sT0}, 4
    s_add_u32 {sA}, {sA}, {sT0}
    s_brev_b32 {sT0}, {sGrp}
    s_lshr_b32 {sT0}, {sT0}, 24
    s_add_u32 {sA}, {sA}, {sT0}
    s_add_u32 {sA}, {sA}, {WS['PC']}""".split("\n")
    FG = 76
    FR = 88
    st_load = f"buffer_load_dwordx4 {vr(FR,4)}, v{vFo}, {WSR}, {sOff} offen sc1"
    lb = o.get("lb", 13)
    def st_store(): g(f"s_mov_b32 exec_hi, 0\nbuffer_store_dwordx4 {vr(FG,4)}, v{vL16}, {WSR}, {sJ} offen sc1\ns_mov_b64 exec, -1")
    for n in range(4, 32):
        if n in (4, 5, 6): rdP(n-3)
        else: rdV(1)
        mf(n)
        if 4 <= n <= 7:
            for x in fill[4*(n-4):4*(n-4)+4]: g(x)
        if n == 8: g(f"v_permlane32_swap_b32 v{vLs}, v{vLs+1}\nv_mov_b32 v{FG}, v{vM}\nv_add_f32 v{vLs}, v{vLs}, v{vLs+1}\nds_write_b32 v{vXw}, v{vLs} offset:512"); lq.add("L")
        if n == 11:
            lq.wait("L")
            g(f"s_barrier\nds_read2_b32 {vr(KB_,2)}, v{vXr} offset0:128 offset1:160\nds_read2_b32 {vr(KB_+2,2)}, v{vXr} offset0:192 offset1:224")
            lq.add("LR", 2)
        if n == 13:
            lq.wait("LR")
            g(f"v_add_f32 v{FG+1}, v{KB_}, v{KB_+1}\nv_add_f32 v{FG+3}, v{KB_+2}, v{KB_+3}\nv_mov_b32 v{FG+2}, {sE}\nv_add_f32 v{FG+1}, v{FG+1}, v{FG+3}")
        if n == lb+1: st_store()
        if 15 <= n <= 22:
            for x in salu[4*(n-15):4*(n-15)+4]: g(x)
        if n == 22 and o.get("est", 0): g(st_load)
        if n in (23, 25, 27, 29): pack_store(0, (n-23)//2)
        if n in (24, 26, 28, 30): csum(0, (n-24)//2)
    assert nV[0] == 32
    g("s_nop 0")
    cfold(0)
    g("s_nop 0")
    for gq in range(4): pack_store(1, gq)
    if lb == 99: st_store()
    FR = 88
    st_load = f"buffer_load_dwordx4 {vr(FR,4)}, v{vFo}, {WSR}, {sOff} offen sc1"
    g.ts(6)
    for gq in range(4): csum(1, gq)
    g("s_nop 1")
    cfold(1)
    g(f"""
    s_nop 1
    v_add_u32_dpp v{CS_+5}, v{CS_+5}, v{CS_+5} quad_perm:[2,3,0,1] {DPP}
    s_nop 1
    v_add_u32_dpp v{CS_+5}, v{CS_+5}, v{CS_+5} quad_perm:[1,0,3,2] {DPP}
    v_add_u32 v{CS_+5}, {sE}, v{CS_+5}
    buffer_store_dword v{CS_+5}, v251, {WSR}, {sDone} offen sc1
    """)
    g.ts(7)
    if o.get("est", 0):
        Li = g.label("stin")
        g(f"s_mov_b32 {sCnt}, 0\ns_waitcnt vmcnt({o.get('ackw', 1)})\ns_branch {Li}")
        L = g.label("st")
        g(f"{L}:\n{st_load}\ns_waitcnt vmcnt(0)\n{Li}:")
    else:
        L = g.poll_begin("st")
        g(f"{st_load}\ns_waitcnt vmcnt(0)")
    g(f"v_cmp_ne_u32 vcc, {sE}, v{FR+2}")
    g.poll_end(L)
    if o.get("ts"): g(f"s_mov_b32 s{TSB+14}, {sCnt}")
    DT = 92
    def dloads():
        g(f"s_mov_b32 {sOff2}, {sB}\ns_mov_b64 exec, 0xffff\nbuffer_load_dword v{CK}, v229, {WSR}, {sA} offen sc1\ns_mov_b64 exec, -1")
        for u in range(8):
            g(f"buffer_load_dwordx4 {vr(DT+4*u,4)}, v{vDl}, {WSR}, {sOff2} offen sc1")
            if u < 7: g(f"s_add_u32 {sOff2}, {sOff2}, 0x10000")
    g(f"v_mov_b32 v{CK}, 0")
    dloads()
    g.ts(8)
    vW = T+8
    g(f"v_max_f32_dpp v{vM}, v{FR}, v{FR} row_ror:4 {DPP}")
    g.allred16("v_max_f32", vM, (8,)); g.swapred("v_max_f32", vM, vM+1, 16); g.swapred("v_max_f32", vM, vM+1, 32)
    g(f"""
    v_sub_f32 v{vW}, v{FR}, v{vM}
    v_exp_f32 v{vW}, v{vW}
    s_nop 0
    v_cvt_pk_bf16_f32 v{vW}, v{vW}, v{vW}
    v_and_b32 v{vLs}, 0xffff0000, v{vW}
    v_mul_f32 v{vLs}, v{vLs}, v{FR+1}
    """)
    WV = 124
    for u in range(8): g(f"ds_bpermute_b32 v{WV+u}, v{vBp}, v{vW} offset:{32*u}")
    g.allred16("v_add_f32", vLs, (4, 8)); g.swapred("v_add_f32", vLs, vLs+1, 16); g.swapred("v_add_f32", vLs, vLs+1, 32)
    AFr = 132
    Lmm = g.label("mm")
    ML = 80
    g(f"""
    v_mov_b32 v{vM+1}, v{vLs}
    s_lshl_b32 {sT1}, {sE}, 4
    ds_write_b64 v{vMLw}, {vr(vM,2)}
    ds_bpermute_b32 v{T+2}, v{vB4}, v{vM}
    s_waitcnt lgkmcnt(2)
    """)
    for u in range(4):
        for d in range(4): g(f"v_and_b32 v{AFr+4*u+d}, v{MK+d}, v{WV+u}")
    g(f"""
    s_waitcnt lgkmcnt(0)
    s_barrier
    ds_read2_b64 {vr(ML,4)}, v{vMLr} offset0:0 offset1:4
    ds_read2_b64 {vr(ML+4,4)}, v{vMLr} offset0:8 offset1:12
    """)
    for u in range(4, 8):
        for d in range(4): g(f"v_and_b32 v{AFr+4*u+d}, v{MK+d}, v{WV+u}")
    g(f"""
    s_waitcnt lgkmcnt(0)
    v_max3_f32 v{T+3}, v{ML}, v{ML+2}, v{ML+4}
    v_max_f32 v{T+3}, v{T+3}, v{ML+6}
    v_sub_f32 v{ML}, v{ML}, v{T+3}
    v_sub_f32 v{ML+2}, v{ML+2}, v{T+3}
    v_sub_f32 v{ML+4}, v{ML+4}, v{T+3}
    v_sub_f32 v{ML+6}, v{ML+6}, v{T+3}
    v_sub_f32 v{T+2}, v{T+2}, v{T+3}
    v_exp_f32 v{ML}, v{ML}
    v_exp_f32 v{ML+2}, v{ML+2}
    v_exp_f32 v{ML+4}, v{ML+4}
    v_exp_f32 v{ML+6}, v{ML+6}
    v_exp_f32 v{T+2}, v{T+2}
    v_mul_f32 v{T+3}, v{ML}, v{ML+1}
    v_fmac_f32 v{T+3}, v{ML+2}, v{ML+3}
    v_fmac_f32 v{T+3}, v{ML+4}, v{ML+5}
    v_fmac_f32 v{T+3}, v{ML+6}, v{ML+7}
    v_rcp_f32 v{T+3}, v{T+3}
    s_nop 0
    v_mul_f32 v{T+2}, v{T+2}, v{T+3}
    """)
    g(f"s_mov_b32 {sCnt}, 0\ns_branch {Lmm}")
    L = g.label("dat"); g(f"{L}:")
    dloads()
    D = 164
    g(f"{Lmm}:\ns_waitcnt vmcnt(8) lgkmcnt(0)\nv_sub_u32 v{vM}, 0, v{CK}")
    for u in range(8):
        g(f"s_waitcnt vmcnt({7-u})")
        g(f"v_mfma_f32_16x16x32_bf16 {vr(D,4)}, {vr(AFr+4*u,4)}, {vr(DT+4*u,4)}, {vr(D,4) if u else 0}")
        g(f"v_add3_u32 v{vM}, v{vM}, v{DT+4*u}, v{DT+4*u+1}\nv_add3_u32 v{vM}, v{vM}, v{DT+4*u+2}, v{DT+4*u+3}")
    g.allred16("v_add_u32", vM, (8, 4))
    g(f"v_pk_mul_f32 {vr(D,2)}, {vr(D,2)}, {vr(T+2,2)} op_sel_hi:[1,0]\nv_pk_mul_f32 {vr(D+2,2)}, {vr(D+2,2)}, {vr(T+2,2)} op_sel_hi:[1,0]")
    g(f"""
    v_add_u32_dpp v{vM}, v{vM}, v{vM} row_ror:2 {DPP}
    ds_write_b128 v{vVal}, {vr(D,4)}
    s_nop 0
    v_add_u32_dpp v{vM}, v{vM}, v{vM} row_ror:1 {DPP}
    """)
    g.swapred("v_add_u32", vM, vM+1, 16); g.swapred("v_add_u32", vM, vM+1, 32)
    g(f"v_add_u32 v{vM}, {sT1}, v{vM}\nv_cmp_ne_u32 vcc, 0, v{vM}")
    g.poll_end(L)
    g(f"""
    s_waitcnt lgkmcnt(0)
    s_barrier
    ds_read2st64_b32 {vr(D,2)}, v{vCLs} offset0:0 offset1:4
    ds_read2st64_b32 {vr(D+2,2)}, v{vCLs} offset0:8 offset1:12
    s_xor_b32 {sD}, {sC}, {ALT}
    s_waitcnt lgkmcnt(0)
    v_pk_add_f32 {vr(D,2)}, {vr(D,2)}, {vr(D+2,2)}
    v_add_f32 v{D}, v{D}, v{D+1}
    """)
    g.tag((D,))
    g(f"""
    buffer_store_dword v{D}, v251, {WSR}, {sC} offen
    buffer_store_dword v{D}, v251, {WSR}, {sD} offen sc1
    """)
    g.ts(9)
    if o.get("ts"): g(f"s_lshl_b32 {sCnt}, {sCnt}, 8\ns_add_u32 s{TSB+13}, s{TSB+13}, {sCnt}")
    Lend = g.label("Aend")
    g(f"""
    s_sub_u32 {sH}, s2, 128
    s_cmp_ge_u32 {sH}, 40
    s_cbranch_scc1 {Lend}
    s_lshr_b32 {sT0}, {sH}, 1
    s_mul_i32 {sT1}, {sT0}, 52
    s_lshr_b32 {sT1}, {sT1}, 8
    s_mul_i32 {sT2}, {sT1}, 5
    s_sub_u32 {sT0}, {sT0}, {sT2}
    s_lshl_b32 {sT0}, {sT0}, 8
    s_lshl_b32 {sT1}, {sT1}, 5
    s_add_u32 {sT0}, {sT0}, {sT1}
    s_and_b32 {sT1}, {sH}, 1
    s_lshl_b32 {sT1}, {sT1}, 4
    s_add_u32 {sT0}, {sT0}, {sT1}
    v_lshrrev_b32 v{T}, 5, v0
    v_lshlrev_b32 v{T}, 7, v{T}
    v_bfe_u32 v{T+1}, v0, 4, 1
    v_mul_u32_u24 v{T+1}, 1280, v{T+1}
    v_and_b32 v{T+2}, 7, v0
    v_lshlrev_b32 v{T+2}, 1, v{T+2}
    v_add3_u32 v{T}, v{T}, v{T+1}, v{T+2}
    v_add_u32 v{T}, {sT0}, v{T}
    s_lshl_b32 {sT0}, {sH}, 13
    s_lshl_b32 {sT1}, {sW}, 11
    s_add_u32 {sT0}, {sT0}, {sT1}
    s_add_u32 {sOff}, {sT0}, {WS['YP']}
    s_add_u32 {sOff2}, {sT0}, {WS['SP']}
    v_lshlrev_b32 v{T+4}, 2, v0
    s_lshl_b32 {sT1}, {sW}, 8
    v_add_u32 v{T+5}, {sT1}, v{T+4}
    """)
    g.mksrd(SRD_B, "x"); g.mksrd(SRD_C, "out")
    g(f"buffer_load_ushort v{T+1}, v{T}, {srd(SRD_B)}, 0 offen")
    Z = 92
    if o.get("sph", 16):
        g(f"s_lshl_b32 {sT0}, {sW}, 11\ns_lshl_b32 {sT1}, {sGrp}, 13\ns_add_u32 {sT0}, {sT0}, {sT1}\ns_add_u32 {sT0}, {sT0}, {WS['SH']}\ns_mov_b64 exec, 0xffff")
        L = g.poll_begin("sh")
        g(f"buffer_load_dword v{T+8}, v{vPf}, {WSR}, {sT0} offen sc1\ns_waitcnt vmcnt(0)")
        g.chk_acc(T+7, [T+8], True); g.chk_fin(T+7); g.poll_end(L)
        g("s_mov_b64 exec, -1")
        g.ts(1)
    L = g.poll_begin("sp")
    g(f"""
    buffer_load_dwordx4 {vr(Z,4)}, v{vL16}, {WSR}, {sOff} offen sc1
    buffer_load_dwordx4 {vr(Z+4,4)}, v{vL16}, {WSR}, {sOff} offen offset:1024 sc1
    buffer_load_dwordx4 {vr(Z+8,4)}, v{vL16}, {WSR}, {sOff2} offen sc1
    buffer_load_dwordx4 {vr(Z+12,4)}, v{vL16}, {WSR}, {sOff2} offen offset:1024 sc1
    s_waitcnt vmcnt(2)
    """)
    def zred(b, off):
        g(f"v_pk_add_f32 {vr(b+16,2)}, {vr(b,2)}, {vr(b+4,2)}\nv_pk_add_f32 {vr(b+18,2)}, {vr(b+2,2)}, {vr(b+6,2)}")
        g.chk_acc(T+7, range(b, b+2), off == 0)
        g(f"v_permlane32_swap_b32 v{b+16}, v{b+18}\nv_permlane32_swap_b32 v{b+17}, v{b+19}")
        g.chk_acc(T+7, range(b+2, b+3), False)
        g(f"v_pk_add_f32 {vr(b+16,2)}, {vr(b+16,2)}, {vr(b+18,2)}")
        g.chk_acc(T+7, range(b+3, b+5), False)
        g(f"v_permlane16_swap_b32 v{b+16}, v{b+17}")
        g.chk_acc(T+7, range(b+5, b+6), False)
        g(f"v_add_f32 v{b+16}, v{b+16}, v{b+17}")
        g.chk_acc(T+7, range(b+6, b+8), False)
        g(f"v_add_f32_dpp v{b+16}, v{b+16}, v{b+16} row_ror:8 {DPP}\nds_write_b32 v{T+5}, v{b+16} offset:{off}")
    zred(Z, 0)
    g("s_waitcnt vmcnt(0)")
    zred(Z+8, 1024)
    g.chk_fin(T+7); g.poll_end(L)
    g.ts(10)
    if o.get("ts"): g(f"s_add_u32 s{TSB+12}, {sCnt}, 1")
    g(f"""
    s_waitcnt lgkmcnt(0)
    s_barrier
    ds_read2st64_b32 {vr(Z+4,2)}, v{T+4} offset0:0 offset1:1
    ds_read2st64_b32 {vr(Z+6,2)}, v{T+4} offset0:2 offset1:3
    ds_read2st64_b32 {vr(Z,2)}, v{T+4} offset0:4 offset1:5
    ds_read2st64_b32 {vr(Z+2,2)}, v{T+4} offset0:6 offset1:7
    s_mov_b32 s60, 0x00ff00ff
    s_mov_b32 s61, 0x00ff00ff
    v_lshlrev_b32 v{T+1}, 16, v{T+1}
    s_waitcnt lgkmcnt(2)
    v_pk_add_f32 {vr(Z+4,2)}, {vr(Z+4,2)}, {vr(Z+6,2)}
    v_add_f32 v{T+2}, v{Z+4}, v{Z+5}
    v_mul_f32 v{T+3}, {-LOG2E!r}, v{T+2}
    v_exp_f32 v{T+3}, v{T+3}
    s_waitcnt lgkmcnt(0)
    v_add_f32 v{T+3}, 1.0, v{T+3}
    v_rcp_f32 v{T+3}, v{T+3}
    v_pk_add_f32 {vr(Z,2)}, {vr(Z,2)}, {vr(Z+2,2)}
    v_mul_f32 v{T+2}, v{T+2}, v{T+3}
    """)
    g(f"""
    s_cmp_lg_u32 {sW}, 0
    s_cbranch_scc1 L_zother
    v_add_f32 v{T+3}, v{Z}, v{Z+1}
    v_fmac_f32 v{T+1}, v{T+2}, v{T+3}
    v_cvt_pk_bf16_f32 v{T+1}, v{T+1}, v{T+1}
    s_mov_b64 exec, s[60:61]
    buffer_store_short v{T+1}, v{T}, {srd(SRD_C)}, 0 offen {o.get('out_flags','')}
    s_branch {Lend}
    L_zother:
    s_add_u32 {sH}, {sH}, {sW}
    s_cmp_lg_u32 {sH}, 1
    s_cbranch_scc1 {Lend}
    s_mov_b32 exec_hi, 0
    v_mov_b32 v{T+2}, {sE}
    buffer_store_dword v{T+2}, v{T+4}, {WSR}, 0 offen sc1
    {Lend}:
    """)
    g.finish()

def build(opt):
    g = G(opt)
    if opt.get("ts"):
        g.ts(0)
        for i in range(1, 16): g(f"s_mov_b32 s{TSB+i}, 0")
    g(f"""
    s_cmp_ge_u32 s2, 256
    s_cbranch_scc1 L_exit
    s_load_dwordx16 s[64:79], s[0:1], 0
    s_load_dwordx8 s[80:87], s[0:1], 64
    s_load_dwordx2 s[88:89], s[0:1], 96
    v_readfirstlane_b32 {sW}, v0
    v_and_b32 v0, 63, v0
    s_nop 2
    s_lshr_b32 {sW}, {sW}, 6
    s_cmp_ge_u32 s2, 128
    s_cbranch_scc1 L_roleA
    """)
    role_w(g)
    g("L_exit:\ns_endpgm")
    g(".p2align 6\nL_roleA:")
    role_a(g)
    g("L_codeend:")
    K = NAME + "_kernel"
    s = header(["; @launch grid=(256,1,1) block=(256,1,1) lds=163840"])
    s += kernel_text(K, g.text())
    s += '.section .rodata,"a"\n' + descriptor(K, vgpr=512, sgpr=96, accum=256)
    return s

if __name__ == "__main__":
    opt = {}
    out = sys.argv[1]
    for kv in sys.argv[2:]:
        k, v = kv.split("=")
        opt[k] = int(v) if v.lstrip("-").isdigit() else v
    open(out, "w").write(build(opt))
```
